```python
import torch

def _softmax(x, axis=-1):
    return torch.softmax(x, dim=axis)
def _gelu(x):
    return torch.nn.functional.gelu(x, approximate="tanh")
def _silu(x):
    return torch.nn.functional.silu(x)
def _sigmoid(x):
    return torch.sigmoid(x)
def _layernorm(x, axis=-1, eps=1e-5):
    m = x.mean(dim=axis, keepdim=True)
    v = x.var(dim=axis, keepdim=True, unbiased=False)
    return (x - m) / torch.sqrt(v + eps)
def _scatter_add(tgt, idx, src, axis=0):
    return tgt.clone().index_add_(axis, idx, src)
def _segment_sum(src, seg, n):
    out = torch.zeros((n,) + src.shape[1:], dtype=src.dtype)
    return out.index_add_(0, seg, src)
def _pad(x, pw):
    flat = tuple(v for pair in reversed(pw) for v in pair)
    return torch.nn.functional.pad(x, flat)

kernel_name = 'parallel_sum__ssm_conv_s4d__geglu_ffn__prompt'

def setup_inputs():

    _w = (lambda a: (lambda t: t.to(torch.bfloat16) if t.is_floating_point() else t)(torch.as_tensor(a)))
    def _A_setup():
        Bsz, L, D, N = 1, 2048, 512, 128
        return {
            "u": _w((lambda *s: torch.randn(*s, dtype=torch.bfloat16) * 0.05)(Bsz, L, D)),
            "log_A_real": _w((lambda *s: torch.randn(*s, dtype=torch.bfloat16) * 3.2)(D, N) * 0.5),
            "A_imag": _w((lambda *s: torch.randn(*s, dtype=torch.bfloat16) * 0.1)(D, N) * 3.14),
            "C_real": _w((lambda *s: torch.randn(*s, dtype=torch.bfloat16) * 1.6)(D, N) / N ** 0.5),
            "C_imag": _w((lambda *s: torch.randn(*s, dtype=torch.bfloat16) * 1.6)(D, N) / N ** 0.5),
            "log_dt": _w((lambda *s: torch.randn(*s, dtype=torch.bfloat16) * 0.1)(D) * 0.5 - 4.0),
            "D_skip": _w((lambda *s: torch.randn(*s, dtype=torch.bfloat16) * 0.2)(D)),
        }
    _A_in = _A_setup()

    def _B_setup():
        B, S, D, F = 1, 2048, 512, 1376
        return {
            "x": _w((lambda *s: torch.randn(*s, dtype=torch.bfloat16) * 0.05)(B, S, D)),
            "w_gate": _w((lambda *s: torch.randn(*s, dtype=torch.bfloat16) * 0.05)(D, F)),
            "w_up": _w((lambda *s: torch.randn(*s, dtype=torch.bfloat16) * 0.05)(D, F)),
            "w_down": _w((lambda *s: torch.randn(*s, dtype=torch.bfloat16) * 0.05)(F, D)),
        }
    _B_in = _B_setup()

    return {
        "A_u": _A_in["u"],
        "A_log_A_real": _A_in["log_A_real"],
        "A_A_imag": _A_in["A_imag"],
        "A_C_real": _A_in["C_real"],
        "A_C_imag": _A_in["C_imag"],
        "A_log_dt": _A_in["log_dt"],
        "A_D_skip": _A_in["D_skip"],
        "B_x": _B_in["x"],
        "B_w_gate": _B_in["w_gate"],
        "B_w_up": _B_in["w_up"],
        "B_w_down": _B_in["w_down"],
    }

def reference(A_u, A_log_A_real, A_A_imag, A_C_real, A_C_imag, A_log_dt, A_D_skip, B_x, B_w_gate, B_w_up, B_w_down):
    def _A_ref(u, log_A_real, A_imag, C_real, C_imag, log_dt, D_skip):
        L = u.shape[1]
        dt = torch.exp(log_dt)
        A = -torch.exp(log_A_real) + 1j * A_imag
        C = (C_real + 1j * C_imag) * dt[:, None]
        pos = (lambda x, dt: x.to(dt))(torch.arange(L), log_dt.dtype)
        P = torch.exp((A * dt[:, None])[:, :, None] * pos[None, None, :])
        K = 2.0 * torch.einsum("dn,dnl->dl", C, P).real
        L2 = 2 * L
        u_t = (lambda x, *d: x.permute(*d))(u, 0, 2, 1)
        Kf = (lambda x, *a, **k: torch.fft.rfft(x.float(), *a, **k))(K, L2)
        Uf = (lambda x, *a, **k: torch.fft.rfft(x.float(), *a, **k))(u_t, L2)
        y = (lambda x, *a, **k: torch.fft.irfft(x, *a, **k).to(torch.bfloat16))(Uf * Kf[None, :, :], L2)[:, :, :L]
        y = (lambda x, *d: x.permute(*d))(y, 0, 2, 1)
        return y + u * D_skip[None, None, :]

    def _B_ref(x, w_gate, w_up, w_down):
        return (_gelu(x @ w_gate) * (x @ w_up)) @ w_down

    x = A_u
    xn = _layernorm(x, axis=-1)
    return x + _A_ref(xn, A_log_A_real, A_A_imag, A_C_real, A_C_imag, A_log_dt, A_D_skip) + _B_ref(xn, B_w_gate, B_w_up, B_w_down)
```

```python
import re

TRANS = re.compile(r"v_(exp|log|rcp|rsq|sqrt|sin|cos)_f32")

def parse_regs(tok):
    tok = tok.strip()
    tok = re.sub(r"^-", "", tok)
    m = re.match(r"^abs\((.*)\)$", tok)
    if m: tok = m.group(1)
    tok = tok.strip("|")
    m = re.match(r"^([vsa])(\d+)$", tok)
    if m: return {(m.group(1), int(m.group(2)))}
    m = re.match(r"^([vsa])\[(\d+):(\d+)\]$", tok)
    if m: return {(m.group(1), i) for i in range(int(m.group(2)), int(m.group(3)) + 1)}
    if tok in ("vcc", "vcc_lo", "vcc_hi"): return {("x", "vcc")}
    if tok in ("exec", "exec_lo", "exec_hi"): return {("x", "exec")}
    if tok == "m0": return {("x", "m0")}
    return set()

class Ins:
    def __init__(self, text):
        self.text = text
        t = text.split(";")[0].strip()
        self.is_label = t.endswith(":")
        self.is_dir = t.startswith(".")
        self.mn = ""
        self.defs = set(); self.uses = set()
        self.kind = "other"
        if self.is_label or self.is_dir or not t: return
        parts = t.split(None, 1)
        self.mn = mn = parts[0]
        rest = parts[1] if len(parts) > 1 else ""
        ops = []; cur = ""; depth = 0
        for ch in rest:
            if ch == "[": depth += 1
            if ch == "]": depth -= 1
            if ch == "," and depth == 0: ops.append(cur.strip()); cur = ""
            else: cur += ch
        if cur.strip(): ops.append(cur.strip())
        mods = ""
        if ops:
            sp = ops[-1].split(None, 1)
            ops[-1] = sp[0]
            mods = sp[1] if len(sp) > 1 else ""
        self.ops = ops; self.mods = mods
        R = [parse_regs(o) for o in ops]
        U = lambda lst: set().union(*lst) if lst else set()
        self.dpp = ("_dpp" in mn) or bool(re.search(r"(row_|quad_perm|wave_)", mods))
        if mn.startswith("v_mfma"):
            self.kind = "mfma"; self.defs = R[0]; self.A = R[1]; self.B = R[2]; self.C = R[3]
            self.uses = U(R[1:]); self.passes = 8 if "32x32x16" in mn else 4
        elif mn.startswith("v_cmp"):
            self.kind = "valu"; self.defs = R[0]; self.uses = U(R[1:])
        elif mn.startswith("v_readlane") or mn.startswith("v_readfirstlane"):
            self.kind = "valu"; self.defs = R[0]; self.uses = U(R[1:])
        elif mn.startswith("v_permlane") and "swap" in mn:
            self.kind = "valu"; self.defs = U(R); self.uses = U(R)
        elif mn.startswith("v_"):
            self.kind = "valu"; self.defs = R[0]; self.uses = U(R[1:])
            if re.match(r"v_(fmac|dot2c|mac)", mn) or self.dpp: self.uses |= R[0]
            if re.match(r"v_(add|sub|subrev)_co_|v_addc|v_subb", mn): self.defs |= R[1]
            if mn.startswith("v_cndmask") and len(ops) == 3: self.uses |= {("x", "vcc")}
        elif mn.startswith("ds_read") or mn.startswith("ds_bpermute") or mn.startswith("ds_swizzle"):
            self.kind = "ds"; self.defs = R[0]; self.uses = U(R[1:])
        elif mn.startswith("ds_"):
            self.kind = "ds"; self.uses = U(R)
            if "addtid" in mn: self.ldsdma = True
        elif mn.startswith("buffer_load") or mn.startswith("global_load"):
            self.kind = "vmem"
            if re.search(r"\blds\b", mods) or "_lds_" in mn:
                self.uses = U(R) | {("x", "m0")}; self.ldsdma = True
            else:
                self.defs = R[0]; self.uses = U(R[1:])
        elif mn.startswith("buffer_store") or mn.startswith("buffer_atomic"):
            self.kind = "vmem"; self.uses = U(R); self.sdata = R[0]
        elif mn.startswith("global_store") or mn.startswith("global_atomic"):
            self.kind = "vmem"; self.uses = U(R); self.sdata = R[1]
        elif mn.startswith("s_"):
            self.kind = "salu"
            if re.match(r"s_(cmp|cbranch|branch|waitcnt|barrier|nop|sleep|endpgm|setprio|bitcmp)", mn):
                self.uses = U(R)
            else:
                self.defs = R[0] if R else set(); self.uses = U(R[1:])
                if "saveexec" in mn: self.defs = self.defs | {("x", "exec")}
        self.trans = bool(TRANS.match(mn))

    def states(self):
        if self.is_label or self.is_dir or not self.mn: return 0
        if self.mn == "s_nop": return int(self.ops[0], 0) + 1
        return 1

def required(p, c):
    need = 0
    vdefs = {r for r in p.defs if r[0] in "va"}
    sdefs = {r for r in p.defs if r[0] == "s" or r == ("x", "vcc")}
    if p.kind == "valu":
        if c.kind == "mfma" and vdefs & c.uses: need = max(need, 2)
        if c.kind == "valu":
            if p.trans and not c.trans and vdefs & (c.uses | c.defs): need = max(need, 1)
            if (c.mn.startswith("v_readlane") or c.mn.startswith("v_readfirstlane")) and vdefs & c.uses: need = max(need, 1)
            if c.dpp and vdefs & c.uses: need = max(need, 2)
            if c.mn.startswith("v_permlane") and vdefs & c.uses: need = max(need, 2)
            if sdefs & c.uses:
                need = max(need, 4 if c.mn.startswith("v_readlane") or c.mn.startswith("v_writelane") else 2)
        if c.kind == "vmem" and sdefs & c.uses: need = max(need, 5)
        if c.kind == "salu" and sdefs & c.uses: need = max(need, 1)
    if p.kind == "mfma":
        big = 12 if p.passes == 8 else 8
        if c.kind == "mfma":
            if vdefs & (c.A | c.B): need = max(need, big)
            if vdefs & c.C and not (vdefs == c.C and c.passes == p.passes): need = max(need, 10 if p.passes == 8 else 6)
            if vdefs & c.defs and not (vdefs == c.defs): need = max(need, big)
        elif c.kind in ("valu", "vmem", "ds"):
            if vdefs & (c.uses | c.defs): need = max(need, big)
            if c.kind == "valu" and p.C & c.defs: need = max(need, 7 if p.passes == 8 else 3)
    if p.kind == "salu" and ("x", "m0") in p.defs and getattr(c, "ldsdma", False): need = max(need, 1)
    if p.kind == "vmem" and hasattr(p, "sdata") and len(p.sdata) >= 3 and p.sdata & c.defs:
        need = max(need, 2 if c.kind in ("valu",) else 1)
    if p.kind == "salu" and ("x", "exec") in p.defs and c.kind == "valu" and c.dpp: need = max(need, 1)
    return need

def pad_hazards(lines):
    out = []
    hist = []
    npad = 0
    for ln in lines:
        for sub in ln.split("\n"):
            ins = Ins(sub)
            if ins.mn:
                need = 0; dist = 0
                for p in reversed(hist):
                    r = required(p, ins)
                    if r > dist: need = max(need, r - dist)
                    dist += p.states()
                    if dist >= 12: break
                if need > 0:
                    nop = Ins("s_nop %d" % (need - 1))
                    out.append("    s_nop %d" % (need - 1)); hist.append(nop); npad += 1
                hist.append(ins)
                if ins.mn in ("s_branch", "s_endpgm"): hist = []
                if len(hist) > 40: hist = hist[-20:]
                out.append("    " + sub.strip())
            else:
                out.append(sub)
    return out, npad

def interleave(main, fill, start=0, per=None):
    out = []
    n = len(main) - start
    k = 0
    for i, m in enumerate(main):
        out.append(m)
        if i >= start:
            if per is not None:
                tgt = min(len(fill), (i - start + 1) * per)
            else:
                tgt = len(fill) * (i - start + 1) // n
            while k < tgt:
                out.append(fill[k]); k += 1
    out += fill[k:]
    return out
```

```python
import sys, struct, math
from asmlib import *

NAME = "parallel_sum__ssm_conv_s4d__geglu_ffn__prompt"
DEBUG = "--stamps" in sys.argv

def f2u(x): return struct.unpack("<I", struct.pack("<f", x))[0]
def hx(x): return "0x%08x" % (x & 0xffffffff)
LOG2E = hx(f2u(1.4426950408889634))
INV2PI = hx(f2u(0.15915494309189535))
GK1 = -2.0 * math.sqrt(2.0 / math.pi) * 1.4426950408889634
GK2 = GK1 * 0.044715

WS_EPOCH = 0
WS_F3 = 0x1000
WS_ST = 0x2000
WS_CS = 0x8000
WS_F4 = 0x50000
WS_F5 = 0x70000
WS_DBG = 0x80000
WS_XT = 0x100000
WS_Z = 0x300000
WS_H = 0x500000
WS_SIZE = 0x1000000
SLOT = 41024
XOFF, WOFF, WMAT = 0, 16384, 12320
CR = 3 * SLOT
R_CP = 4640
R_BASE = CR
U_BASE = CR + 4 * R_CP
U_CP = 4224
MISC = U_BASE + 4 * U_CP
E_BASE = 2 * SLOT
E_W = 53 * 272
T_BASE = U_BASE
LNS = T_BASE + 4 * 3072
LNP = 1088
assert LNS + 8 * LNP <= 163840 and E_BASE + 4 * E_W <= U_BASE
Z_LDS = CR + 12288
PB = 0
SPIN = 20000

sX, sWG, sWU, sWD, sWS = "s[44:47]", "s[48:51]", "s[52:55]", "s[56:59]", "s[60:63]"
XCD, IDX, MT, FT, WAVE, TAG, W, G = "s64", "s65", "s66", "s67", "s68", "s69", "s70", "s71"
KS, I2, J2, CP, CNT = "s90", "s91", "s92", "s93", "s94"
WM, WN = "s88", "s89"

L = []
def e(*xs):
    for x in xs:
        if isinstance(x, (list, tuple)): e(*x)
        else: L.append(x)

def vr(a, n): return "v[%d:%d]" % (a, a + n - 1)

class VM:
    def __init__(self): self.q = []
    def op(self, lab): self.q.append(lab)
    def wait(self, lab):
        idx = max(i for i, x in enumerate(self.q) if x == lab)
        n = len(self.q) - 1 - idx
        self.q = self.q[idx + 1:]
        assert n <= 63
        return "s_waitcnt vmcnt(%d)" % n
    def all(self):
        self.q = []
        return "s_waitcnt vmcnt(0)"

STAMPS = {"A": [], "B": []}
ROLE = ["AB"]
def stamp(name):
    if not DEBUG: return []
    if ROLE[0] == "AB":
        k = {"start": 0, "fin": 60, "end": 61}[name]
    else:
        lst = STAMPS[ROLE[0]]
        if name not in lst: lst.append(name)
        k = lst.index(name) + 1
        assert k < 60
    return ["s_memtime s[96:97]", "s_waitcnt lgkmcnt(0)", "v_writelane_b32 v255, s96, %d" % k]

def tag_from(v):
    return ["v_readfirstlane_b32 %s, %s" % (TAG, v), "s_mul_i32 %s, %s, 0x9E3779B1" % (TAG, TAG),
            "s_add_u32 %s, %s, 0x7F4A7C15" % (TAG, TAG)]

lab_n = [0]
def newlab(p):
    lab_n[0] += 1
    return "L_%s_%d" % (p, lab_n[0])

def check_retry(loads, tagregs, tmp):
    top, done = newlab("chk"), newlab("ok")
    o = ["s_mov_b32 %s, %d" % (CNT, SPIN), top + ":"]
    o.append("v_xor_b32 v%d, %s, v%d" % (tmp, TAG, tagregs[0]))
    for r in tagregs[1:]:
        o.append("v_xor_b32 v%d, %s, v%d" % (tmp + 1, TAG, r))
        o.append("v_or_b32 v%d, v%d, v%d" % (tmp, tmp, tmp + 1))
    o.append("v_cmp_ne_u32 vcc, 0, v%d" % tmp)
    o.append("s_nop 1")
    o.append("s_cbranch_vccz " + done)
    o.append("s_sub_u32 %s, %s, 1" % (CNT, CNT))
    o.append("s_cbranch_scc1 " + done)
    o.append("s_sleep 1")
    o += loads
    o.append("s_waitcnt vmcnt(0)")
    o.append("s_branch " + top)
    o.append(done + ":")
    return o

def prologue():
    e("s_cmp_ge_u32 s2, 256", "s_cbranch_scc1 L_end")
    e("s_load_dwordx16 s[16:31], s[0:1], 0", "s_load_dwordx8 s[32:39], s[0:1], 64", "s_load_dwordx4 s[40:43], s[0:1], 96")
    if DEBUG:
        e("v_mov_b32 v255, 0", "s_memrealtime s[98:99]")
    e("v_lshrrev_b32 v2, 6, v0", "v_and_b32 v1, 63, v0")
    e("s_and_b32 %s, s2, 7" % XCD, "s_lshr_b32 %s, s2, 3" % IDX)
    e("v_readfirstlane_b32 %s, v2" % WAVE)
    e("s_and_b32 s74, %s, 1" % XCD, "s_lshl_b32 s74, s74, 3", "s_and_b32 s75, %s, 7" % IDX, "s_add_u32 %s, s74, s75" % MT)
    e("s_lshr_b32 s74, %s, 1" % XCD, "s_lshl_b32 s74, s74, 2", "s_lshr_b32 s75, %s, 3" % IDX, "s_add_u32 %s, s74, s75" % FT)
    e("s_lshl_b32 s74, %s, 4" % MT, "s_add_u32 %s, s74, %s" % (G, FT))
    e("s_lshl_b32 s74, %s, 5" % XCD, "s_add_u32 %s, s74, %s" % (CP, IDX))
    e("s_lshl_b32 s74, %s, 2" % XCD, "s_and_b32 s75, %s, 3" % IDX, "s_add_u32 %s, s74, s75" % I2, "s_lshr_b32 %s, %s, 2" % (J2, IDX))
    e("s_lshl_b32 s74, %s, 1" % FT, "s_add_u32 s74, s74, %s" % MT, "s_and_b32 %s, s74, 7" % KS)
    e("s_and_b32 %s, %s, 3" % (W, WAVE), "s_lshr_b32 %s, %s, 1" % (WM, W), "s_and_b32 %s, %s, 1" % (WN, W))
    e("v_lshlrev_b32 v12, 4, v1")
    e("s_mov_b32 s47, 0x20000", "s_mov_b32 s51, 0x20000", "s_mov_b32 s55, 0x20000", "s_mov_b32 s59, 0x20000", "s_mov_b32 s63, 0x20000")
    e("s_mov_b32 s50, 1409024", "s_mov_b32 s58, 1409024", "s_mov_b32 s62, %d" % WS_SIZE)
    e("s_waitcnt lgkmcnt(0)")
    e(stamp("start"))
    e("s_mov_b32 s60, s42", "s_mov_b32 s61, s43")
    e("s_cmp_eq_u32 %s, 15" % FT)
    e("s_cselect_b32 s48, s36, s32", "s_cselect_b32 s49, s37, s33")
    e("s_cselect_b32 s46, 0, 0x200000", "s_cselect_b32 s54, 0, 1409024")
    e("s_cselect_b32 s87, %s, %s" % (MT, FT))
    e("s_mov_b32 s44, s16", "s_mov_b32 s45, s17", "s_mov_b32 s52, s34", "s_mov_b32 s53, s35", "s_mov_b32 s56, s36", "s_mov_b32 s57, s37")
    e("s_cmp_ge_u32 %s, 4" % WAVE, "s_cbranch_scc1 L_B")

XA, XA2, WA, WA2 = 2, 6, 10, 11
ACC, ONEACC, FR0, FR1, ONES = 64, 160, 208, 228, 248

def cmul(dst, a, w, t):
    return ["v_pk_mul_f32 %s, %s, %s op_sel:[0,0] op_sel_hi:[0,1]" % (vr(t, 2), vr(a, 2), vr(w, 2)),
            "v_pk_fma_f32 %s, %s, %s, %s op_sel:[1,1,0] op_sel_hi:[1,0,1] neg_lo:[1,0,0]" % (vr(dst, 2), vr(a, 2), vr(w, 2), vr(t, 2))]

def wave_sum2(a, b, sa, sb):
    o = []
    for m in ("row_shr:1", "row_shr:2", "row_shr:4", "row_shr:8"):
        for r in (a, b): o.append("v_add_f32_dpp v%d, v%d, v%d %s row_mask:0xf bank_mask:0xf" % (r, r, r, m))
    for r in (a, b): o.append("v_add_f32_dpp v%d, v%d, v%d row_bcast:15 row_mask:0xa bank_mask:0xf" % (r, r, r))
    for r in (a, b): o.append("v_add_f32_dpp v%d, v%d, v%d row_bcast:31 row_mask:0xc bank_mask:0xf" % (r, r, r))
    o += ["v_readlane_b32 %s, v%d, 63" % (sa, a), "v_readlane_b32 %s, v%d, 63" % (sb, b)]
    return o

def a_p0():
    vm = VM()
    e("s_lshl_b32 s74, %s, 13" % G, "s_lshl_b32 s75, %s, 11" % W, "s_add_u32 s74, s74, s75", "v_add_u32 v13, s74, v12")
    e("global_load_dwordx4 v[16:19], v13, s[16:17]"); vm.op("ln")
    e("global_load_dwordx4 v[20:23], v13, s[16:17] offset:1024"); vm.op("ln")
    e("s_lshl_b32 s74, %s, 9" % CP, "s_lshl_b32 s75, %s, 7" % W, "s_add_u32 s74, s74, s75", "v_lshl_add_u32 v14, v1, 1, s74")
    e("buffer_load_dword v29, off, %s, 0 sc1" % sWS); vm.op("ep")
    for i in range(4):
        e("global_load_ushort v%d, v14, s[%d:%d]" % (24 + i, 18 + 2 * i, 19 + 2 * i)); vm.op("par")
    e("s_lshl_b32 s74, %s, 2" % CP, "s_lshl_b32 s75, %s, 1" % WM, "s_add_u32 s74, s74, s75", "v_mov_b32 v15, s74")
    e("global_load_ushort v28, v15, s[26:27]"); vm.op("par")
    e("v_and_b32 v30, 31, v1", "v_lshrrev_b32 v31, 5, v1")
    e("v_bfe_u32 v32, v1, 1, 3")
    e("s_lshl_b32 s74, %s, 13" % WM, "v_lshl_add_u32 v33, v30, 7, s74")
    for s in range(4):
        e("v_add_u32 v34, %d, v31" % (2 * s), "v_xor_b32 v34, v34, v32", "v_lshl_add_u32 v%d, v34, 4, v33" % (XA + s),
          "v_add_u32 v%d, %d, v%d" % (XA2 + s, 2 * SLOT, XA + s))
    e("v_bfe_u32 v34, v1, 4, 1", "v_mul_u32_u24 v34, %d, v34" % WMAT)
    e("v_bfe_u32 v35, v1, 2, 2", "v_lshl_add_u32 v35, v31, 3, v35", "v_mul_u32_u24 v35, 192, v35")
    e("v_and_b32 v36, 3, v1", "v_lshlrev_b32 v36, 3, v36", "v_add3_u32 v34, v34, v35, v36")
    e("s_mul_i32 s74, %s, 96" % WN, "s_add_u32 s74, s74, %d" % WOFF, "v_add_u32 v%d, s74, v34" % WA, "v_add_u32 v%d, %d, v%d" % (WA2, 2 * SLOT, WA))
    for i in range(4): e("v_mov_b32 v%d, 0x3f803f80" % (ONES + i))
    e(vm.wait("ln"))
    e(stamp("lnld"))
    F = 32
    for r in range(2):
        for j in range(4):
            e("v_lshlrev_b32 v%d, 16, v%d" % (F + 8 * r + 2 * j, 16 + 4 * r + j), "v_and_b32 v%d, 0xffff0000, v%d" % (F + 8 * r + 2 * j + 1, 16 + 4 * r + j))
    for r in range(2):
        b = F + 8 * r
        e("v_pk_add_f32 %s, %s, %s" % (vr(48 + 4 * r, 2), vr(b, 2), vr(b + 2, 2)), "v_pk_add_f32 %s, %s, %s" % (vr(50 + 4 * r, 2), vr(b + 4, 2), vr(b + 6, 2)))
    for r in range(2): e("v_pk_add_f32 %s, %s, %s" % (vr(48 + 4 * r, 2), vr(48 + 4 * r, 2), vr(50 + 4 * r, 2)))
    for r in range(2): e("v_add_f32 v%d, v%d, v%d" % (48 + 4 * r, 48 + 4 * r, 49 + 4 * r))
    e(wave_sum2(48, 52, "s74", "s75"))
    e("v_mov_b32 v60, 0x3b000000")
    e("v_mul_f32 v56, s74, v60", "v_mul_f32 v58, s75, v60")
    for r in range(2):
        b = F + 8 * r
        for j in range(4):
            e("v_pk_add_f32 %s, %s, %s op_sel_hi:[1,0] neg_lo:[0,1] neg_hi:[0,1]" % (vr(64 + 8 * r + 2 * j, 2), vr(b + 2 * j, 2), vr(56 + 2 * r, 2)))
    for r in range(2): e("v_pk_mul_f32 %s, %s, %s" % (vr(48 + 4 * r, 2), vr(64 + 8 * r, 2), vr(64 + 8 * r, 2)))
    for j in range(1, 4):
        for r in range(2): e("v_pk_fma_f32 %s, %s, %s, %s" % (vr(48 + 4 * r, 2), vr(64 + 8 * r + 2 * j, 2), vr(64 + 8 * r + 2 * j, 2), vr(48 + 4 * r, 2)))
    for r in range(2): e("v_add_f32 v%d, v%d, v%d" % (48 + 4 * r, 48 + 4 * r, 49 + 4 * r))
    e(wave_sum2(48, 52, "s74", "s75"))
    e("v_mul_f32 v48, s74, v60", "v_mul_f32 v49, s75, v60")
    e("v_cvt_pk_bf16_f32 v50, v56, v58")
    e("v_cvt_pk_bf16_f32 v48, v48, v49")
    e("v_lshlrev_b32 v56, 16, v50", "v_and_b32 v58, 0xffff0000, v50")
    e("v_lshlrev_b32 v49, 16, v48", "v_and_b32 v48, 0xffff0000, v48")
    e("v_add_f32 v49, %s, v49" % hx(f2u(1e-5)), "v_add_f32 v48, %s, v48" % hx(f2u(1e-5)))
    e("v_cvt_pk_bf16_f32 v48, v49, v48")
    e("v_lshlrev_b32 v49, 16, v48", "v_and_b32 v48, 0xffff0000, v48")
    e("v_sqrt_f32 v49, v49", "v_sqrt_f32 v48, v48")
    e("v_cvt_pk_bf16_f32 v51, v49, v48")
    e("v_lshlrev_b32 v49, 16, v51", "v_and_b32 v48, 0xffff0000, v51")
    e("v_rcp_f32 v60, v49", "v_rcp_f32 v62, v48")
    for r in range(2):
        b = F + 8 * r
        for j in range(4):
            e("v_pk_add_f32 %s, %s, %s op_sel_hi:[1,0] neg_lo:[0,1] neg_hi:[0,1]" % (vr(b + 2 * j, 2), vr(b + 2 * j, 2), vr(56 + 2 * r, 2)))
        for j in range(4): e("v_cvt_pk_bf16_f32 v%d, v%d, v%d" % (16 + 4 * r + j, b + 2 * j, b + 2 * j + 1))
        for j in range(4):
            e("v_lshlrev_b32 v%d, 16, v%d" % (b + 2 * j, 16 + 4 * r + j), "v_and_b32 v%d, 0xffff0000, v%d" % (b + 2 * j + 1, 16 + 4 * r + j))
        for j in range(4): e("v_pk_mul_f32 %s, %s, %s op_sel_hi:[1,0]" % (vr(b + 2 * j, 2), vr(b + 2 * j, 2), vr(60 + 2 * r, 2)))
        for j in range(4): e("v_cvt_pk_bf16_f32 v%d, v%d, v%d" % (16 + 4 * r + j, b + 2 * j, b + 2 * j + 1))
    e("s_mul_i32 s74, %s, %d" % (W, 2 * LNP), "s_add_u32 s74, s74, %d" % LNS, "v_add_u32 v13, s74, v12")
    e("ds_write_b128 v13, v[16:19]", "ds_write_b128 v13, v[20:23] offset:%d" % LNP)
    e(vm.wait("ep"))
    e(tag_from("v29"))
    e("v_xor_b32 v50, 0x80008000, v50")
    e("v_and_b32 v52, 0xffff, v50", "v_or_b32 v52, v52, v49")
    e("v_lshrrev_b32 v53, 16, v50", "v_or_b32 v53, v53, v48")
    e("v_cmp_eq_u32 vcc, 0, v1", "v_cndmask_b32 v52, v53, v52, vcc", "v_mov_b32 v53, %s" % TAG)
    e("s_lshl_b32 s74, %s, 6" % G, "s_lshl_b32 s75, %s, 4" % W, "s_add_u32 s74, s74, s75", "s_add_u32 s74, s74, %d" % WS_ST)
    e("v_lshlrev_b32 v54, 3, v1")
    e("s_mov_b64 exec, 3")
    e("buffer_store_dwordx2 v[52:53], v54, %s, s74 offen sc1" % sWS); vm.op("st")
    e("s_mov_b64 exec, -1")
    e(stamp("lndone"))
    e(vm.wait("par"))
    for i in range(5): e("v_lshlrev_b32 v%d, 16, v%d" % (24 + i, 24 + i))
    e("v_mul_f32 v28, %s, v28" % LOG2E, "v_mul_f32 v24, %s, v24" % LOG2E)
    e("v_exp_f32 v28, v28", "v_exp_f32 v24, v24")
    e("v_cvt_pk_bf16_f32 v24, v24, v28")
    e("v_and_b32 v28, 0xffff0000, v24", "v_lshlrev_b32 v24, 16, v24")
    e("v_mul_f32 v24, v24, v28", "v_mul_f32 v25, v25, v28")
    e("v_mul_f32 v24, %s, v24" % hx(f2u(-1.4426950408889634)), "v_mul_f32 v25, %s, v25" % INV2PI)
    e("v_add_f32 v28, v28, v28")
    EA = 64
    e("v_mul_f32 v%d, v26, v28" % EA, "v_mul_f32 v%d, v27, v28" % (EA + 1))
    Z1, Z8, Z256, Z16 = 30, 32, 34, 36
    for k, (z, p) in enumerate(((Z1, 1.0), (Z8, 8.0), (Z256, 256.0))):
        t = 40 + 4 * k
        e("v_mul_f32 v%d, %s, v24" % (t, hx(f2u(p))), "v_mul_f32 v%d, %s, v25" % (t + 1, hx(f2u(p))))
        e("v_rndne_f32 v%d, v%d" % (t + 2, t + 1), "v_exp_f32 v%d, v%d" % (t, t), "v_sub_f32 v%d, v%d, v%d" % (t + 1, t + 1, t + 2))
        e("v_cos_f32 v%d, v%d" % (z, t + 1), "v_sin_f32 v%d, v%d" % (z + 1, t + 1))
    for k, z in enumerate((Z1, Z8, Z256)):
        t = 40 + 4 * k
        e("v_mul_f32 v%d, v%d, v%d" % (z, z, t), "v_mul_f32 v%d, v%d, v%d" % (z + 1, z + 1, t))
    e(cmul(Z16, Z8, Z8, 52))
    e(stamp("kg_setup"))
    e("s_mul_i32 s74, %s, %d" % (W, E_W), "s_add_u32 s74, s74, %d" % E_BASE, "v_lshl_add_u32 v13, v1, 2, s74")
    def wr(row, src, neg, tmp):
        return ["v_cvt_pk_bf16_f32 v%d, v%d, %sv%d" % (tmp, src, "-" if neg else "", src + 1), "ds_write_b32 v13, v%d offset:%d" % (tmp, row * 272)]
    c1 = wr(0, EA, True, 110)
    plan = [(i, i - 1, Z1) for i in range(1, 8)] + [(8, 0, Z256), (9, 2, Z256), (10, 4, Z256), (11, 6, Z256),
            (12, 8, Z256), (13, 10, Z256), (14, 12, Z256), (15, 13, Z256), (16, 14, Z256), (17, 16, Z256), (18, 17, Z256), (19, 18, Z256), (20, 19, Z256)]
    c1 = [c1]
    for n, (d, s_, z) in enumerate(plan):
        c1.append(cmul(EA + 2 * d, EA + 2 * s_, z, 54) + wr(d, EA + 2 * d, True, 110 + (n & 1)))
    EV, OD = 38, 56
    c2 = [["v_mov_b32 v112, 0x00003f80", "ds_write_b32 v13, v112 offset:%d" % (21 * 272)] + wr(23, Z16, False, 113)]
    c3 = [wr(22, Z8, False, 114)]
    for b in range(4, 32, 2):
        c2.append(cmul(EV, Z16 if b == 4 else EV, Z16, 58) + wr(21 + b, EV, False, 112 + ((b >> 1) & 1)))
    for b in range(3, 32, 2):
        c3.append(cmul(OD, Z8 if b == 3 else OD, Z16, 60) + wr(21 + b, OD, False, 114 + ((b >> 1) & 1)))
    for i in range(max(len(c1), len(c2), len(c3))):
        grp = [c[i] for c in (c1, c2, c3) if i < len(c)]
        for k in range(max(len(x) for x in grp)):
            for x in grp:
                if k < len(x): e(x[k])
    e(stamp("kg_chain"))
    e("v_and_b32 v14, 31, v1", "v_mul_u32_u24 v14, 272, v14", "v_lshrrev_b32 v15, 5, v1", "v_lshl_add_u32 v14, v15, 4, v14", "v_add_u32 v14, s74, v14")
    e("s_waitcnt lgkmcnt(0)")
    for s in range(8):
        e("ds_read_b128 %s, v14 offset:%d" % (vr(120 + 8 * s, 4), 32 * s), "ds_read_b128 %s, v14 offset:%d" % (vr(124 + 8 * s, 4), 21 * 272 + 32 * s))
    e("s_mul_i32 s75, %s, 3072" % W, "s_add_u32 s75, s75, %d" % T_BASE)
    e("v_and_b32 v16, 31, v1")
    e("v_lshlrev_b32 v17, 5, v16", "v_lshl_add_u32 v17, v15, 4, v17", "v_add_u32 v17, s75, v17")
    e("v_cmp_eq_u32 vcc, 0, v15")
    e("v_lshlrev_b32 v18, 4, v16", "v_add_u32 v18, 1024, v18")
    e("v_lshlrev_b32 v19, 3, v16", "v_add_u32 v19, 1536, v19")
    e("v_add_u32 v20, 8, v18", "v_add_u32 v21, 256, v19")
    e("v_cndmask_b32 v18, v19, v18, vcc", "v_cndmask_b32 v19, v21, v20, vcc")
    e("v_add_u32 v18, s75, v18", "v_add_u32 v19, s75, v19")
    e("v_lshlrev_b32 v20, 2, v16", "v_lshl_add_u32 v20, v15, 9, v20", "v_add_u32 v20, s75, v20")
    for s in range(8):
        e("s_waitcnt lgkmcnt(%d)" % (14 - 2 * s))
        e("v_mfma_f32_32x32x16_bf16 v[32:47], %s, %s, %s" % (vr(120 + 8 * s, 4), vr(124 + 8 * s, 4), "0" if s == 0 else "v[32:47]"))
    e("ds_write_b128 v17, v[32:35]", "ds_write_b64 v18, v[36:37]", "ds_write_b64 v19, v[38:39]")
    for i in range(4): e("ds_write_b32 v20, v%d offset:%d" % (40 + i, 2048 + 128 * i))
    e("s_waitcnt lgkmcnt(0)")
    e(stamp("kgen"))
    return vm

def g1_reads(stage, s, buf):
    slot = stage % 3
    o = []
    for b in range(2):
        if slot < 2: o.append("ds_read_b128 %s, v%d offset:%d" % (vr(buf + 4 * b, 4), XA + s, slot * SLOT + 4096 * b))
        else: o.append("ds_read_b128 %s, v%d offset:%d" % (vr(buf + 4 * b, 4), XA2 + s, 4096 * b))
    for a in range(3):
        for q in range(2):
            off = (16 * s + 4 * q) * 192 + 32 * a
            if slot < 2: o.append("ds_read_b64_tr_b16 %s, v%d offset:%d" % (vr(buf + 8 + 4 * a + 2 * q, 2), WA, slot * SLOT + off))
            else: o.append("ds_read_b64_tr_b16 %s, v%d offset:%d" % (vr(buf + 8 + 4 * a + 2 * q, 2), WA2, off))
    return [o[0], o[2], o[3], o[1], o[4], o[5], o[6], o[7]]

def g1_mfmas(buf, first, ones):
    o = []
    for a in range(3):
        for b in range(2):
            acc = ACC + 16 * (2 * a + b)
            o.append("v_mfma_f32_32x32x16_bf16 %s, %s, %s, %s" % (vr(acc, 16), vr(buf + 8 + 4 * a, 4), vr(buf + 4 * b, 4), "0" if first else vr(acc, 16)))
        if ones:
            acc = ONEACC + 16 * a
            o.append("v_mfma_f32_32x32x16_bf16 %s, %s, %s, %s" % (vr(acc, 16), vr(ONES, 4), vr(buf + 8 + 4 * a, 4), "0" if first else vr(acc, 16)))
    return o

def wd_dma(t0, region, n0, cnt, vm, lab, vo):
    o = []
    for i in range(cnt):
        o.append("s_add_u32 m0, s76, %d" % (region + i * 1024))
        o.append("s_add_u32 s78, s77, %d" % ((16 * t0 + 8 * i) * 1024))
        o.append("buffer_load_dwordx4 v%d, %s, s78 offen lds" % (vo, sWD))
        vm.op(lab)
    return o

def wd_setup(cnt):
    return ["s_mul_i32 s76, %s, %d" % (W, cnt * 1024), "s_lshl_b32 s77, s76, 3", "s_lshl_b32 s78, %s, 7" % J2, "s_add_u32 s77, s77, s78"]

def wd_voff(v, t):
    return ["v_lshrrev_b32 v%d, 3, v1" % t, "v_bfe_u32 v%d, v1, 4, 1" % (t + 1), "v_lshlrev_b32 v%d, 2, v%d" % (t + 1, t + 1),
            "v_and_b32 v%d, 7, v1" % v, "v_xor_b32 v%d, v%d, v%d" % (v, v, t + 1), "v_lshlrev_b32 v%d, 4, v%d" % (v, v),
            "v_lshl_add_u32 v%d, v%d, 10, v%d" % (v, t, v)]

def wd_loc(t):
    if t < 20: return 2 * SLOT + t * 2048
    if t < 40: return (t - 20) * 2048
    if t < 60: return SLOT + (t - 40) * 2048
    if t < 80: return 2 * SLOT + (t - 60) * 2048
    return CR + (t - 80) * 2048

def final_xload(vm, dst, t):
    o = ["v_lshrrev_b32 v%d, 3, v0" % t, "v_and_b32 v%d, 7, v0" % (t + 1), "v_lshlrev_b32 v%d, 4, v%d" % (t + 1, t + 1),
         "v_lshl_add_u32 v%d, v%d, 10, v%d" % (t, t, t + 1),
         "s_lshl_b32 s74, %s, 16" % I2, "s_lshl_b32 s75, %s, 7" % J2, "s_add_u32 s74, s74, s75", "v_add_u32 v%d, s74, v%d" % (t, t),
         "global_load_dwordx4 %s, v%d, s[16:17]" % (vr(dst, 4), t)]
    vm.op("xf")
    return o

XF, XFA = 56, 60

def a_main(vm):
    bufs = (FR0, FR1)
    prev = None
    n = 0
    gl = []
    for st in range(8):
        e("s_barrier")
        e(stamp("st%d" % st))
        for s in range(4):
            rd = g1_reads(st, s, bufs[n & 1])
            extra = []
            if st == 1 and s == 2:
                extra = ["v_mov_b32 v44, v%d" % ONEACC, "v_mov_b32 v45, v%d" % (ONEACC + 16), "v_mov_b32 v46, v%d" % (ONEACC + 32), "v_mov_b32 v47, %s" % TAG,
                         "s_lshr_b32 s74, %s, 3" % MT, "s_lshl_b32 s74, s74, 4", "s_add_u32 s74, s74, %s" % FT, "s_lshl_b32 s74, s74, 1", "s_add_u32 s74, s74, %s" % WN,
                         "s_lshl_b32 s80, s74, 12", "s_add_u32 s80, s80, %d" % WS_CS, "s_lshl_b32 s75, %s, 9" % KS, "s_add_u32 s74, s80, s75",
                         "v_and_b32 v48, 0x1ff, v12",
                         "buffer_store_dwordx4 v[44:47], v48, %s, s74 offen sc1" % sWS]
                vm.op("cs")
            if st == 6 and s == 1:
                extra = ["v_lshrrev_b32 v49, 5, v1", "v_lshl_add_u32 v49, v49, 11, v48",
                         "v_lshrrev_b32 v50, 1, v48",
                         "s_lshl_b32 s81, %s, 10" % MT, "s_lshl_b32 s75, %s, 9" % WM, "s_add_u32 s81, s81, s75", "s_add_u32 s81, s81, %d" % WS_ST]
                gl = ["buffer_load_dwordx2 v[16:17], v50, %s, s81 offen sc1" % sWS, "buffer_load_dwordx2 v[18:19], v50, %s, s81 offen offset:256 sc1" % sWS]
                gl += ["buffer_load_dwordx4 %s, v49, %s, s80 offen offset:%d sc1" % (vr(20 + 4 * p, 4), sWS, 512 * p) for p in range(4)]
            if st == 6 and s == 2: extra = gl[:3]
            if st == 6 and s == 3: extra = gl[3:]
            if prev is None:
                e(rd)
            else:
                e(interleave(prev, rd + extra, per=3))
            e("s_waitcnt lgkmcnt(0)")
            prev = g1_mfmas(bufs[n & 1], st == 0 and s == 0, st == 0)
            n += 1
    e(prev)
    e(stamp("loopend"))
    e(vm.all())
    e(check_retry(gl, [17, 19, 23, 27, 31, 35], 36))
    e(stamp("granules"))
    e("s_mov_b32 s74, 0x07060302")
    for a in range(3):
        e("v_add_f32 v%d, v%d, v%d" % (20 + a, 20 + a, 24 + a), "v_add_f32 v%d, v%d, v%d" % (28 + a, 28 + a, 32 + a))
    for a in range(3): e("v_add_f32 v%d, v%d, v%d" % (20 + a, 20 + a, 28 + a))
    CA, CB = FR0, FR0 + 12
    for a in range(3):
        e("v_and_b32 v24, 0xffff0000, v%d" % (20 + a), "v_sub_f32 v24, v%d, v24" % (20 + a), "v_and_b32 v25, 0xffff0000, v24", "v_sub_f32 v25, v24, v25",
          "v_perm_b32 v%d, v24, v%d, s74" % (CA + 4 * a, 20 + a), "v_lshrrev_b32 v%d, 16, v25" % (CA + 4 * a + 1),
          "v_mov_b32 v%d, 0" % (CA + 4 * a + 2), "v_mov_b32 v%d, 0" % (CA + 4 * a + 3))
    KC = 36
    for b in range(2):
        sv = 16 + 2 * b
        e("v_and_b32 v%d, 0xffff, v%d" % (CB + 4 * b + 1, sv), "v_lshl_or_b32 v%d, v%d, 16, v%d" % (CB + 4 * b, sv, CB + 4 * b + 1),
          "v_mov_b32 v%d, 0" % (CB + 4 * b + 2), "v_mov_b32 v%d, 0" % (CB + 4 * b + 3))
        e("v_and_b32 v%d, 0xffff0000, v%d" % (sv, sv), "v_rcp_f32 v%d, v%d" % (sv + 1, sv))
    for a in range(3):
        for b in range(2):
            acc = ACC + 16 * (2 * a + b)
            e("v_mfma_f32_32x32x16_bf16 %s, %s, %s, %s" % (vr(acc, 16), vr(CA + 4 * a, 4), vr(CB + 4 * b, 4), vr(acc, 16)))
    for b in range(2):
        sv = 16 + 2 * b
        e("v_mul_f32 v%d, v%d, v%d" % (KC + 4 * b + 2, sv, sv), "v_mul_f32 v%d, %s, v%d" % (KC + 4 * b, hx(f2u(GK1)), sv + 1),
          "v_mul_f32 v%d, v%d, v%d" % (KC + 4 * b + 1, sv + 1, sv + 1), "v_mul_f32 v%d, v%d, v%d" % (KC + 4 * b + 1, KC + 4 * b + 1, sv + 1),
          "v_mul_f32 v%d, %s, v%d" % (KC + 4 * b + 1, hx(f2u(GK2)), KC + 4 * b + 1))
    e("s_lshl_b32 s74, %s, 1" % MT, "s_add_u32 s74, s74, %s" % WM, "s_mul_i32 s74, s74, 172", "s_mul_i32 s75, %s, 6" % FT, "s_mul_i32 s78, %s, 3" % WN,
      "s_add_u32 s75, s75, s78", "s_add_u32 s74, s74, s75", "s_lshl_b32 s74, s74, 10", "s_add_u32 s74, s74, %d" % WS_H)
    for a in range(3):
        skip = newlab("skiph")
        e("s_cmp_ge_u32 s75, %d" % (86 - a), "s_cbranch_scc1 " + skip)
        for b in range(2):
            acc = ACC + 16 * (2 * a + b)
            k = vr(KC + 4 * b, 2); s2 = vr(KC + 4 * b + 2, 2)
            Q = 160 + 16 * b; P = 168 + 16 * b; O = 192 + 4 * ((2 * a + b) % 4)
            for j in range(4): e("v_pk_mul_f32 %s, %s, %s" % (vr(Q + 2 * j, 2), vr(acc + 2 * j, 2), vr(acc + 2 * j, 2)))
            for j in range(4): e("v_pk_fma_f32 %s, %s, %s, %s op_sel:[0,1,0] op_sel_hi:[1,1,0]" % (vr(Q + 2 * j, 2), vr(Q + 2 * j, 2), k, k))
            for j in range(4): e("v_pk_mul_f32 %s, %s, %s" % (vr(Q + 2 * j, 2), vr(Q + 2 * j, 2), vr(acc + 2 * j, 2)))
            for j in range(8): e("v_exp_f32 v%d, v%d" % (Q + j, Q + j))
            for j in range(4): e("v_pk_mul_f32 %s, %s, %s" % (vr(P + 2 * j, 2), vr(acc + 2 * j, 2), vr(acc + 8 + 2 * j, 2)))
            for j in range(4): e("v_pk_fma_f32 %s, %s, %s, %s op_sel:[0,0,0] op_sel_hi:[1,0,0]" % (vr(Q + 2 * j, 2), vr(Q + 2 * j, 2), s2, s2))
            for j in range(8): e("v_rcp_f32 v%d, v%d" % (Q + j, Q + j))
            for j in range(4): e("v_pk_mul_f32 %s, %s, %s" % (vr(P + 2 * j, 2), vr(P + 2 * j, 2), vr(Q + 2 * j, 2)))
            for j in range(4): e("v_cvt_pk_bf16_f32 v%d, v%d, v%d" % (O + j, P + 2 * j, P + 2 * j + 1))
            e("s_add_u32 s78, s74, %d" % (b * 86 * 1024))
            e("buffer_store_dwordx4 %s, v12, %s, s78 offen offset:%d sc1" % (vr(O, 4), sWS, a * 1024))
        e(skip + ":")
    vm.op("h")
    e(stamp("gelu"))
    e("s_barrier")
    e(stamp("b8"))
    WDV = 13
    e(wd_voff(WDV, 14), wd_setup(10))
    e(wd_dma(40, SLOT, 0, 10, vm, "1c", WDV))
    WB = 2
    e("v_bfe_u32 v14, v1, 2, 2", "v_lshrrev_b32 v15, 5, v1", "v_lshl_add_u32 v15, v15, 2, v14")
    e("v_lshrrev_b32 v14, 1, v14", "v_lshlrev_b32 v14, 2, v14")
    e("v_bfe_u32 v16, v1, 4, 1", "v_lshlrev_b32 v16, 1, v16", "v_bfe_u32 v17, v1, 1, 1", "v_add_u32 v16, v16, v17", "v_xor_b32 v16, v16, v14")
    e("v_lshlrev_b32 v16, 4, v16", "v_lshl_add_u32 v16, v15, 7, v16", "v_and_b32 v17, 1, v1", "v_lshl_add_u32 v16, v17, 3, v16")
    e("s_lshl_b32 s74, %s, 11" % WN, "v_add_u32 v%d, s74, v16" % WB, "v_xor_b32 v%d, 64, v%d" % (WB + 1, WB))
    for k in (1, 2):
        e("v_add_u32 v%d, %d, v%d" % (WB + 2 * k, 65536 * k, WB), "v_add_u32 v%d, %d, v%d" % (WB + 2 * k + 1, 65536 * k, WB + 1))
    def wd_reads(jj, dst):
        o = []
        for dt in range(2):
            for q in range(2):
                a = wd_loc(2 * jj) + 1024 * q
                o.append("ds_read_b64_tr_b16 %s, v%d offset:%d" % (vr(dst + 4 * dt + 2 * q, 2), WB + 2 * (a >> 16) + dt, a & 0xffff))
        return o
    PRE = 96
    for jj in range(10): e(wd_reads(jj, PRE + 8 * jj))
    e("s_waitcnt lgkmcnt(0)")
    e("s_barrier")
    e(vm.wait("h"))
    e(stamp("hack"))
    e("s_lshl_b32 s74, %s, 1" % MT, "s_add_u32 s74, s74, %s" % WM, "s_lshl_b32 s74, s74, 5", "s_lshl_b32 s75, %s, 1" % FT, "s_add_u32 s74, s74, s75",
      "s_add_u32 s74, s74, %s" % WN, "s_lshl_b32 s74, s74, 7", "s_add_u32 s74, s74, %d" % WS_F4, "v_mov_b32 v14, %s" % TAG)
    e("s_mov_b64 exec, 1", "buffer_store_dword v14, off, %s, s74 sc1" % sWS, "s_mov_b64 exec, -1"); vm.op("f4")
    e(wd_dma(60, 2 * SLOT, 0, 10, vm, "2a", WDV))
    e(final_xload(vm, XF, XFA))
    e("v_min_u32 v14, 28, v1", "v_lshlrev_b32 v14, 7, v14", "s_lshl_b32 s82, %s, 12" % I2, "s_add_u32 s82, s82, %d" % WS_F4)
    pl = ["buffer_load_dword v15, v14, %s, s82 offen sc1" % sWS]
    e(pl, vm.all())
    e(check_retry(pl, [15], 16))
    e(stamp("hpoll"))
    A2 = 64; HB = 176; NH = 12; WF = (224, 232)
    e("s_lshl_b32 s74, %s, 1" % I2, "s_add_u32 s74, s74, %s" % WM, "s_mul_i32 s74, s74, 86", "s_add_u32 s74, s74, %s" % WN, "s_lshl_b32 s83, s74, 10",
      "s_add_u32 s83, s83, %d" % WS_H)
    def hload(jj):
        vm.op("h%d" % jj)
        o = []
        if jj % 2 == 0 and jj > 0: o.append("s_add_u32 s83, s83, 4096")
        o.append("buffer_load_dwordx4 %s, v12, %s, s83 offen offset:%d sc1" % (vr(HB + 4 * (jj % NH), 4), sWS, 2048 * (jj & 1)))
        return o
    PD = NH - 1
    for jj in range(PD): e(hload(jj))
    for jj in range(43):
        if jj == 20:
            e("s_barrier"); e(stamp("b9"))
            e(wd_reads(jj, WF[jj & 1]))
        if jj == 40:
            e("s_barrier"); e(stamp("b10"))
            e(wd_reads(jj, WF[jj & 1]))
        wf = PRE + 8 * jj if jj < 10 else WF[jj & 1]
        e(vm.wait("h%d" % jj).replace("s_waitcnt", "s_waitcnt lgkmcnt(0)") if jj >= 10 else vm.wait("h%d" % jj))
        hb = vr(HB + 4 * (jj % NH), 4)
        e("v_mfma_f32_32x32x16_bf16 %s, %s, %s, %s" % (vr(A2, 16), vr(wf, 4), hb, "0" if jj == 0 else vr(A2, 16)))
        if jj + 1 < 43 and jj + 1 >= 10 and jj + 1 not in (20, 40): e(wd_reads(jj + 1, WF[(jj + 1) & 1]))
        if jj + PD < 43: e(hload(jj + PD))
        e("v_mfma_f32_32x32x16_bf16 %s, %s, %s, %s" % (vr(A2 + 16, 16), vr(wf + 4, 4), hb, "0" if jj == 0 else vr(A2 + 16, 16)))
    e(stamp("g2end"))
    e("v_bfe_u32 v14, v1, 2, 2", "v_lshrrev_b32 v15, 5, v1", "v_lshl_add_u32 v14, v15, 2, v14", "v_lshlrev_b32 v14, 7, v14")
    e("v_bfe_u32 v16, v1, 4, 1", "v_lshlrev_b32 v16, 5, v16", "v_and_b32 v17, 3, v1", "v_lshl_add_u32 v16, v17, 3, v16", "v_add_u32 v14, v14, v16")
    e("s_lshl_b32 s74, %s, 12" % WN, "s_lshl_b32 s75, %s, 6" % WM, "s_add_u32 s74, s74, s75", "s_add_u32 s74, s74, %d" % Z_LDS, "v_add_u32 v14, s74, v14")
    for jj in range(4): e("ds_read_b64_tr_b16 %s, v14 offset:%d" % (vr(20 + 2 * jj, 2), 1024 * jj))
    e("v_and_b32 v16, 31, v1", "v_mul_u32_u24 v16, 272, v16", "v_lshl_add_u32 v16, v15, 4, v16")
    e("s_mul_i32 s74, %s, %d" % (WN, 64 * 272), "s_mul_i32 s75, %s, %d" % (WM, 32 * 272), "s_add_u32 s74, s74, s75", "s_add_u32 s74, s74, %d" % PB, "v_add_u32 v16, s74, v16")
    e("s_waitcnt lgkmcnt(0)")
    for k in range(8):
        e("v_lshlrev_b32 v%d, 16, v%d" % (32 + 2 * k, 20 + k), "v_and_b32 v%d, 0xffff0000, v%d" % (33 + 2 * k, 20 + k))
    d1, dn = newlab("z1"), newlab("zd")
    e("s_cmp_eq_u32 %s, 1" % WN, "s_cbranch_scc1 " + d1)
    for k in range(8): e("v_pk_add_f32 %s, %s, %s" % (vr(A2 + 2 * k, 2), vr(A2 + 2 * k, 2), vr(32 + 2 * k, 2)))
    e("s_branch " + dn, d1 + ":")
    for k in range(8): e("v_pk_add_f32 %s, %s, %s" % (vr(A2 + 16 + 2 * k, 2), vr(A2 + 16 + 2 * k, 2), vr(32 + 2 * k, 2)))
    e(dn + ":")
    for dt in range(2):
        for jj in range(4): e("ds_write_b128 v16, %s offset:%d" % (vr(A2 + 16 * dt + 4 * jj, 4), 128 * dt + 32 * jj))
    e("s_waitcnt lgkmcnt(0)")
    e("s_branch L_final")

VX0, VX1, VW = 2, 3, 4
def stage_dma(st, vm):
    slot = (st % 3) * SLOT
    o = ["s_lshl_b32 s78, %s, 7" % KS, "s_add_u32 s78, s78, s84", "s_mul_i32 s79, %s, %d" % (KS, 64 * 2752), "s_add_u32 s79, s79, s85",
         "s_add_u32 %s, %s, 1" % (KS, KS), "s_and_b32 %s, %s, 7" % (KS, KS)]
    for i in range(4):
        o.append("s_add_u32 m0, s80, %d" % (slot + 1024 * i))
        if i: o.append("s_add_u32 s78, s78, 8192")
        o.append("buffer_load_dwordx4 v%d, %s, s78 offen lds" % (VX0 + (i & 1), sX)); vm.op("st%d" % st)
    for i in range(3):
        for m, srd in enumerate((sWG, sWU)):
            o.append("s_add_u32 m0, s81, %d" % (slot + WOFF + m * WMAT + 1024 * i))
            o.append("buffer_load_dwordx4 v%d, %s, s79 offen lds" % (VW + i, srd)); vm.op("st%d" % st)
    return o

def b_path():
    vm = VM()
    e("L_B:")
    e("buffer_load_dword v29, off, %s, 0 sc1" % sWS); vm.op("ep")
    e("s_lshl_b32 s74, %s, 2" % CP, "s_lshl_b32 s75, %s, 1" % WM, "s_add_u32 s74, s74, s75", "v_mov_b32 v15, s74")
    e("global_load_ushort v28, v15, s[28:29]"); vm.op("dsk")
    e("v_lshrrev_b32 v16, 3, v1", "v_lshrrev_b32 v17, 4, v1", "v_and_b32 v18, 7, v1", "v_xor_b32 v17, v17, v18", "v_lshlrev_b32 v17, 4, v17",
      "v_lshl_add_u32 v%d, v16, 10, v17" % VX0, "v_xor_b32 v%d, 64, v%d" % (VX1, VX0))
    for i in range(3):
        e("v_add_u32 v16, %d, v1" % (64 * i), "v_mul_u32_u24 v17, 5462, v16", "v_lshrrev_b32 v17, 16, v17", "v_mul_u32_u24 v18, 12, v17",
          "v_sub_u32 v18, v16, v18", "v_mul_u32_u24 v17, 2752, v17", "v_lshl_add_u32 v%d, v18, 4, v17" % (VW + i))
    e("s_lshl_b32 s80, %s, 12" % W, "s_mul_i32 s81, %s, 3072" % W)
    e("s_lshl_b32 s84, %s, 17" % MT, "s_lshl_b32 s74, %s, 15" % W, "s_add_u32 s84, s84, s74")
    e("s_mul_i32 s85, s87, 192", "s_mul_i32 s74, %s, %d" % (W, 16 * 2752), "s_add_u32 s85, s85, s74")
    e(stage_dma(0, vm), stage_dma(1, vm))
    WDV = 7
    e(wd_voff(WDV, 16))
    e(stamp("iss1"), vm.wait("st0"))
    e(tag_from("v29"))
    e(stamp("st0land"))
    e("s_barrier")
    e("v_bfe_u32 v16, v1, 2, 2", "v_mul_u32_u24 v16, %d, v16" % LNP, "v_lshrrev_b32 v17, 4, v1", "v_lshl_add_u32 v16, v17, 5, v16",
      "v_and_b32 v17, 3, v1", "v_lshl_add_u32 v16, v17, 3, v16", "s_lshl_b32 s74, %s, 8" % W, "s_add_u32 s74, s74, %d" % LNS, "v_add_u32 v16, s74, v16")
    for rnd in range(2):
        for q in range(2): e("ds_read_b64_tr_b16 %s, v16 offset:%d" % (vr(20 + 4 * rnd + 2 * q, 2), 4 * q * LNP + 128 * rnd))
    e(stage_dma(2, vm))
    e("s_lshl_b32 s74, %s, 13" % G, "s_lshl_b32 s75, %s, 11" % W, "s_add_u32 s74, s74, s75", "s_add_u32 s74, s74, %d" % WS_XT)
    e("s_waitcnt lgkmcnt(0)")
    for rnd in range(2):
        e("buffer_store_dwordx4 %s, v12, %s, s74 offen offset:%d sc1" % (vr(20 + 4 * rnd, 4), sWS, 1024 * rnd)); vm.op("xt")
    e(stamp("iss2"), vm.wait("st1"), stamp("land1"))
    e("s_barrier")
    e(stage_dma(3, vm))
    e("s_mul_i32 s74, %s, 6144" % WM, "s_add_u32 s74, s74, %d" % T_BASE)
    e("v_lshl_add_u32 v16, v1, 3, s74", "v_add_u32 v17, s74, v12", "v_add_u32 v18, -4, v17")
    for t in range(2):
        b = 32 + 16 * t; o = 3072 * t
        e("ds_read_b64 %s, v16 offset:%d" % (vr(b, 2), o + 2048), "ds_read_b32 v%d, v16 offset:%d" % (b + 2, o + 2056))
        e("ds_read_b32 v%d, v16 offset:%d" % (b + 3, o + 1020))
        e("ds_read_b64 %s, v16 offset:%d" % (vr(b + 4, 2), o + 1536), "ds_read_b32 v%d, v16 offset:%d" % (b + 6, o + 1544))
        e("ds_read_b32 v%d, v18 offset:%d" % (b + 7, o))
        e("ds_read_b64 %s, v16 offset:%d" % (vr(b + 8, 2), o + 1024), "ds_read_b32 v%d, v16 offset:%d" % (b + 10, o + 1032))
        e("ds_read_b128 %s, v17 offset:%d" % (vr(b + 12, 4), o))
        if t == 0: e("s_waitcnt lgkmcnt(0)")
    e("s_cmp_eq_u32 %s, 1" % WN, "s_cselect_b64 s[72:73], -1, 0")
    e("s_mul_i32 s74, %s, %d" % (W, R_CP), "s_add_u32 s74, s74, %d" % R_BASE)
    e("v_sub_u32 v19, 63, v1")
    e("v_lshl_add_u32 v20, v19, 5, s74", "v_lshl_add_u32 v21, v19, 4, s74", "v_lshl_add_u32 v22, v19, 3, s74")
    e("v_cmp_eq_u32 vcc, 0, v1", "v_lshlrev_b32 v28, 16, v28", "v_cndmask_b32 v28, 0, v28, vcc")
    e("s_waitcnt lgkmcnt(0)")
    for k in (0, 1, 2, 3, 4, 5, 6, 7, 8, 9, 10, 12, 13, 14, 15): e("v_add_f32 v%d, v%d, v%d" % (32 + k, 32 + k, 48 + k))
    e("v_add_f32 v44, v44, v28")
    e("v_cndmask_b32 v35, v40, v35, vcc")
    e("v_cndmask_b32 v39, v39, 0, vcc")
    S = "s[72:73]"
    cv = lambda d, lo, hi: "v_cvt_pk_bf16_f32 v%d, v%d, v%d" % (d, lo, hi)
    e("v_cndmask_b32 v48, v33, v34, %s" % S, "v_cndmask_b32 v49, v32, v33, %s" % S)
    e(cv(64, 34, 34), cv(65, 34, 48), cv(66, 33, 33), cv(67, 33, 33), cv(68, 33, 33), cv(69, 49, 32), cv(70, 32, 32), cv(71, 32, 32))
    e("v_cndmask_b32 v48, v37, v38, %s" % S, "v_cndmask_b32 v49, v36, v37, %s" % S)
    e(cv(72, 38, 48), cv(73, 37, 37), cv(74, 49, 36), cv(75, 36, 36))
    e("v_cndmask_b32 v48, v41, v42, %s" % S, "v_cndmask_b32 v49, v40, v41, %s" % S, "v_cndmask_b32 v50, v35, v40, %s" % S)
    e(cv(76, 48, 49), cv(77, 40, 50))
    e("v_cndmask_b32 v48, v46, v47, %s" % S, "v_cndmask_b32 v49, v45, v46, %s" % S, "v_cndmask_b32 v50, v44, v45, %s" % S, "v_cndmask_b32 v51, v39, v44, %s" % S)
    e(cv(78, 48, 49), cv(79, 50, 51))
    e("v_mov_b32 v80, 0", "v_mov_b32 v81, 0")
    e("ds_write_b128 v20, v[64:67]", "ds_write_b128 v20, v[68:71] offset:16", "ds_write_b128 v21, v[72:75] offset:2048",
      "ds_write_b64 v22, v[76:77] offset:3072", "ds_write_b64 v22, v[78:79] offset:3584", "ds_write_b64 v22, v[80:81] offset:4096")
    e(stamp("iss3"), vm.wait("st2").replace("s_waitcnt", "s_waitcnt lgkmcnt(0)"), stamp("land2"))
    e("s_barrier")
    e(stage_dma(4, vm), stamp("iss4"), vm.wait("st3"), stamp("land3"), "s_barrier")
    e(stage_dma(5, vm))
    e("s_lshl_b32 s74, %s, 2" % G, "s_add_u32 s74, s74, %d" % WS_F3, "s_cmp_eq_u32 %s, 0" % W, "s_cselect_b32 s74, s74, 0x7ffffff0", "v_mov_b32 v16, %s" % TAG)
    e("s_mov_b64 exec, 1", "buffer_store_dword v16, off, %s, s74 sc1" % sWS, "s_mov_b64 exec, -1"); vm.op("f3s")
    e(stamp("iss5"), vm.wait("st4"), stamp("land4"), "s_barrier")
    e(stage_dma(6, vm), stamp("iss6"), vm.wait("st5"), stamp("land5"), "s_barrier")
    e(stage_dma(7, vm), stamp("iss7"), vm.wait("st6"), stamp("land6"), "s_barrier")
    e("s_mov_b32 s82, %d" % WS_F3)
    pl = ["buffer_load_dwordx4 v[20:23], v12, %s, s82 offen sc1" % sWS]
    e(pl); vm.op("f3")
    e(wd_setup(10), wd_dma(0, 2 * SLOT, 0, 10, vm, "1a", WDV))
    e(stamp("iss8"), vm.wait("st7"), stamp("land7"), "s_barrier")
    e(stamp("b7"))
    e(vm.wait("f3"))
    e(check_retry(pl, [20, 21, 22, 23], 24))
    e(stamp("f3ok"))
    sk = newlab("ep")
    e("s_or_b32 s74, s2, %s" % W, "s_cmp_lg_u32 s74, 0", "s_cbranch_scc1 " + sk, "v_mov_b32 v16, %s" % TAG)
    e("s_mov_b64 exec, 1", "buffer_store_dword v16, off, %s, 0 sc1" % sWS, "s_mov_b64 exec, -1")
    e(sk + ":")
    e("v_lshrrev_b32 v16, 1, v1", "v_and_b32 v17, 1, v1", "v_lshlrev_b32 v18, 13, v16", "v_lshl_add_u32 v18, v17, 4, v18")
    e("s_lshl_b32 s74, %s, 19" % W, "s_lshl_b32 s75, %s, 5" % CP, "s_add_u32 s74, s74, s75", "s_add_u32 s74, s74, %d" % WS_XT, "s_add_u32 s75, s74, 0x40000")
    e("buffer_load_dwordx4 v[20:23], v18, %s, s74 offen sc1" % sWS); vm.op("u")
    e("buffer_load_dwordx4 v[24:27], v18, %s, s75 offen sc1" % sWS); vm.op("u")
    e(wd_dma(20, 0, 0, 10, vm, "1b", WDV))
    e("v_mul_u32_u24 v17, %d, v17" % (2 * U_CP), "v_lshl_add_u32 v17, v16, 4, v17", "s_lshl_b32 s74, %s, 10" % W, "s_add_u32 s74, s74, %d" % U_BASE, "v_add_u32 v17, s74, v17")
    e("s_mul_i32 s74, %s, %d" % (W, U_CP), "s_add_u32 s74, s74, %d" % U_BASE, "v_min_u32 v19, 14, v1", "v_lshl_add_u32 v19, v19, 2, s74", "v_mov_b32 v30, 0")
    e("ds_write_b32 v19, v30")
    sk = newlab("zp")
    e("s_cmp_lg_u32 %s, 0" % WN, "s_cbranch_scc1 " + sk, "ds_write_b32 v19, v30 offset:4", sk + ":")
    e(vm.wait("u"))
    for k in range(2):
        b = 20 + 4 * k
        e("ds_write_b128 v17, %s offset:%d" % (vr(b, 4), 64 + 512 * k))
        e("ds_write2_b32 v17, v%d, v%d offset0:%d offset1:%d" % (b, b + 1, 0, 1) if False else "ds_write_b32 v17, v%d offset:%d" % (b, U_CP + 60 + 512 * k))
        for d in range(1, 4): e("ds_write_b32 v17, v%d offset:%d" % (b + d, U_CP + 60 + 4 * d + 512 * k))
    VK, VU = 8, 9
    e("v_and_b32 v16, 1, v1", "v_mul_u32_u24 v16, %d, v16" % R_CP, "v_bfe_u32 v18, v1, 1, 3", "v_sub_u32 v18, 7, v18", "v_lshl_add_u32 v16, v18, 6, v16",
      "v_lshrrev_b32 v18, 4, v1", "v_lshl_add_u32 v16, v18, 4, v16", "s_mul_i32 s74, %s, %d" % (WM, 2 * R_CP), "s_add_u32 s74, s74, %d" % R_BASE, "v_add_u32 v%d, s74, v16" % VK)
    e("v_bfe_u32 v16, v1, 2, 2", "v_add_u32 v16, v16, v18", "v_lshlrev_b32 v16, 4, v16", "v_and_b32 v19, 3, v1", "v_lshl_add_u32 v16, v19, 2, v16",
      "v_and_b32 v19, 1, v1", "v_mul_u32_u24 v19, %d, v19" % (U_CP - 4), "v_sub_u32 v16, v16, v19",
      "s_mul_i32 s74, %s, %d" % (WM, 2 * U_CP), "s_add_u32 s74, s74, %d" % (U_BASE + U_CP), "v_add_u32 v%d, s74, v16" % VU)
    e(vm.wait("1a").replace("s_waitcnt", "s_waitcnt lgkmcnt(0)") if "1a" in vm.q else "s_waitcnt lgkmcnt(0)")
    e(stamp("uwr"))
    e("s_barrier")
    e(stamp("b8"))
    CA = 32; FB = (64, 128)
    def conv(tiles, lab):
        nf = max(tiles) + 1
        def reads(rho, buf):
            o = []
            for i in range(nf):
                o.append("ds_read_b128 %s, v%d offset:%d" % (vr(buf + 4 * i, 4), VK, 512 * (7 - i) + 64 * rho))
                o.append("ds_read_b64 %s, v%d offset:%d" % (vr(buf + 32 + 4 * i, 2), VU, 512 * i + 64 * rho))
                o.append("ds_read_b64 %s, v%d offset:%d" % (vr(buf + 34 + 4 * i, 2), VU, 512 * i + 64 * rho + 8))
            return o
        e(reads(0, FB[0]))
        for rho in range(8):
            buf = FB[rho & 1]
            mf = []
            pairs = sorted([(max(sg, t - sg), k, sg) for k, t in enumerate(tiles) for sg in range(t + 1)])
            seen = set()
            for _, k, sg in pairs:
                t = tiles[k]
                first = rho == 0 and k not in seen
                seen.add(k)
                mf.append("v_mfma_f32_16x16x32_bf16 %s, %s, %s, %s" % (vr(CA + 4 * k, 4), vr(buf + 4 * (t - sg), 4), vr(buf + 32 + 4 * sg, 4), "0" if first else vr(CA + 4 * k, 4)))
            e("s_waitcnt lgkmcnt(0)")
            e(interleave(mf, reads(rho + 1, FB[(rho + 1) & 1]) if rho < 7 else [], per=2))
            if rho == 0:
                e("s_waitcnt vmcnt(0)", "s_barrier")
        for k, t in enumerate(tiles):
            e("s_mov_b32 s%d, %d" % (76 + k, t * 4 * 65536))
    e("s_cmp_eq_u32 %s, 1" % WN, "s_cbranch_scc1 L_conv1")
    conv([0, 3, 4, 7], "a")
    e("s_branch L_convd", "L_conv1:")
    conv([1, 2, 5, 6], "b")
    e("L_convd:")
    vm.all()
    e(stamp("conv"))
    e("v_lshrrev_b32 v16, 4, v1", "v_lshlrev_b32 v16, 16, v16", "v_and_b32 v17, 1, v1", "v_lshl_add_u32 v16, v17, 6, v16", "v_bfe_u32 v18, v1, 1, 3", "v_lshl_add_u32 v16, v18, 3, v16")
    e("s_lshl_b32 s74, %s, 1" % CP, "s_add_u32 s74, s74, %s" % WM, "s_lshl_b32 s75, s74, 7", "s_add_u32 s75, s75, %d" % WS_Z)
    e("v_cmp_eq_u32 vcc, 1, v17")
    for k in range(4):
        a = CA + 4 * k; o = 48 + 4 * k
        e(cv(o, a, a + 1), cv(o + 1, a + 2, a + 3))
        e("v_cndmask_b32 v%d, v%d, v%d, vcc" % (o + 2, o + 1, o))
        e("v_mov_b32_dpp v%d, v%d quad_perm:[1,0,3,2] row_mask:0xf bank_mask:0xf" % (o + 3, o + 2))
        e("v_cndmask_b32 v%d, v%d, v%d, vcc" % (o, o, o + 3), "v_cndmask_b32 v%d, v%d, v%d, vcc" % (o + 1, o + 3, o + 1))
        e("s_add_u32 s%d, s%d, s75" % (76 + k, 76 + k))
        e("buffer_store_dwordx2 %s, v16, %s, s%d offen sc1" % (vr(o, 2), sWS, 76 + k)); vm.op("z")
    e(vm.all())
    e("s_lshl_b32 s75, %s, 9" % WN, "s_add_u32 s74, s74, s75", "s_lshl_b32 s74, s74, 6", "s_add_u32 s74, s74, %d" % WS_F5, "v_mov_b32 v16, %s" % TAG)
    e("s_mov_b64 exec, 1", "buffer_store_dword v16, off, %s, s74 sc1" % sWS, "s_mov_b64 exec, -1"); vm.op("f5")
    e(stamp("zflag"))
    e("s_barrier")
    e(stamp("b9"))
    e(wd_setup(3), wd_dma(80, CR, 0, 3, vm, "2b", WDV))
    e(final_xload(vm, XF, XFA))
    e("s_lshr_b32 s74, %s, 2" % I2, "s_add_u32 s74, s74, 1", "s_lshr_b32 s74, s74, 1", "s_and_b32 s74, s74, 1", "s_lshl_b32 s74, s74, 15",
      "s_lshl_b32 s75, %s, 12" % J2, "s_add_u32 s82, s74, s75", "s_add_u32 s82, s82, %d" % WS_F5, "v_lshlrev_b32 v14, 6, v1")
    pl = ["buffer_load_dword v15, v14, %s, s82 offen sc1" % sWS]
    e(pl, vm.all())
    e(check_retry(pl, [15], 16))
    e(stamp("zpoll"))
    e("s_lshl_b32 s74, %s, 16" % I2, "s_lshl_b32 s75, %s, 13" % J2, "s_add_u32 s74, s74, s75", "s_lshl_b32 s75, %s, 11" % W, "s_add_u32 s74, s74, s75",
      "s_add_u32 s74, s74, %d" % WS_Z, "s_add_u32 m0, s75, %d" % Z_LDS)
    e("buffer_load_dwordx4 v12, %s, s74 offen sc1 lds" % sWS, "buffer_load_dwordx4 v12, %s, s74 offen offset:1024 sc1 lds" % sWS)
    e(vm.all())
    e(stamp("zland"))
    e("s_barrier")

def final():
    e("L_final:")
    e("s_barrier")
    e(stamp("fin"))
    e("v_lshrrev_b32 v14, 3, v0", "v_mul_u32_u24 v14, 272, v14", "v_and_b32 v15, 7, v0", "v_lshl_add_u32 v14, v15, 5, v14")
    e("ds_read_b128 v[16:19], v14 offset:%d" % PB, "ds_read_b128 v[20:23], v14 offset:%d" % (PB + 16),
      "ds_read_b128 v[24:27], v14 offset:%d" % (PB + 64 * 272), "ds_read_b128 v[28:31], v14 offset:%d" % (PB + 64 * 272 + 16))
    for j in range(4): e("v_lshlrev_b32 v%d, 16, v%d" % (32 + 2 * j, XF + j), "v_and_b32 v%d, 0xffff0000, v%d" % (33 + 2 * j, XF + j))
    e("s_waitcnt lgkmcnt(0)")
    for j in range(4): e("v_pk_add_f32 %s, %s, %s" % (vr(16 + 2 * j, 2), vr(16 + 2 * j, 2), vr(24 + 2 * j, 2)))
    for j in range(4): e("v_pk_add_f32 %s, %s, %s" % (vr(16 + 2 * j, 2), vr(16 + 2 * j, 2), vr(32 + 2 * j, 2)))
    for j in range(4): e("v_cvt_pk_bf16_f32 v%d, v%d, v%d" % (24 + j, 16 + 2 * j, 17 + 2 * j))
    e("global_store_dwordx4 v%d, v[24:27], s[38:39]" % XFA)
    if DEBUG:
        e("s_waitcnt vmcnt(0)")
        e(stamp("end"))
        e("s_memrealtime s[96:97]", "s_waitcnt lgkmcnt(0)", "v_writelane_b32 v255, s96, 63", "v_writelane_b32 v255, s98, 62")
        e("s_lshl_b32 s74, s2, 11", "s_add_u32 s74, s74, %d" % WS_DBG, "v_lshlrev_b32 v14, 2, v0")
        e("buffer_store_dword v255, v14, %s, s74 offen" % sWS)
        if "--dbgout" in sys.argv:
            e("s_not_b32 s98, s98", "v_mov_b32 v20, s98", "v_mov_b32 v21, s96", "v_mov_b32 v22, 0")
            e("s_cmp_lg_u32 %s, 0" % WAVE, "s_cbranch_scc1 L_end")
            e("s_mov_b64 exec, 1")
            e("global_atomic_umax v22, v20, s[40:41]", "global_atomic_umax v22, v21, s[40:41] offset:4")
            e("s_mov_b64 exec, -1")
            e("s_cmp_lg_u32 s2, 40", "s_cbranch_scc1 L_end")
            sel = ["lnld", "kgen", "st0", "st2", "st6", "st7", "loopend", "gelu", "hack", "hpoll", "b9", "b10"]
            e("v_readlane_b32 s74, v255, 0")
            for n, nm in enumerate(sel + ["fin", "end"]):
                k = {"fin": 60, "end": 61}.get(nm) or STAMPS["A"].index(nm) + 1
                e("v_readlane_b32 s75, v255, %d" % k, "s_sub_u32 s75, s75, s74", "v_mov_b32 v20, s75", "s_mov_b64 exec, 1",
                  "global_store_dword v22, v20, s[40:41] offset:%d" % (8 + 4 * n), "s_mov_b64 exec, -1")
    e("L_end:", "s_endpgm")

prologue()
ROLE[0] = "A"
vm = a_p0()
a_main(vm)
ROLE[0] = "B"
b_path()
ROLE[0] = "AB"
final()
body, npad = pad_hazards(L)

hdr = open("cdna_kernels/%s.s.ref" % NAME).read().split("; Override launch")[0]
out = hdr + "; @launch grid=(256,1,1) block=(512,1,1) lds=163840\n"
out += '.amdgcn_target "amdgcn-amd-amdhsa--gfx950"\n.text\n.globl %s_kernel\n.p2align 8\n.type %s_kernel,@function\n%s_kernel:\n' % (NAME, NAME, NAME)
out += "\n".join(body) + "\n"
out += '''.section .rodata,"a"
.p2align 6
.amdhsa_kernel %s_kernel
  .amdhsa_next_free_vgpr 256
  .amdhsa_next_free_sgpr 102
  .amdhsa_accum_offset 256
  .amdhsa_group_segment_fixed_size 0
  .amdhsa_kernarg_size 112
  .amdhsa_user_sgpr_count 2
  .amdhsa_user_sgpr_kernarg_segment_ptr 1
  .amdhsa_system_sgpr_workgroup_id_x 1
.end_amdhsa_kernel
''' % NAME
path = [a for a in sys.argv[1:] if not a.startswith("--")]
path = path[0] if path else "cdna_kernels/%s.s" % NAME
open(path, "w").write(out)
print("wrote", path, "lines", len(body), "nops inserted", npad)
if DEBUG:
    import json
    json.dump(STAMPS, open(path[:-2] + ".json", "w"))
```

```python
import sys, struct, math
from asmlib import *

NAME = "parallel_sum__ssm_conv_s4d__geglu_ffn__prompt"
DEBUG = "--stamps" in sys.argv

def f2u(x): return struct.unpack("<I", struct.pack("<f", x))[0]
def hx(x): return "0x%08x" % (x & 0xffffffff)
LOG2E = hx(f2u(1.4426950408889634))
INV2PI = hx(f2u(0.15915494309189535))
GK1 = -2.0 * math.sqrt(2.0 / math.pi) * 1.4426950408889634
GK2 = GK1 * 0.044715

WS_EPOCH = 0
WS_F3 = 0x1000
WS_ST = 0x2000
WS_CS = 0x8000
WS_F4 = 0x50000
WS_F5 = 0x70000
WS_DBG = 0x80000
WS_XT = 0x100000
WS_Z = 0x300000
WS_H = 0x500000
WS_SIZE = 0x1000000
SLOT = 41024
XOFF, WOFF, WMAT = 0, 16384, 12320
CR = 3 * SLOT
R_CP = 4640
R_BASE = CR
U_BASE = CR + 4 * R_CP
U_CP = 4224
MISC = U_BASE + 4 * U_CP
E_BASE = 2 * SLOT
E_W = 53 * 272
T_BASE = U_BASE
LNS = T_BASE + 4 * 3072
LNP = 1088
assert LNS + 8 * LNP <= 163840 and E_BASE + 4 * E_W <= U_BASE
Z_LDS = CR + 12288
PB = 0
SPIN = 20000

sX, sWG, sWU, sWD, sWS = "s[44:47]", "s[48:51]", "s[52:55]", "s[56:59]", "s[60:63]"
XCD, IDX, MT, FT, WAVE, TAG, W, G = "s64", "s65", "s66", "s67", "s68", "s69", "s70", "s71"
KS, I2, J2, CP, CNT = "s90", "s91", "s92", "s93", "s94"
WM, WN = "s88", "s89"

L = []
def e(*xs):
    for x in xs:
        if isinstance(x, (list, tuple)): e(*x)
        else: L.append(x)

def vr(a, n): return "v[%d:%d]" % (a, a + n - 1)

class VM:
    def __init__(self): self.q = []
    def op(self, lab): self.q.append(lab)
    def wait(self, lab):
        idx = max(i for i, x in enumerate(self.q) if x == lab)
        n = len(self.q) - 1 - idx
        self.q = self.q[idx + 1:]
        assert n <= 63
        return "s_waitcnt vmcnt(%d)" % n
    def all(self):
        self.q = []
        return "s_waitcnt vmcnt(0)"

STAMPS = {"A": [], "B": []}
ROLE = ["AB"]
def stamp(name):
    if not DEBUG: return []
    if ROLE[0] == "AB":
        k = {"start": 0, "fin": 60, "end": 61}[name]
    else:
        lst = STAMPS[ROLE[0]]
        if name not in lst: lst.append(name)
        k = lst.index(name) + 1
        assert k < 60
    return ["s_memtime s[96:97]", "s_waitcnt lgkmcnt(0)", "v_writelane_b32 v255, s96, %d" % k]

def tag_from(v):
    return ["v_readfirstlane_b32 %s, %s" % (TAG, v), "s_mul_i32 %s, %s, 0x9E3779B1" % (TAG, TAG),
            "s_add_u32 %s, %s, 0x7F4A7C15" % (TAG, TAG)]

lab_n = [0]
def newlab(p):
    lab_n[0] += 1
    return "L_%s_%d" % (p, lab_n[0])

def check_retry(loads, tagregs, tmp):
    top, done = newlab("chk"), newlab("ok")
    o = ["s_mov_b32 %s, %d" % (CNT, SPIN), top + ":"]
    o.append("v_xor_b32 v%d, %s, v%d" % (tmp, TAG, tagregs[0]))
    for r in tagregs[1:]:
        o.append("v_xor_b32 v%d, %s, v%d" % (tmp + 1, TAG, r))
        o.append("v_or_b32 v%d, v%d, v%d" % (tmp, tmp, tmp + 1))
    o.append("v_cmp_ne_u32 vcc, 0, v%d" % tmp)
    o.append("s_nop 1")
    o.append("s_cbranch_vccz " + done)
    o.append("s_sub_u32 %s, %s, 1" % (CNT, CNT))
    o.append("s_cbranch_scc1 " + done)
    o.append("s_sleep 1")
    o += loads
    o.append("s_waitcnt vmcnt(0)")
    o.append("s_branch " + top)
    o.append(done + ":")
    return o

def prologue():
    e("s_cmp_ge_u32 s2, 256", "s_cbranch_scc1 L_end")
    e("s_load_dwordx16 s[16:31], s[0:1], 0", "s_load_dwordx8 s[32:39], s[0:1], 64", "s_load_dwordx4 s[40:43], s[0:1], 96")
    if DEBUG or "--double" in sys.argv:
        e("v_mov_b32 v255, 0", "s_memrealtime s[98:99]")
    e("v_lshrrev_b32 v2, 6, v0", "v_and_b32 v1, 63, v0")
    e("s_and_b32 %s, s2, 7" % XCD, "s_lshr_b32 %s, s2, 3" % IDX)
    e("v_readfirstlane_b32 %s, v2" % WAVE)
    e("s_and_b32 s74, %s, 1" % XCD, "s_lshl_b32 s74, s74, 3", "s_and_b32 s75, %s, 7" % IDX, "s_add_u32 %s, s74, s75" % MT)
    e("s_lshr_b32 s74, %s, 1" % XCD, "s_lshl_b32 s74, s74, 2", "s_lshr_b32 s75, %s, 3" % IDX, "s_add_u32 %s, s74, s75" % FT)
    e("s_lshl_b32 s74, %s, 4" % MT, "s_add_u32 %s, s74, %s" % (G, FT))
    e("s_lshl_b32 s74, %s, 5" % XCD, "s_add_u32 %s, s74, %s" % (CP, IDX))
    e("s_lshl_b32 s74, %s, 2" % XCD, "s_and_b32 s75, %s, 3" % IDX, "s_add_u32 %s, s74, s75" % I2, "s_lshr_b32 %s, %s, 2" % (J2, IDX))
    e("s_lshl_b32 s74, %s, 1" % FT, "s_add_u32 s74, s74, %s" % MT, "s_and_b32 %s, s74, 7" % KS)
    e("s_and_b32 %s, %s, 3" % (W, WAVE), "s_lshr_b32 %s, %s, 1" % (WM, W), "s_and_b32 %s, %s, 1" % (WN, W))
    e("v_lshlrev_b32 v12, 4, v1")
    e("s_mov_b32 s47, 0x20000", "s_mov_b32 s51, 0x20000", "s_mov_b32 s55, 0x20000", "s_mov_b32 s59, 0x20000", "s_mov_b32 s63, 0x20000")
    e("s_mov_b32 s50, 1409024", "s_mov_b32 s58, 1409024", "s_mov_b32 s62, %d" % WS_SIZE)
    e("s_waitcnt lgkmcnt(0)")
    e(stamp("start"))
    e("s_mov_b32 s60, s42", "s_mov_b32 s61, s43")
    e("s_cmp_eq_u32 %s, 15" % FT)
    e("s_cselect_b32 s48, s36, s32", "s_cselect_b32 s49, s37, s33")
    e("s_cselect_b32 s46, 0, 0x200000", "s_cselect_b32 s54, 0, 1409024")
    e("s_cselect_b32 s87, %s, %s" % (MT, FT))
    e("s_mov_b32 s44, s16", "s_mov_b32 s45, s17", "s_mov_b32 s52, s34", "s_mov_b32 s53, s35", "s_mov_b32 s56, s36", "s_mov_b32 s57, s37")
    e("s_cmp_ge_u32 %s, 4" % WAVE, "s_cbranch_scc1 L_B")

XA, XA2, WA, WA2 = 2, 6, 10, 11
ACC, ONEACC, FR0, FR1, ONES = 64, 160, 208, 228, 248

def cmul(dst, a, w, t):
    return ["v_pk_mul_f32 %s, %s, %s op_sel:[0,0] op_sel_hi:[0,1]" % (vr(t, 2), vr(a, 2), vr(w, 2)),
            "v_pk_fma_f32 %s, %s, %s, %s op_sel:[1,1,0] op_sel_hi:[1,0,1] neg_lo:[1,0,0]" % (vr(dst, 2), vr(a, 2), vr(w, 2), vr(t, 2))]

def wave_sum2(a, b, sa, sb):
    o = []
    for m in ("row_shr:1", "row_shr:2", "row_shr:4", "row_shr:8"):
        for r in (a, b): o.append("v_add_f32_dpp v%d, v%d, v%d %s row_mask:0xf bank_mask:0xf" % (r, r, r, m))
    for r in (a, b): o.append("v_add_f32_dpp v%d, v%d, v%d row_bcast:15 row_mask:0xa bank_mask:0xf" % (r, r, r))
    for r in (a, b): o.append("v_add_f32_dpp v%d, v%d, v%d row_bcast:31 row_mask:0xc bank_mask:0xf" % (r, r, r))
    o += ["v_readlane_b32 %s, v%d, 63" % (sa, a), "v_readlane_b32 %s, v%d, 63" % (sb, b)]
    return o

def a_p0():
    vm = VM()
    e("s_lshl_b32 s74, %s, 13" % G, "s_lshl_b32 s75, %s, 11" % W, "s_add_u32 s74, s74, s75", "v_add_u32 v13, s74, v12")
    e("global_load_dwordx4 v[16:19], v13, s[16:17]"); vm.op("ln")
    e("global_load_dwordx4 v[20:23], v13, s[16:17] offset:1024"); vm.op("ln")
    e("s_lshl_b32 s74, %s, 9" % CP, "s_lshl_b32 s75, %s, 7" % W, "s_add_u32 s74, s74, s75", "v_lshl_add_u32 v14, v1, 1, s74")
    e("buffer_load_dword v29, off, %s, 0 sc1" % sWS); vm.op("ep")
    for i in range(4):
        e("global_load_ushort v%d, v14, s[%d:%d]" % (24 + i, 18 + 2 * i, 19 + 2 * i)); vm.op("par")
    e("s_lshl_b32 s74, %s, 2" % CP, "s_lshl_b32 s75, %s, 1" % WM, "s_add_u32 s74, s74, s75", "v_mov_b32 v15, s74")
    e("global_load_ushort v28, v15, s[26:27]"); vm.op("par")
    e("v_and_b32 v30, 31, v1", "v_lshrrev_b32 v31, 5, v1")
    e("v_bfe_u32 v32, v1, 1, 3")
    e("s_lshl_b32 s74, %s, 13" % WM, "v_lshl_add_u32 v33, v30, 7, s74")
    for s in range(4):
        e("v_add_u32 v34, %d, v31" % (2 * s), "v_xor_b32 v34, v34, v32", "v_lshl_add_u32 v%d, v34, 4, v33" % (XA + s),
          "v_add_u32 v%d, %d, v%d" % (XA2 + s, 2 * SLOT, XA + s))
    e("v_bfe_u32 v34, v1, 4, 1", "v_mul_u32_u24 v34, %d, v34" % WMAT)
    e("v_bfe_u32 v35, v1, 2, 2", "v_lshl_add_u32 v35, v31, 3, v35", "v_mul_u32_u24 v35, 192, v35")
    e("v_and_b32 v36, 3, v1", "v_lshlrev_b32 v36, 3, v36", "v_add3_u32 v34, v34, v35, v36")
    e("s_mul_i32 s74, %s, 96" % WN, "s_add_u32 s74, s74, %d" % WOFF, "v_add_u32 v%d, s74, v34" % WA, "v_add_u32 v%d, %d, v%d" % (WA2, 2 * SLOT, WA))
    for i in range(4): e("v_mov_b32 v%d, 0x3f803f80" % (ONES + i))
    e(vm.wait("ln"))
    e(stamp("lnld"))
    F = 32
    for r in range(2):
        for j in range(4):
            e("v_lshlrev_b32 v%d, 16, v%d" % (F + 8 * r + 2 * j, 16 + 4 * r + j), "v_and_b32 v%d, 0xffff0000, v%d" % (F + 8 * r + 2 * j + 1, 16 + 4 * r + j))
    for r in range(2):
        b = F + 8 * r
        e("v_pk_add_f32 %s, %s, %s" % (vr(48 + 4 * r, 2), vr(b, 2), vr(b + 2, 2)), "v_pk_add_f32 %s, %s, %s" % (vr(50 + 4 * r, 2), vr(b + 4, 2), vr(b + 6, 2)))
    for r in range(2): e("v_pk_add_f32 %s, %s, %s" % (vr(48 + 4 * r, 2), vr(48 + 4 * r, 2), vr(50 + 4 * r, 2)))
    for r in range(2): e("v_add_f32 v%d, v%d, v%d" % (48 + 4 * r, 48 + 4 * r, 49 + 4 * r))
    e(wave_sum2(48, 52, "s74", "s75"))
    e("v_mov_b32 v60, 0x3b000000")
    e("v_mul_f32 v56, s74, v60", "v_mul_f32 v58, s75, v60")
    for r in range(2):
        b = F + 8 * r
        for j in range(4):
            e("v_pk_add_f32 %s, %s, %s op_sel_hi:[1,0] neg_lo:[0,1] neg_hi:[0,1]" % (vr(64 + 8 * r + 2 * j, 2), vr(b + 2 * j, 2), vr(56 + 2 * r, 2)))
    for r in range(2): e("v_pk_mul_f32 %s, %s, %s" % (vr(48 + 4 * r, 2), vr(64 + 8 * r, 2), vr(64 + 8 * r, 2)))
    for j in range(1, 4):
        for r in range(2): e("v_pk_fma_f32 %s, %s, %s, %s" % (vr(48 + 4 * r, 2), vr(64 + 8 * r + 2 * j, 2), vr(64 + 8 * r + 2 * j, 2), vr(48 + 4 * r, 2)))
    for r in range(2): e("v_add_f32 v%d, v%d, v%d" % (48 + 4 * r, 48 + 4 * r, 49 + 4 * r))
    e(wave_sum2(48, 52, "s74", "s75"))
    e("v_mul_f32 v48, s74, v60", "v_mul_f32 v49, s75, v60")
    e("v_cvt_pk_bf16_f32 v50, v56, v58")
    e("v_cvt_pk_bf16_f32 v48, v48, v49")
    e("v_lshlrev_b32 v56, 16, v50", "v_and_b32 v58, 0xffff0000, v50")
    e("v_lshlrev_b32 v49, 16, v48", "v_and_b32 v48, 0xffff0000, v48")
    e("v_add_f32 v49, %s, v49" % hx(f2u(1e-5)), "v_add_f32 v48, %s, v48" % hx(f2u(1e-5)))
    e("v_cvt_pk_bf16_f32 v48, v49, v48")
    e("v_lshlrev_b32 v49, 16, v48", "v_and_b32 v48, 0xffff0000, v48")
    e("v_sqrt_f32 v49, v49", "v_sqrt_f32 v48, v48")
    e("v_cvt_pk_bf16_f32 v51, v49, v48")
    e("v_lshlrev_b32 v49, 16, v51", "v_and_b32 v48, 0xffff0000, v51")
    e("v_rcp_f32 v60, v49", "v_rcp_f32 v62, v48")
    for r in range(2):
        b = F + 8 * r
        for j in range(4):
            e("v_pk_add_f32 %s, %s, %s op_sel_hi:[1,0] neg_lo:[0,1] neg_hi:[0,1]" % (vr(b + 2 * j, 2), vr(b + 2 * j, 2), vr(56 + 2 * r, 2)))
        for j in range(4): e("v_cvt_pk_bf16_f32 v%d, v%d, v%d" % (16 + 4 * r + j, b + 2 * j, b + 2 * j + 1))
        for j in range(4):
            e("v_lshlrev_b32 v%d, 16, v%d" % (b + 2 * j, 16 + 4 * r + j), "v_and_b32 v%d, 0xffff0000, v%d" % (b + 2 * j + 1, 16 + 4 * r + j))
        for j in range(4): e("v_pk_mul_f32 %s, %s, %s op_sel_hi:[1,0]" % (vr(b + 2 * j, 2), vr(b + 2 * j, 2), vr(60 + 2 * r, 2)))
        for j in range(4): e("v_cvt_pk_bf16_f32 v%d, v%d, v%d" % (16 + 4 * r + j, b + 2 * j, b + 2 * j + 1))
    e("s_mul_i32 s74, %s, %d" % (W, 2 * LNP), "s_add_u32 s74, s74, %d" % LNS, "v_add_u32 v13, s74, v12")
    e("ds_write_b128 v13, v[16:19]", "ds_write_b128 v13, v[20:23] offset:%d" % LNP)
    e(vm.wait("ep"))
    e(tag_from("v29"))
    e("v_xor_b32 v50, 0x80008000, v50")
    e("v_and_b32 v52, 0xffff, v50", "v_or_b32 v52, v52, v49")
    e("v_lshrrev_b32 v53, 16, v50", "v_or_b32 v53, v53, v48")
    e("v_cmp_eq_u32 vcc, 0, v1", "v_cndmask_b32 v52, v53, v52, vcc", "v_mov_b32 v53, %s" % TAG)
    e("s_lshl_b32 s74, %s, 6" % G, "s_lshl_b32 s75, %s, 4" % W, "s_add_u32 s74, s74, s75", "s_add_u32 s74, s74, %d" % WS_ST)
    e("v_lshlrev_b32 v54, 3, v1")
    e("s_mov_b64 exec, 3")
    e("buffer_store_dwordx2 v[52:53], v54, %s, s74 offen sc1" % sWS); vm.op("st")
    e("s_mov_b64 exec, -1")
    e(stamp("lndone"))
    e(vm.wait("par"))
    for i in range(5): e("v_lshlrev_b32 v%d, 16, v%d" % (24 + i, 24 + i))
    e("v_mul_f32 v28, %s, v28" % LOG2E, "v_mul_f32 v24, %s, v24" % LOG2E)
    e("v_exp_f32 v28, v28", "v_exp_f32 v24, v24")
    e("v_cvt_pk_bf16_f32 v24, v24, v28")
    e("v_and_b32 v28, 0xffff0000, v24", "v_lshlrev_b32 v24, 16, v24")
    e("v_mul_f32 v24, v24, v28", "v_mul_f32 v25, v25, v28")
    e("v_mul_f32 v24, %s, v24" % hx(f2u(-1.4426950408889634)), "v_mul_f32 v25, %s, v25" % INV2PI)
    e("v_add_f32 v28, v28, v28")
    EA = 64
    e("v_mul_f32 v%d, v26, v28" % EA, "v_mul_f32 v%d, v27, v28" % (EA + 1))
    Z1, Z8, Z256, Z16 = 30, 32, 34, 36
    for k, (z, p) in enumerate(((Z1, 1.0), (Z8, 8.0), (Z256, 256.0))):
        t = 40 + 4 * k
        e("v_mul_f32 v%d, %s, v24" % (t, hx(f2u(p))), "v_mul_f32 v%d, %s, v25" % (t + 1, hx(f2u(p))))
        e("v_rndne_f32 v%d, v%d" % (t + 2, t + 1), "v_exp_f32 v%d, v%d" % (t, t), "v_sub_f32 v%d, v%d, v%d" % (t + 1, t + 1, t + 2))
        e("v_cos_f32 v%d, v%d" % (z, t + 1), "v_sin_f32 v%d, v%d" % (z + 1, t + 1))
    for k, z in enumerate((Z1, Z8, Z256)):
        t = 40 + 4 * k
        e("v_mul_f32 v%d, v%d, v%d" % (z, z, t), "v_mul_f32 v%d, v%d, v%d" % (z + 1, z + 1, t))
    e(cmul(Z16, Z8, Z8, 52))
    e(stamp("kg_setup"))
    e("s_mul_i32 s74, %s, %d" % (W, E_W), "s_add_u32 s74, s74, %d" % E_BASE, "v_lshl_add_u32 v13, v1, 2, s74")
    def wr(row, src, neg, tmp):
        return ["v_cvt_pk_bf16_f32 v%d, v%d, %sv%d" % (tmp, src, "-" if neg else "", src + 1), "ds_write_b32 v13, v%d offset:%d" % (tmp, row * 272)]
    c1 = wr(0, EA, True, 110)
    plan = [(i, i - 1, Z1) for i in range(1, 8)] + [(8, 0, Z256), (9, 2, Z256), (10, 4, Z256), (11, 6, Z256),
            (12, 8, Z256), (13, 10, Z256), (14, 12, Z256), (15, 13, Z256), (16, 14, Z256), (17, 16, Z256), (18, 17, Z256), (19, 18, Z256), (20, 19, Z256)]
    c1 = [c1]
    for n, (d, s_, z) in enumerate(plan):
        c1.append(cmul(EA + 2 * d, EA + 2 * s_, z, 54) + wr(d, EA + 2 * d, True, 110 + (n & 1)))
    EV, OD = 38, 56
    c2 = [["v_mov_b32 v112, 0x00003f80", "ds_write_b32 v13, v112 offset:%d" % (21 * 272)] + wr(23, Z16, False, 113)]
    c3 = [wr(22, Z8, False, 114)]
    for b in range(4, 32, 2):
        c2.append(cmul(EV, Z16 if b == 4 else EV, Z16, 58) + wr(21 + b, EV, False, 112 + ((b >> 1) & 1)))
    for b in range(3, 32, 2):
        c3.append(cmul(OD, Z8 if b == 3 else OD, Z16, 60) + wr(21 + b, OD, False, 114 + ((b >> 1) & 1)))
    for i in range(max(len(c1), len(c2), len(c3))):
        grp = [c[i] for c in (c1, c2, c3) if i < len(c)]
        for k in range(max(len(x) for x in grp)):
            for x in grp:
                if k < len(x): e(x[k])
    e(stamp("kg_chain"))
    e("v_and_b32 v14, 31, v1", "v_mul_u32_u24 v14, 272, v14", "v_lshrrev_b32 v15, 5, v1", "v_lshl_add_u32 v14, v15, 4, v14", "v_add_u32 v14, s74, v14")
    e("s_waitcnt lgkmcnt(0)")
    for s in range(8):
        e("ds_read_b128 %s, v14 offset:%d" % (vr(120 + 8 * s, 4), 32 * s), "ds_read_b128 %s, v14 offset:%d" % (vr(124 + 8 * s, 4), 21 * 272 + 32 * s))
    e("s_mul_i32 s75, %s, 3072" % W, "s_add_u32 s75, s75, %d" % T_BASE)
    e("v_and_b32 v16, 31, v1")
    e("v_lshlrev_b32 v17, 5, v16", "v_lshl_add_u32 v17, v15, 4, v17", "v_add_u32 v17, s75, v17")
    e("v_cmp_eq_u32 vcc, 0, v15")
    e("v_lshlrev_b32 v18, 4, v16", "v_add_u32 v18, 1024, v18")
    e("v_lshlrev_b32 v19, 3, v16", "v_add_u32 v19, 1536, v19")
    e("v_add_u32 v20, 8, v18", "v_add_u32 v21, 256, v19")
    e("v_cndmask_b32 v18, v19, v18, vcc", "v_cndmask_b32 v19, v21, v20, vcc")
    e("v_add_u32 v18, s75, v18", "v_add_u32 v19, s75, v19")
    e("v_lshlrev_b32 v20, 2, v16", "v_lshl_add_u32 v20, v15, 9, v20", "v_add_u32 v20, s75, v20")
    for s in range(8):
        e("s_waitcnt lgkmcnt(%d)" % (14 - 2 * s))
        e("v_mfma_f32_32x32x16_bf16 v[32:47], %s, %s, %s" % (vr(120 + 8 * s, 4), vr(124 + 8 * s, 4), "0" if s == 0 else "v[32:47]"))
    e("ds_write_b128 v17, v[32:35]", "ds_write_b64 v18, v[36:37]", "ds_write_b64 v19, v[38:39]")
    for i in range(4): e("ds_write_b32 v20, v%d offset:%d" % (40 + i, 2048 + 128 * i))
    e("s_waitcnt lgkmcnt(0)")
    e(stamp("kgen"))
    return vm

def g1_reads(stage, s, buf):
    slot = stage % 3
    o = []
    for b in range(2):
        if slot < 2: o.append("ds_read_b128 %s, v%d offset:%d" % (vr(buf + 4 * b, 4), XA + s, slot * SLOT + 4096 * b))
        else: o.append("ds_read_b128 %s, v%d offset:%d" % (vr(buf + 4 * b, 4), XA2 + s, 4096 * b))
    for a in range(3):
        for q in range(2):
            off = (16 * s + 4 * q) * 192 + 32 * a
            if slot < 2: o.append("ds_read_b64_tr_b16 %s, v%d offset:%d" % (vr(buf + 8 + 4 * a + 2 * q, 2), WA, slot * SLOT + off))
            else: o.append("ds_read_b64_tr_b16 %s, v%d offset:%d" % (vr(buf + 8 + 4 * a + 2 * q, 2), WA2, off))
    return [o[0], o[2], o[3], o[1], o[4], o[5], o[6], o[7]]

def g1_mfmas(buf, first, ones):
    o = []
    for a in range(3):
        for b in range(2):
            acc = ACC + 16 * (2 * a + b)
            o.append("v_mfma_f32_32x32x16_bf16 %s, %s, %s, %s" % (vr(acc, 16), vr(buf + 8 + 4 * a, 4), vr(buf + 4 * b, 4), "0" if first else vr(acc, 16)))
        if ones:
            acc = ONEACC + 16 * a
            o.append("v_mfma_f32_32x32x16_bf16 %s, %s, %s, %s" % (vr(acc, 16), vr(ONES, 4), vr(buf + 8 + 4 * a, 4), "0" if first else vr(acc, 16)))
    return o

def wd_dma(t0, region, n0, cnt, vm, lab, vo):
    o = []
    for i in range(cnt):
        o.append("s_add_u32 m0, s76, %d" % (region + i * 1024))
        o.append("s_add_u32 s78, s77, %d" % ((16 * t0 + 8 * i) * 1024))
        o.append("buffer_load_dwordx4 v%d, %s, s78 offen lds" % (vo, sWD))
        vm.op(lab)
    return o

def wd_setup(cnt):
    return ["s_mul_i32 s76, %s, %d" % (W, cnt * 1024), "s_lshl_b32 s77, s76, 3", "s_lshl_b32 s78, %s, 7" % J2, "s_add_u32 s77, s77, s78"]

def wd_voff(v, t):
    return ["v_lshrrev_b32 v%d, 3, v1" % t, "v_bfe_u32 v%d, v1, 4, 1" % (t + 1), "v_lshlrev_b32 v%d, 2, v%d" % (t + 1, t + 1),
            "v_and_b32 v%d, 7, v1" % v, "v_xor_b32 v%d, v%d, v%d" % (v, v, t + 1), "v_lshlrev_b32 v%d, 4, v%d" % (v, v),
            "v_lshl_add_u32 v%d, v%d, 10, v%d" % (v, t, v)]

def wd_loc(t):
    if t < 20: return 2 * SLOT + t * 2048
    if t < 40: return (t - 20) * 2048
    if t < 60: return SLOT + (t - 40) * 2048
    if t < 80: return 2 * SLOT + (t - 60) * 2048
    return CR + (t - 80) * 2048

def final_xload(vm, dst, t):
    o = ["v_lshrrev_b32 v%d, 3, v0" % t, "v_and_b32 v%d, 7, v0" % (t + 1), "v_lshlrev_b32 v%d, 4, v%d" % (t + 1, t + 1),
         "v_lshl_add_u32 v%d, v%d, 10, v%d" % (t, t, t + 1),
         "s_lshl_b32 s74, %s, 16" % I2, "s_lshl_b32 s75, %s, 7" % J2, "s_add_u32 s74, s74, s75", "v_add_u32 v%d, s74, v%d" % (t, t),
         "global_load_dwordx4 %s, v%d, s[16:17]" % (vr(dst, 4), t)]
    vm.op("xf")
    return o

XF, XFA = 56, 60

def a_main(vm):
    bufs = (FR0, FR1)
    prev = None
    n = 0
    gl = []
    for st in range(8):
        e("s_barrier")
        e(stamp("st%d" % st))
        for s in range(4):
            rd = g1_reads(st, s, bufs[n & 1])
            extra = []
            if st == 1 and s == 2:
                extra = ["v_mov_b32 v44, v%d" % ONEACC, "v_mov_b32 v45, v%d" % (ONEACC + 16), "v_mov_b32 v46, v%d" % (ONEACC + 32), "v_mov_b32 v47, %s" % TAG,
                         "s_lshr_b32 s74, %s, 3" % MT, "s_lshl_b32 s74, s74, 4", "s_add_u32 s74, s74, %s" % FT, "s_lshl_b32 s74, s74, 1", "s_add_u32 s74, s74, %s" % WN,
                         "s_lshl_b32 s80, s74, 12", "s_add_u32 s80, s80, %d" % WS_CS, "s_lshl_b32 s75, %s, 9" % KS, "s_add_u32 s74, s80, s75",
                         "v_and_b32 v48, 0x1ff, v12",
                         "buffer_store_dwordx4 v[44:47], v48, %s, s74 offen sc1" % sWS]
                vm.op("cs")
            if st == 6 and s == 1:
                extra = ["v_lshrrev_b32 v49, 5, v1", "v_lshl_add_u32 v49, v49, 11, v48",
                         "v_lshrrev_b32 v50, 1, v48",
                         "s_lshl_b32 s81, %s, 10" % MT, "s_lshl_b32 s75, %s, 9" % WM, "s_add_u32 s81, s81, s75", "s_add_u32 s81, s81, %d" % WS_ST]
                gl = ["buffer_load_dwordx2 v[16:17], v50, %s, s81 offen sc1" % sWS, "buffer_load_dwordx2 v[18:19], v50, %s, s81 offen offset:256 sc1" % sWS]
                gl += ["buffer_load_dwordx4 %s, v49, %s, s80 offen offset:%d sc1" % (vr(20 + 4 * p, 4), sWS, 512 * p) for p in range(4)]
            if st == 6 and s == 2: extra = gl[:3]
            if st == 6 and s == 3: extra = gl[3:]
            if prev is None:
                e(rd)
            else:
                e(interleave(prev, rd + extra, per=3))
            e("s_waitcnt lgkmcnt(0)")
            prev = g1_mfmas(bufs[n & 1], st == 0 and s == 0, st == 0)
            n += 1
    e(prev)
    e(stamp("loopend"))
    e(vm.all())
    e(check_retry(gl, [17, 19, 23, 27, 31, 35], 36))
    e(stamp("granules"))
    e("s_mov_b32 s74, 0x07060302")
    for a in range(3):
        e("v_add_f32 v%d, v%d, v%d" % (20 + a, 20 + a, 24 + a), "v_add_f32 v%d, v%d, v%d" % (28 + a, 28 + a, 32 + a))
    for a in range(3): e("v_add_f32 v%d, v%d, v%d" % (20 + a, 20 + a, 28 + a))
    CA, CB = FR0, FR0 + 12
    for a in range(3):
        e("v_and_b32 v24, 0xffff0000, v%d" % (20 + a), "v_sub_f32 v24, v%d, v24" % (20 + a), "v_and_b32 v25, 0xffff0000, v24", "v_sub_f32 v25, v24, v25",
          "v_perm_b32 v%d, v24, v%d, s74" % (CA + 4 * a, 20 + a), "v_lshrrev_b32 v%d, 16, v25" % (CA + 4 * a + 1),
          "v_mov_b32 v%d, 0" % (CA + 4 * a + 2), "v_mov_b32 v%d, 0" % (CA + 4 * a + 3))
    KC = 36
    for b in range(2):
        sv = 16 + 2 * b
        e("v_and_b32 v%d, 0xffff, v%d" % (CB + 4 * b + 1, sv), "v_lshl_or_b32 v%d, v%d, 16, v%d" % (CB + 4 * b, sv, CB + 4 * b + 1),
          "v_mov_b32 v%d, 0" % (CB + 4 * b + 2), "v_mov_b32 v%d, 0" % (CB + 4 * b + 3))
        e("v_and_b32 v%d, 0xffff0000, v%d" % (sv, sv), "v_rcp_f32 v%d, v%d" % (sv + 1, sv))
    for a in range(3):
        for b in range(2):
            acc = ACC + 16 * (2 * a + b)
            e("v_mfma_f32_32x32x16_bf16 %s, %s, %s, %s" % (vr(acc, 16), vr(CA + 4 * a, 4), vr(CB + 4 * b, 4), vr(acc, 16)))
    for b in range(2):
        sv = 16 + 2 * b
        e("v_mul_f32 v%d, v%d, v%d" % (KC + 4 * b + 2, sv, sv), "v_mul_f32 v%d, %s, v%d" % (KC + 4 * b, hx(f2u(GK1)), sv + 1),
          "v_mul_f32 v%d, v%d, v%d" % (KC + 4 * b + 1, sv + 1, sv + 1), "v_mul_f32 v%d, v%d, v%d" % (KC + 4 * b + 1, KC + 4 * b + 1, sv + 1),
          "v_mul_f32 v%d, %s, v%d" % (KC + 4 * b + 1, hx(f2u(GK2)), KC + 4 * b + 1))
    e("s_lshl_b32 s74, %s, 1" % MT, "s_add_u32 s74, s74, %s" % WM, "s_mul_i32 s74, s74, 172", "s_mul_i32 s75, %s, 6" % FT, "s_mul_i32 s78, %s, 3" % WN,
      "s_add_u32 s75, s75, s78", "s_add_u32 s74, s74, s75", "s_lshl_b32 s74, s74, 10", "s_add_u32 s74, s74, %d" % WS_H)
    for a in range(3):
        skip = newlab("skiph")
        e("s_cmp_ge_u32 s75, %d" % (86 - a), "s_cbranch_scc1 " + skip)
        for b in range(2):
            acc = ACC + 16 * (2 * a + b)
            k = vr(KC + 4 * b, 2); s2 = vr(KC + 4 * b + 2, 2)
            Q = 160 + 16 * b; P = 168 + 16 * b; O = 192 + 4 * ((2 * a + b) % 4)
            for j in range(4): e("v_pk_mul_f32 %s, %s, %s" % (vr(Q + 2 * j, 2), vr(acc + 2 * j, 2), vr(acc + 2 * j, 2)))
            for j in range(4): e("v_pk_fma_f32 %s, %s, %s, %s op_sel:[0,1,0] op_sel_hi:[1,1,0]" % (vr(Q + 2 * j, 2), vr(Q + 2 * j, 2), k, k))
            for j in range(4): e("v_pk_mul_f32 %s, %s, %s" % (vr(Q + 2 * j, 2), vr(Q + 2 * j, 2), vr(acc + 2 * j, 2)))
            for j in range(8): e("v_exp_f32 v%d, v%d" % (Q + j, Q + j))
            for j in range(4): e("v_pk_mul_f32 %s, %s, %s" % (vr(P + 2 * j, 2), vr(acc + 2 * j, 2), vr(acc + 8 + 2 * j, 2)))
            for j in range(4): e("v_pk_fma_f32 %s, %s, %s, %s op_sel:[0,0,0] op_sel_hi:[1,0,0]" % (vr(Q + 2 * j, 2), vr(Q + 2 * j, 2), s2, s2))
            for j in range(8): e("v_rcp_f32 v%d, v%d" % (Q + j, Q + j))
            for j in range(4): e("v_pk_mul_f32 %s, %s, %s" % (vr(P + 2 * j, 2), vr(P + 2 * j, 2), vr(Q + 2 * j, 2)))
            for j in range(4): e("v_cvt_pk_bf16_f32 v%d, v%d, v%d" % (O + j, P + 2 * j, P + 2 * j + 1))
            e("s_add_u32 s78, s74, %d" % (b * 86 * 1024))
            e("buffer_store_dwordx4 %s, v12, %s, s78 offen offset:%d sc1" % (vr(O, 4), sWS, a * 1024))
        e(skip + ":")
    vm.op("h")
    e(stamp("gelu"))
    e("s_barrier")
    e(stamp("b8"))
    WDV = 13
    e(wd_voff(WDV, 14), wd_setup(10))
    e(wd_dma(40, SLOT, 0, 10, vm, "1c", WDV))
    WB = 2
    e("v_bfe_u32 v14, v1, 2, 2", "v_lshrrev_b32 v15, 5, v1", "v_lshl_add_u32 v15, v15, 2, v14")
    e("v_lshrrev_b32 v14, 1, v14", "v_lshlrev_b32 v14, 2, v14")
    e("v_bfe_u32 v16, v1, 4, 1", "v_lshlrev_b32 v16, 1, v16", "v_bfe_u32 v17, v1, 1, 1", "v_add_u32 v16, v16, v17", "v_xor_b32 v16, v16, v14")
    e("v_lshlrev_b32 v16, 4, v16", "v_lshl_add_u32 v16, v15, 7, v16", "v_and_b32 v17, 1, v1", "v_lshl_add_u32 v16, v17, 3, v16")
    e("s_lshl_b32 s74, %s, 11" % WN, "v_add_u32 v%d, s74, v16" % WB, "v_xor_b32 v%d, 64, v%d" % (WB + 1, WB))
    for k in (1, 2):
        e("v_add_u32 v%d, %d, v%d" % (WB + 2 * k, 65536 * k, WB), "v_add_u32 v%d, %d, v%d" % (WB + 2 * k + 1, 65536 * k, WB + 1))
    def wd_reads(jj, dst):
        o = []
        for dt in range(2):
            for q in range(2):
                a = wd_loc(2 * jj) + 1024 * q
                o.append("ds_read_b64_tr_b16 %s, v%d offset:%d" % (vr(dst + 4 * dt + 2 * q, 2), WB + 2 * (a >> 16) + dt, a & 0xffff))
        return o
    PRE = 96
    for jj in range(10): e(wd_reads(jj, PRE + 8 * jj))
    e("s_waitcnt lgkmcnt(0)")
    e("s_barrier")
    e(vm.wait("h"))
    e(stamp("hack"))
    e("s_lshl_b32 s74, %s, 1" % MT, "s_add_u32 s74, s74, %s" % WM, "s_lshl_b32 s74, s74, 5", "s_lshl_b32 s75, %s, 1" % FT, "s_add_u32 s74, s74, s75",
      "s_add_u32 s74, s74, %s" % WN, "s_lshl_b32 s74, s74, 7", "s_add_u32 s74, s74, %d" % WS_F4, "v_mov_b32 v14, %s" % TAG)
    e("s_mov_b64 exec, 1", "buffer_store_dword v14, off, %s, s74 sc1" % sWS, "s_mov_b64 exec, -1"); vm.op("f4")
    e(wd_dma(60, 2 * SLOT, 0, 10, vm, "2a", WDV))
    e(final_xload(vm, XF, XFA))
    e("v_min_u32 v14, 28, v1", "v_lshlrev_b32 v14, 7, v14", "s_lshl_b32 s82, %s, 12" % I2, "s_add_u32 s82, s82, %d" % WS_F4)
    pl = ["buffer_load_dword v15, v14, %s, s82 offen sc1" % sWS]
    e(pl, vm.all())
    e(check_retry(pl, [15], 16))
    e(stamp("hpoll"))
    A2 = 64; HB = 176; NH = 12; WF = (224, 232)
    e("s_lshl_b32 s74, %s, 1" % I2, "s_add_u32 s74, s74, %s" % WM, "s_mul_i32 s74, s74, 86", "s_add_u32 s74, s74, %s" % WN, "s_lshl_b32 s83, s74, 10",
      "s_add_u32 s83, s83, %d" % WS_H)
    def hload(jj):
        vm.op("h%d" % jj)
        o = []
        if jj % 2 == 0 and jj > 0: o.append("s_add_u32 s83, s83, 4096")
        o.append("buffer_load_dwordx4 %s, v12, %s, s83 offen offset:%d sc1" % (vr(HB + 4 * (jj % NH), 4), sWS, 2048 * (jj & 1)))
        return o
    PD = NH - 1
    for jj in range(PD): e(hload(jj))
    for jj in range(43):
        if jj == 20:
            e("s_barrier"); e(stamp("b9"))
            e(wd_reads(jj, WF[jj & 1]))
        if jj == 40:
            e("s_barrier"); e(stamp("b10"))
            e(wd_reads(jj, WF[jj & 1]))
        wf = PRE + 8 * jj if jj < 10 else WF[jj & 1]
        e(vm.wait("h%d" % jj).replace("s_waitcnt", "s_waitcnt lgkmcnt(0)") if jj >= 10 else vm.wait("h%d" % jj))
        hb = vr(HB + 4 * (jj % NH), 4)
        e("v_mfma_f32_32x32x16_bf16 %s, %s, %s, %s" % (vr(A2, 16), vr(wf, 4), hb, "0" if jj == 0 else vr(A2, 16)))
        if jj + 1 < 43 and jj + 1 >= 10 and jj + 1 not in (20, 40): e(wd_reads(jj + 1, WF[(jj + 1) & 1]))
        if jj + PD < 43: e(hload(jj + PD))
        e("v_mfma_f32_32x32x16_bf16 %s, %s, %s, %s" % (vr(A2 + 16, 16), vr(wf + 4, 4), hb, "0" if jj == 0 else vr(A2 + 16, 16)))
    e(stamp("g2end"))
    e("v_bfe_u32 v14, v1, 2, 2", "v_lshrrev_b32 v15, 5, v1", "v_lshl_add_u32 v14, v15, 2, v14", "v_lshlrev_b32 v14, 7, v14")
    e("v_bfe_u32 v16, v1, 4, 1", "v_lshlrev_b32 v16, 5, v16", "v_and_b32 v17, 3, v1", "v_lshl_add_u32 v16, v17, 3, v16", "v_add_u32 v14, v14, v16")
    e("s_lshl_b32 s74, %s, 12" % WN, "s_lshl_b32 s75, %s, 6" % WM, "s_add_u32 s74, s74, s75", "s_add_u32 s74, s74, %d" % Z_LDS, "v_add_u32 v14, s74, v14")
    for jj in range(4): e("ds_read_b64_tr_b16 %s, v14 offset:%d" % (vr(20 + 2 * jj, 2), 1024 * jj))
    e("v_and_b32 v16, 31, v1", "v_mul_u32_u24 v16, 272, v16", "v_lshl_add_u32 v16, v15, 4, v16")
    e("s_mul_i32 s74, %s, %d" % (WN, 64 * 272), "s_mul_i32 s75, %s, %d" % (WM, 32 * 272), "s_add_u32 s74, s74, s75", "s_add_u32 s74, s74, %d" % PB, "v_add_u32 v16, s74, v16")
    e("s_waitcnt lgkmcnt(0)")
    for k in range(8):
        e("v_lshlrev_b32 v%d, 16, v%d" % (32 + 2 * k, 20 + k), "v_and_b32 v%d, 0xffff0000, v%d" % (33 + 2 * k, 20 + k))
    d1, dn = newlab("z1"), newlab("zd")
    e("s_cmp_eq_u32 %s, 1" % WN, "s_cbranch_scc1 " + d1)
    for k in range(8): e("v_pk_add_f32 %s, %s, %s" % (vr(A2 + 2 * k, 2), vr(A2 + 2 * k, 2), vr(32 + 2 * k, 2)))
    e("s_branch " + dn, d1 + ":")
    for k in range(8): e("v_pk_add_f32 %s, %s, %s" % (vr(A2 + 16 + 2 * k, 2), vr(A2 + 16 + 2 * k, 2), vr(32 + 2 * k, 2)))
    e(dn + ":")
    for dt in range(2):
        for jj in range(4): e("ds_write_b128 v16, %s offset:%d" % (vr(A2 + 16 * dt + 4 * jj, 4), 128 * dt + 32 * jj))
    e("s_waitcnt lgkmcnt(0)")
    e("s_branch L_final")

VX0, VX1, VW = 2, 3, 4
def stage_dma(st, vm):
    slot = (st % 3) * SLOT
    o = ["s_lshl_b32 s78, %s, 7" % KS, "s_add_u32 s78, s78, s84", "s_mul_i32 s79, %s, %d" % (KS, 64 * 2752), "s_add_u32 s79, s79, s85",
         "s_add_u32 %s, %s, 1" % (KS, KS), "s_and_b32 %s, %s, 7" % (KS, KS)]
    for i in range(4):
        o.append("s_add_u32 m0, s80, %d" % (slot + 1024 * i))
        if i: o.append("s_add_u32 s78, s78, 8192")
        o.append("buffer_load_dwordx4 v%d, %s, s78 offen lds" % (VX0 + (i & 1), sX)); vm.op("st%d" % st)
    for i in range(3):
        for m, srd in enumerate((sWG, sWU)):
            o.append("s_add_u32 m0, s81, %d" % (slot + WOFF + m * WMAT + 1024 * i))
            o.append("buffer_load_dwordx4 v%d, %s, s79 offen lds" % (VW + i, srd)); vm.op("st%d" % st)
    return o

def b_path():
    vm = VM()
    e("L_B:")
    e("buffer_load_dword v29, off, %s, 0 sc1" % sWS); vm.op("ep")
    e("s_lshl_b32 s74, %s, 2" % CP, "s_lshl_b32 s75, %s, 1" % WM, "s_add_u32 s74, s74, s75", "v_mov_b32 v15, s74")
    e("global_load_ushort v28, v15, s[28:29]"); vm.op("dsk")
    e("v_lshrrev_b32 v16, 3, v1", "v_lshrrev_b32 v17, 4, v1", "v_and_b32 v18, 7, v1", "v_xor_b32 v17, v17, v18", "v_lshlrev_b32 v17, 4, v17",
      "v_lshl_add_u32 v%d, v16, 10, v17" % VX0, "v_xor_b32 v%d, 64, v%d" % (VX1, VX0))
    for i in range(3):
        e("v_add_u32 v16, %d, v1" % (64 * i), "v_mul_u32_u24 v17, 5462, v16", "v_lshrrev_b32 v17, 16, v17", "v_mul_u32_u24 v18, 12, v17",
          "v_sub_u32 v18, v16, v18", "v_mul_u32_u24 v17, 2752, v17", "v_lshl_add_u32 v%d, v18, 4, v17" % (VW + i))
    e("s_lshl_b32 s80, %s, 12" % W, "s_mul_i32 s81, %s, 3072" % W)
    e("s_lshl_b32 s84, %s, 17" % MT, "s_lshl_b32 s74, %s, 15" % W, "s_add_u32 s84, s84, s74")
    e("s_mul_i32 s85, s87, 192", "s_mul_i32 s74, %s, %d" % (W, 16 * 2752), "s_add_u32 s85, s85, s74")
    e(stage_dma(0, vm), stage_dma(1, vm))
    WDV = 7
    e(wd_voff(WDV, 16))
    e(stamp("iss1"), vm.wait("st0"))
    e(tag_from("v29"))
    e(stamp("st0land"))
    e("s_barrier")
    e("v_bfe_u32 v16, v1, 2, 2", "v_mul_u32_u24 v16, %d, v16" % LNP, "v_lshrrev_b32 v17, 4, v1", "v_lshl_add_u32 v16, v17, 5, v16",
      "v_and_b32 v17, 3, v1", "v_lshl_add_u32 v16, v17, 3, v16", "s_lshl_b32 s74, %s, 8" % W, "s_add_u32 s74, s74, %d" % LNS, "v_add_u32 v16, s74, v16")
    for rnd in range(2):
        for q in range(2): e("ds_read_b64_tr_b16 %s, v16 offset:%d" % (vr(20 + 4 * rnd + 2 * q, 2), 4 * q * LNP + 128 * rnd))
    e(stage_dma(2, vm))
    e("s_lshl_b32 s74, %s, 13" % G, "s_lshl_b32 s75, %s, 11" % W, "s_add_u32 s74, s74, s75", "s_add_u32 s74, s74, %d" % WS_XT)
    e("s_waitcnt lgkmcnt(0)")
    for rnd in range(2):
        e("buffer_store_dwordx4 %s, v12, %s, s74 offen offset:%d sc1" % (vr(20 + 4 * rnd, 4), sWS, 1024 * rnd)); vm.op("xt")
    e(stamp("iss2"), vm.wait("st1"), stamp("land1"))
    e("s_barrier")
    e(stage_dma(3, vm))
    e("s_mul_i32 s74, %s, 6144" % WM, "s_add_u32 s74, s74, %d" % T_BASE)
    e("v_lshl_add_u32 v16, v1, 3, s74", "v_add_u32 v17, s74, v12", "v_add_u32 v18, -4, v17")
    for t in range(2):
        b = 32 + 16 * t; o = 3072 * t
        e("ds_read_b64 %s, v16 offset:%d" % (vr(b, 2), o + 2048), "ds_read_b32 v%d, v16 offset:%d" % (b + 2, o + 2056))
        e("ds_read_b32 v%d, v16 offset:%d" % (b + 3, o + 1020))
        e("ds_read_b64 %s, v16 offset:%d" % (vr(b + 4, 2), o + 1536), "ds_read_b32 v%d, v16 offset:%d" % (b + 6, o + 1544))
        e("ds_read_b32 v%d, v18 offset:%d" % (b + 7, o))
        e("ds_read_b64 %s, v16 offset:%d" % (vr(b + 8, 2), o + 1024), "ds_read_b32 v%d, v16 offset:%d" % (b + 10, o + 1032))
        e("ds_read_b128 %s, v17 offset:%d" % (vr(b + 12, 4), o))
        if t == 0: e("s_waitcnt lgkmcnt(0)")
    e("s_cmp_eq_u32 %s, 1" % WN, "s_cselect_b64 s[72:73], -1, 0")
    e("s_mul_i32 s74, %s, %d" % (W, R_CP), "s_add_u32 s74, s74, %d" % R_BASE)
    e("v_sub_u32 v19, 63, v1")
    e("v_lshl_add_u32 v20, v19, 5, s74", "v_lshl_add_u32 v21, v19, 4, s74", "v_lshl_add_u32 v22, v19, 3, s74")
    e("v_cmp_eq_u32 vcc, 0, v1", "v_lshlrev_b32 v28, 16, v28", "v_cndmask_b32 v28, 0, v28, vcc")
    e("s_waitcnt lgkmcnt(0)")
    for k in (0, 1, 2, 3, 4, 5, 6, 7, 8, 9, 10, 12, 13, 14, 15): e("v_add_f32 v%d, v%d, v%d" % (32 + k, 32 + k, 48 + k))
    e("v_add_f32 v44, v44, v28")
    e("v_cndmask_b32 v35, v40, v35, vcc")
    e("v_cndmask_b32 v39, v39, 0, vcc")
    S = "s[72:73]"
    cv = lambda d, lo, hi: "v_cvt_pk_bf16_f32 v%d, v%d, v%d" % (d, lo, hi)
    e("v_cndmask_b32 v48, v33, v34, %s" % S, "v_cndmask_b32 v49, v32, v33, %s" % S)
    e(cv(64, 34, 34), cv(65, 34, 48), cv(66, 33, 33), cv(67, 33, 33), cv(68, 33, 33), cv(69, 49, 32), cv(70, 32, 32), cv(71, 32, 32))
    e("v_cndmask_b32 v48, v37, v38, %s" % S, "v_cndmask_b32 v49, v36, v37, %s" % S)
    e(cv(72, 38, 48), cv(73, 37, 37), cv(74, 49, 36), cv(75, 36, 36))
    e("v_cndmask_b32 v48, v41, v42, %s" % S, "v_cndmask_b32 v49, v40, v41, %s" % S, "v_cndmask_b32 v50, v35, v40, %s" % S)
    e(cv(76, 48, 49), cv(77, 40, 50))
    e("v_cndmask_b32 v48, v46, v47, %s" % S, "v_cndmask_b32 v49, v45, v46, %s" % S, "v_cndmask_b32 v50, v44, v45, %s" % S, "v_cndmask_b32 v51, v39, v44, %s" % S)
    e(cv(78, 48, 49), cv(79, 50, 51))
    e("v_mov_b32 v80, 0", "v_mov_b32 v81, 0")
    e("ds_write_b128 v20, v[64:67]", "ds_write_b128 v20, v[68:71] offset:16", "ds_write_b128 v21, v[72:75] offset:2048",
      "ds_write_b64 v22, v[76:77] offset:3072", "ds_write_b64 v22, v[78:79] offset:3584", "ds_write_b64 v22, v[80:81] offset:4096")
    e(stamp("iss3"), vm.wait("st2").replace("s_waitcnt", "s_waitcnt lgkmcnt(0)"), stamp("land2"))
    e("s_barrier")
    e(stage_dma(4, vm), stamp("iss4"), vm.wait("st3"), stamp("land3"), "s_barrier")
    e(stage_dma(5, vm))
    e("s_lshl_b32 s74, %s, 2" % G, "s_add_u32 s74, s74, %d" % WS_F3, "s_cmp_eq_u32 %s, 0" % W, "s_cselect_b32 s74, s74, 0x7ffffff0", "v_mov_b32 v16, %s" % TAG)
    e("s_mov_b64 exec, 1", "buffer_store_dword v16, off, %s, s74 sc1" % sWS, "s_mov_b64 exec, -1"); vm.op("f3s")
    e(stamp("iss5"), vm.wait("st4"), stamp("land4"), "s_barrier")
    e(stage_dma(6, vm), stamp("iss6"), vm.wait("st5"), stamp("land5"), "s_barrier")
    e(stage_dma(7, vm), stamp("iss7"), vm.wait("st6"), stamp("land6"), "s_barrier")
    e("s_mov_b32 s82, %d" % WS_F3)
    pl = ["buffer_load_dwordx4 v[20:23], v12, %s, s82 offen sc1" % sWS]
    e(pl); vm.op("f3")
    e(wd_setup(10), wd_dma(0, 2 * SLOT, 0, 10, vm, "1a", WDV))
    e(stamp("iss8"), vm.wait("st7"), stamp("land7"), "s_barrier")
    e(stamp("b7"))
    e(vm.wait("f3"))
    e(check_retry(pl, [20, 21, 22, 23], 24))
    e(stamp("f3ok"))
    sk = newlab("ep")
    e("s_or_b32 s74, s2, %s" % W, "s_cmp_lg_u32 s74, 0", "s_cbranch_scc1 " + sk, "v_mov_b32 v16, %s" % TAG)
    e("s_mov_b64 exec, 1", "buffer_store_dword v16, off, %s, 0 sc1" % sWS, "s_mov_b64 exec, -1")
    e(sk + ":")
    e("v_lshrrev_b32 v16, 1, v1", "v_and_b32 v17, 1, v1", "v_lshlrev_b32 v18, 13, v16", "v_lshl_add_u32 v18, v17, 4, v18")
    e("s_lshl_b32 s74, %s, 19" % W, "s_lshl_b32 s75, %s, 5" % CP, "s_add_u32 s74, s74, s75", "s_add_u32 s74, s74, %d" % WS_XT, "s_add_u32 s75, s74, 0x40000")
    e("buffer_load_dwordx4 v[20:23], v18, %s, s74 offen sc1" % sWS); vm.op("u")
    e("buffer_load_dwordx4 v[24:27], v18, %s, s75 offen sc1" % sWS); vm.op("u")
    e(wd_dma(20, 0, 0, 10, vm, "1b", WDV))
    e("v_mul_u32_u24 v17, %d, v17" % (2 * U_CP), "v_lshl_add_u32 v17, v16, 4, v17", "s_lshl_b32 s74, %s, 10" % W, "s_add_u32 s74, s74, %d" % U_BASE, "v_add_u32 v17, s74, v17")
    e("s_mul_i32 s74, %s, %d" % (W, U_CP), "s_add_u32 s74, s74, %d" % U_BASE, "v_min_u32 v19, 14, v1", "v_lshl_add_u32 v19, v19, 2, s74", "v_mov_b32 v30, 0")
    e("ds_write_b32 v19, v30")
    sk = newlab("zp")
    e("s_cmp_lg_u32 %s, 0" % WN, "s_cbranch_scc1 " + sk, "ds_write_b32 v19, v30 offset:4", sk + ":")
    e(vm.wait("u"))
    for k in range(2):
        b = 20 + 4 * k
        e("ds_write_b128 v17, %s offset:%d" % (vr(b, 4), 64 + 512 * k))
        e("ds_write2_b32 v17, v%d, v%d offset0:%d offset1:%d" % (b, b + 1, 0, 1) if False else "ds_write_b32 v17, v%d offset:%d" % (b, U_CP + 60 + 512 * k))
        for d in range(1, 4): e("ds_write_b32 v17, v%d offset:%d" % (b + d, U_CP + 60 + 4 * d + 512 * k))
    VK, VU = 8, 9
    e("v_and_b32 v16, 1, v1", "v_mul_u32_u24 v16, %d, v16" % R_CP, "v_bfe_u32 v18, v1, 1, 3", "v_sub_u32 v18, 7, v18", "v_lshl_add_u32 v16, v18, 6, v16",
      "v_lshrrev_b32 v18, 4, v1", "v_lshl_add_u32 v16, v18, 4, v16", "s_mul_i32 s74, %s, %d" % (WM, 2 * R_CP), "s_add_u32 s74, s74, %d" % R_BASE, "v_add_u32 v%d, s74, v16" % VK)
    e("v_bfe_u32 v16, v1, 2, 2", "v_add_u32 v16, v16, v18", "v_lshlrev_b32 v16, 4, v16", "v_and_b32 v19, 3, v1", "v_lshl_add_u32 v16, v19, 2, v16",
      "v_and_b32 v19, 1, v1", "v_mul_u32_u24 v19, %d, v19" % (U_CP - 4), "v_sub_u32 v16, v16, v19",
      "s_mul_i32 s74, %s, %d" % (WM, 2 * U_CP), "s_add_u32 s74, s74, %d" % (U_BASE + U_CP), "v_add_u32 v%d, s74, v16" % VU)
    e(vm.wait("1a").replace("s_waitcnt", "s_waitcnt lgkmcnt(0)") if "1a" in vm.q else "s_waitcnt lgkmcnt(0)")
    e(stamp("uwr"))
    e("s_barrier")
    e(stamp("b8"))
    CA = 32; FB = (64, 128)
    def conv(tiles, lab):
        nf = max(tiles) + 1
        def reads(rho, buf):
            o = []
            for i in range(nf):
                o.append("ds_read_b128 %s, v%d offset:%d" % (vr(buf + 4 * i, 4), VK, 512 * (7 - i) + 64 * rho))
                o.append("ds_read_b64 %s, v%d offset:%d" % (vr(buf + 32 + 4 * i, 2), VU, 512 * i + 64 * rho))
                o.append("ds_read_b64 %s, v%d offset:%d" % (vr(buf + 34 + 4 * i, 2), VU, 512 * i + 64 * rho + 8))
            return o
        e(reads(0, FB[0]))
        for rho in range(8):
            buf = FB[rho & 1]
            mf = []
            pairs = sorted([(max(sg, t - sg), k, sg) for k, t in enumerate(tiles) for sg in range(t + 1)])
            seen = set()
            for _, k, sg in pairs:
                t = tiles[k]
                first = rho == 0 and k not in seen
                seen.add(k)
                mf.append("v_mfma_f32_16x16x32_bf16 %s, %s, %s, %s" % (vr(CA + 4 * k, 4), vr(buf + 4 * (t - sg), 4), vr(buf + 32 + 4 * sg, 4), "0" if first else vr(CA + 4 * k, 4)))
            e("s_waitcnt lgkmcnt(0)")
            e(interleave(mf, reads(rho + 1, FB[(rho + 1) & 1]) if rho < 7 else [], per=2))
            if rho == 0:
                e("s_waitcnt vmcnt(0)", "s_barrier")
        for k, t in enumerate(tiles):
            e("s_mov_b32 s%d, %d" % (76 + k, t * 4 * 65536))
    e("s_cmp_eq_u32 %s, 1" % WN, "s_cbranch_scc1 L_conv1")
    conv([0, 3, 4, 7], "a")
    e("s_branch L_convd", "L_conv1:")
    conv([1, 2, 5, 6], "b")
    e("L_convd:")
    vm.all()
    e(stamp("conv"))
    e("v_lshrrev_b32 v16, 4, v1", "v_lshlrev_b32 v16, 16, v16", "v_and_b32 v17, 1, v1", "v_lshl_add_u32 v16, v17, 6, v16", "v_bfe_u32 v18, v1, 1, 3", "v_lshl_add_u32 v16, v18, 3, v16")
    e("s_lshl_b32 s74, %s, 1" % CP, "s_add_u32 s74, s74, %s" % WM, "s_lshl_b32 s75, s74, 7", "s_add_u32 s75, s75, %d" % WS_Z)
    e("v_cmp_eq_u32 vcc, 1, v17")
    for k in range(4):
        a = CA + 4 * k; o = 48 + 4 * k
        e(cv(o, a, a + 1), cv(o + 1, a + 2, a + 3))
        e("v_cndmask_b32 v%d, v%d, v%d, vcc" % (o + 2, o + 1, o))
        e("v_mov_b32_dpp v%d, v%d quad_perm:[1,0,3,2] row_mask:0xf bank_mask:0xf" % (o + 3, o + 2))
        e("v_cndmask_b32 v%d, v%d, v%d, vcc" % (o, o, o + 3), "v_cndmask_b32 v%d, v%d, v%d, vcc" % (o + 1, o + 3, o + 1))
        e("s_add_u32 s%d, s%d, s75" % (76 + k, 76 + k))
        e("buffer_store_dwordx2 %s, v16, %s, s%d offen sc1" % (vr(o, 2), sWS, 76 + k)); vm.op("z")
    e(vm.all())
    e("s_lshl_b32 s75, %s, 9" % WN, "s_add_u32 s74, s74, s75", "s_lshl_b32 s74, s74, 6", "s_add_u32 s74, s74, %d" % WS_F5, "v_mov_b32 v16, %s" % TAG)
    e("s_mov_b64 exec, 1", "buffer_store_dword v16, off, %s, s74 sc1" % sWS, "s_mov_b64 exec, -1"); vm.op("f5")
    e(stamp("zflag"))
    e("s_barrier")
    e(stamp("b9"))
    e(wd_setup(3), wd_dma(80, CR, 0, 3, vm, "2b", WDV))
    e(final_xload(vm, XF, XFA))
    e("s_lshr_b32 s74, %s, 2" % I2, "s_add_u32 s74, s74, 1", "s_lshr_b32 s74, s74, 1", "s_and_b32 s74, s74, 1", "s_lshl_b32 s74, s74, 15",
      "s_lshl_b32 s75, %s, 12" % J2, "s_add_u32 s82, s74, s75", "s_add_u32 s82, s82, %d" % WS_F5, "v_lshlrev_b32 v14, 6, v1")
    pl = ["buffer_load_dword v15, v14, %s, s82 offen sc1" % sWS]
    e(pl, vm.all())
    e(check_retry(pl, [15], 16))
    e(stamp("zpoll"))
    e("s_lshl_b32 s74, %s, 16" % I2, "s_lshl_b32 s75, %s, 13" % J2, "s_add_u32 s74, s74, s75", "s_lshl_b32 s75, %s, 11" % W, "s_add_u32 s74, s74, s75",
      "s_add_u32 s74, s74, %d" % WS_Z, "s_add_u32 m0, s75, %d" % Z_LDS)
    e("buffer_load_dwordx4 v12, %s, s74 offen sc1 lds" % sWS, "buffer_load_dwordx4 v12, %s, s74 offen offset:1024 sc1 lds" % sWS)
    e(vm.all())
    e(stamp("zland"))
    e("s_barrier")

def final():
    e("L_final:")
    e("s_barrier")
    e(stamp("fin"))
    e("v_lshrrev_b32 v14, 3, v0", "v_mul_u32_u24 v14, 272, v14", "v_and_b32 v15, 7, v0", "v_lshl_add_u32 v14, v15, 5, v14")
    e("ds_read_b128 v[16:19], v14 offset:%d" % PB, "ds_read_b128 v[20:23], v14 offset:%d" % (PB + 16),
      "ds_read_b128 v[24:27], v14 offset:%d" % (PB + 64 * 272), "ds_read_b128 v[28:31], v14 offset:%d" % (PB + 64 * 272 + 16))
    for j in range(4): e("v_lshlrev_b32 v%d, 16, v%d" % (32 + 2 * j, XF + j), "v_and_b32 v%d, 0xffff0000, v%d" % (33 + 2 * j, XF + j))
    e("s_waitcnt lgkmcnt(0)")
    for j in range(4): e("v_pk_add_f32 %s, %s, %s" % (vr(16 + 2 * j, 2), vr(16 + 2 * j, 2), vr(24 + 2 * j, 2)))
    for j in range(4): e("v_pk_add_f32 %s, %s, %s" % (vr(16 + 2 * j, 2), vr(16 + 2 * j, 2), vr(32 + 2 * j, 2)))
    for j in range(4): e("v_cvt_pk_bf16_f32 v%d, v%d, v%d" % (24 + j, 16 + 2 * j, 17 + 2 * j))
    e("global_store_dwordx4 v%d, v[24:27], s[38:39]" % XFA)
    if DEBUG:
        e("s_waitcnt vmcnt(0)")
        e(stamp("end"))
        e("s_memrealtime s[96:97]", "s_waitcnt lgkmcnt(0)", "v_writelane_b32 v255, s96, 63", "v_writelane_b32 v255, s98, 62")
        e("s_lshl_b32 s74, s2, 11", "s_add_u32 s74, s74, %d" % WS_DBG, "v_lshlrev_b32 v14, 2, v0")
        e("buffer_store_dword v255, v14, %s, s74 offen" % sWS)
        if "--dbgout" in sys.argv:
            e("s_not_b32 s98, s98", "v_mov_b32 v20, s98", "v_mov_b32 v21, s96", "v_mov_b32 v22, 0")
            e("s_cmp_lg_u32 %s, 0" % WAVE, "s_cbranch_scc1 L_end")
            e("s_mov_b64 exec, 1")
            e("global_atomic_umax v22, v20, s[40:41]", "global_atomic_umax v22, v21, s[40:41] offset:4")
            e("s_mov_b64 exec, -1")
            e("s_cmp_lg_u32 s2, 40", "s_cbranch_scc1 L_end")
            sel = ["lnld", "kgen", "st0", "st2", "st6", "st7", "loopend", "gelu", "hack", "hpoll", "b9", "b10"]
            e("v_readlane_b32 s74, v255, 0")
            for n, nm in enumerate(sel + ["fin", "end"]):
                k = {"fin": 60, "end": 61}.get(nm) or STAMPS["A"].index(nm) + 1
                e("v_readlane_b32 s75, v255, %d" % k, "s_sub_u32 s75, s75, s74", "v_mov_b32 v20, s75", "s_mov_b64 exec, 1",
                  "global_store_dword v22, v20, s[40:41] offset:%d" % (8 + 4 * n), "s_mov_b64 exec, -1")
    if "--double" in sys.argv:
        e("s_waitcnt vmcnt(0)", "s_memrealtime s[96:97]", "s_waitcnt lgkmcnt(0)", "s_sub_u32 s74, s96, s98", "s_min_u32 s74, s74, 20000",
          "L_spin:", "s_memrealtime s[100:101]", "s_waitcnt lgkmcnt(0)", "s_sub_u32 s75, s100, s96", "s_cmp_lt_u32 s75, s74", "s_cbranch_scc1 L_spin")
    e("L_end:", "s_endpgm")

prologue()
ROLE[0] = "A"
vm = a_p0()
a_main(vm)
ROLE[0] = "B"
b_path()
ROLE[0] = "AB"
final()
body, npad = pad_hazards(L)

hdr = open("cdna_kernels/%s.s.ref" % NAME).read().split("; Override launch")[0]
out = hdr + "; @launch grid=(256,1,1) block=(512,1,1) lds=163840\n"
out += '.amdgcn_target "amdgcn-amd-amdhsa--gfx950"\n.text\n.globl %s_kernel\n.p2align 8\n.type %s_kernel,@function\n%s_kernel:\n' % (NAME, NAME, NAME)
out += "\n".join(body) + "\n"
out += '''.section .rodata,"a"
.p2align 6
.amdhsa_kernel %s_kernel
  .amdhsa_next_free_vgpr 256
  .amdhsa_next_free_sgpr 102
  .amdhsa_accum_offset 256
  .amdhsa_group_segment_fixed_size 0
  .amdhsa_kernarg_size 112
  .amdhsa_user_sgpr_count 2
  .amdhsa_user_sgpr_kernarg_segment_ptr 1
  .amdhsa_system_sgpr_workgroup_id_x 1
.end_amdhsa_kernel
''' % NAME
path = [a for a in sys.argv[1:] if not a.startswith("--")]
path = path[0] if path else "cdna_kernels/%s.s" % NAME
open(path, "w").write(out)
print("wrote", path, "lines", len(body), "nops inserted", npad)
if DEBUG:
    import json
    json.dump(STAMPS, open(path[:-2] + ".json", "w"))
```

```python
import sys, struct, math
from asmlib import *

NAME = "parallel_sum__ssm_conv_s4d__geglu_ffn__prompt"
DEBUG = "--stamps" in sys.argv

def f2u(x): return struct.unpack("<I", struct.pack("<f", x))[0]
def hx(x): return "0x%08x" % (x & 0xffffffff)
LOG2E = hx(f2u(1.4426950408889634))
INV2PI = hx(f2u(0.15915494309189535))
GK1 = -2.0 * math.sqrt(2.0 / math.pi) * 1.4426950408889634
GK2 = GK1 * 0.044715

WS_EPOCH = 0
WS_F3 = 0x1000
WS_ST = 0x2000
WS_CS = 0x8000
WS_F4 = 0x50000
WS_F5 = 0x70000
WS_DBG = 0x80000
WS_XT = 0x100000
WS_Z = 0x300000
WS_H = 0x500000
WS_SIZE = 0x1000000
SLOT = 41024
XOFF, WOFF, WMAT = 0, 16384, 12320
RB = 40768
R_CP = 4640
U_CP = 4224
U_BASE = 0
R_BASE = RB - 4 * R_CP
T_BASE = 16
LNS = T_BASE + 4 * 3072
LNP = 1088
CNT_BASE = LNS + 8 * LNP
C_X, C_B1, C_A2, C_U, C_CV, C_G, C_B2, C_A3 = [CNT_BASE + 16 * i for i in range(8)]
E_W = 53 * 272
E_BASE = RB + SLOT - 4 * E_W
assert E_BASE >= R_BASE and CNT_BASE + 128 <= R_BASE and 4 * U_CP <= CNT_BASE and RB + 3 * SLOT == 163840
W2B, Z_LDS, P2, PB = 0, 12288, R_BASE, RB
def slot_of(st): return (st + 1) % 3
SPIN = 20000

sX, sWG, sWU, sWD, sWS = "s[44:47]", "s[48:51]", "s[52:55]", "s[56:59]", "s[60:63]"
XCD, IDX, MT, FT, WAVE, TAG, W, G = "s64", "s65", "s66", "s67", "s68", "s69", "s70", "s71"
KS, I2, J2, CP, CNT = "s90", "s91", "s92", "s93", "s94"
WM, WN = "s88", "s89"
W4 = "s100"

L = []
def e(*xs):
    for x in xs:
        if isinstance(x, (list, tuple)): e(*x)
        else: L.append(x)

def vr(a, n): return "v[%d:%d]" % (a, a + n - 1)

class VM:
    def __init__(self): self.q = []
    def op(self, lab): self.q.append(lab)
    def wait(self, lab):
        idx = max(i for i, x in enumerate(self.q) if x == lab)
        n = len(self.q) - 1 - idx
        self.q = self.q[idx + 1:]
        assert n <= 63
        return "s_waitcnt vmcnt(%d)" % n
    def all(self):
        self.q = []
        return "s_waitcnt vmcnt(0)"

STAMPS = {"A": [], "B": []}
ROLE = ["AB"]
def stamp(name):
    if not DEBUG: return []
    if ROLE[0] == "AB":
        k = {"start": 0, "fin": 60, "end": 61}[name]
    else:
        lst = STAMPS[ROLE[0]]
        if name not in lst: lst.append(name)
        k = lst.index(name) + 1
        assert k < 60
    return ["s_memtime s[96:97]", "s_waitcnt lgkmcnt(0)", "v_writelane_b32 v255, s96, %d" % k]

def tag_from(v):
    return ["v_readfirstlane_b32 %s, %s" % (TAG, v), "s_mul_i32 %s, %s, 0x9E3779B1" % (TAG, TAG),
            "s_add_u32 %s, %s, 0x7F4A7C15" % (TAG, TAG)]

lab_n = [0]
def newlab(p):
    lab_n[0] += 1
    return "L_%s_%d" % (p, lab_n[0])

def check_retry(loads, tagregs, tmp):
    top, done = newlab("chk"), newlab("ok")
    o = ["s_mov_b32 %s, %d" % (CNT, SPIN), top + ":"]
    o.append("v_xor_b32 v%d, %s, v%d" % (tmp, TAG, tagregs[0]))
    for r in tagregs[1:]:
        o.append("v_xor_b32 v%d, %s, v%d" % (tmp + 1, TAG, r))
        o.append("v_or_b32 v%d, v%d, v%d" % (tmp, tmp, tmp + 1))
    o.append("v_cmp_ne_u32 vcc, 0, v%d" % tmp)
    o.append("s_nop 1")
    o.append("s_cbranch_vccz " + done)
    o.append("s_sub_u32 %s, %s, 1" % (CNT, CNT))
    o.append("s_cbranch_scc1 " + done)
    o.append("s_sleep 1")
    o += loads
    o.append("s_waitcnt vmcnt(0)")
    o.append("s_branch " + top)
    o.append(done + ":")
    return o

def lds_signal(addr, t):
    return ["v_mov_b32 v%d, %s" % (t, W4), "v_mov_b32 v%d, 1" % (t + 1), "ds_write_b32 v%d, v%d offset:%d" % (t, t + 1, addr)]

def lds_wait(addr, target, t):
    top, done = newlab("lw"), newlab("lwd")
    q = t + 2
    return ["v_mov_b32 v%d, 0" % t, "s_mov_b32 %s, 0x400000" % CNT, top + ":", "ds_read_b128 %s, v%d offset:%d" % (vr(q, 4), t, addr), "s_waitcnt lgkmcnt(0)",
            "v_and_b32 v%d, v%d, v%d" % (q, q, q + 1), "v_and_b32 v%d, v%d, v%d" % (q + 2, q + 2, q + 3), "v_and_b32 v%d, v%d, v%d" % (q, q, q + 2),
            "v_readfirstlane_b32 s95, v%d" % q, "s_cmp_lg_u32 s95, 0", "s_cbranch_scc1 " + done,
            "s_sub_u32 %s, %s, 1" % (CNT, CNT), "s_cbranch_scc0 " + top, done + ":"]

def flat(xs):
    o = []
    for x in xs:
        if isinstance(x, list): o += flat(x)
        else: o.append(x)
    return o

def merge(a, b):
    a, b = flat(a), flat(b)
    o = []; i = j = 0
    while i < len(a) or j < len(b):
        if j >= len(b) or (i < len(a) and i * len(b) <= j * len(a)): o.append(a[i]); i += 1
        else: o.append(b[j]); j += 1
    return o

def prologue():
    e("s_cmp_ge_u32 s2, 256", "s_cbranch_scc1 L_end")
    e("s_load_dwordx16 s[16:31], s[0:1], 0", "s_load_dwordx8 s[32:39], s[0:1], 64", "s_load_dwordx4 s[40:43], s[0:1], 96")
    if DEBUG or "--double" in sys.argv:
        e("v_mov_b32 v255, 0", "s_memrealtime s[98:99]")
    e("v_lshrrev_b32 v2, 6, v0", "v_and_b32 v1, 63, v0")
    e("s_and_b32 %s, s2, 7" % XCD, "s_lshr_b32 %s, s2, 3" % IDX)
    e("v_readfirstlane_b32 %s, v2" % WAVE)
    e("s_and_b32 s74, %s, 1" % XCD, "s_lshl_b32 s74, s74, 3", "s_and_b32 s75, %s, 7" % IDX, "s_add_u32 %s, s74, s75" % MT)
    e("s_lshr_b32 s74, %s, 1" % XCD, "s_lshl_b32 s74, s74, 2", "s_lshr_b32 s75, %s, 3" % IDX, "s_add_u32 %s, s74, s75" % FT)
    e("s_lshl_b32 s74, %s, 4" % MT, "s_add_u32 %s, s74, %s" % (G, FT))
    e("s_lshl_b32 s74, %s, 5" % XCD, "s_add_u32 %s, s74, %s" % (CP, IDX))
    e("s_lshl_b32 s74, %s, 2" % XCD, "s_and_b32 s75, %s, 3" % IDX, "s_add_u32 %s, s74, s75" % I2, "s_lshr_b32 %s, %s, 2" % (J2, IDX))
    e("s_lshl_b32 s74, %s, 1" % FT, "s_add_u32 s74, s74, %s" % MT, "s_and_b32 %s, s74, 7" % KS)
    e("s_and_b32 %s, %s, 3" % (W, WAVE), "s_lshr_b32 %s, %s, 1" % (WM, W), "s_and_b32 %s, %s, 1" % (WN, W), "s_lshl_b32 %s, %s, 2" % (W4, W))
    e("v_lshlrev_b32 v12, 4, v1")
    e("s_cmp_lg_u32 %s, 7" % WAVE, "s_cbranch_scc1 L_nopf")
    e("s_getpc_b64 s[76:77]", "L_pc:", "s_lshl_b32 s74, %s, 10" % IDX, "v_lshl_add_u32 v3, v1, 7, s74", "v_min_u32 v3, L_end-L_pc, v3")
    e("s_mov_b64 exec, 0xff", "global_load_dword v250, v3, s[76:77]", "s_mov_b64 exec, -1", "L_nopf:")
    e("s_mov_b32 s47, 0x20000", "s_mov_b32 s51, 0x20000", "s_mov_b32 s55, 0x20000", "s_mov_b32 s59, 0x20000", "s_mov_b32 s63, 0x20000")
    e("s_mov_b32 s50, 1409024", "s_mov_b32 s58, 1409024", "s_mov_b32 s62, %d" % WS_SIZE)
    e("s_waitcnt lgkmcnt(0)")
    e(stamp("start"))
    e("s_mov_b32 s60, s42", "s_mov_b32 s61, s43")
    e("s_add_u32 s74, s36, %d" % (256 * 2752), "s_addc_u32 s75, s37, 0")
    e("s_cmp_eq_u32 %s, 15" % FT)
    e("s_cselect_b32 s48, s36, s32", "s_cselect_b32 s49, s37, s33", "s_cselect_b32 s52, s74, s34", "s_cselect_b32 s53, s75, s35")
    e("s_cselect_b32 s46, 0, 0x200000", "s_cselect_b32 s54, %d, s50" % (256 * 2752))
    e("s_cselect_b32 s87, %s, %s" % (MT, FT))
    e("s_cselect_b32 s86, 0, %s" % KS)
    e("s_mov_b32 s44, s16", "s_mov_b32 s45, s17", "s_mov_b32 s56, s36", "s_mov_b32 s57, s37")
    e("s_cmp_ge_u32 %s, 4" % WAVE, "s_cbranch_scc1 L_B")

XA, XA2, WA, WA2 = 2, 6, 10, 11
ACC, ONEACC, FR0, FR1, ONES = 64, 160, 208, 228, 248

def cmul(dst, a, w, t):
    return ["v_pk_mul_f32 %s, %s, %s op_sel:[0,0] op_sel_hi:[0,1]" % (vr(t, 2), vr(a, 2), vr(w, 2)),
            "v_pk_fma_f32 %s, %s, %s, %s op_sel:[1,1,0] op_sel_hi:[1,0,1] neg_lo:[1,0,0]" % (vr(dst, 2), vr(a, 2), vr(w, 2), vr(t, 2))]

def wave_sums(regs, sregs):
    o = []
    for m in ("row_shr:1", "row_shr:2", "row_shr:4", "row_shr:8"):
        for r in regs: o.append("v_add_f32_dpp v%d, v%d, v%d %s row_mask:0xf bank_mask:0xf" % (r, r, r, m))
    for r in regs: o.append("v_add_f32_dpp v%d, v%d, v%d row_bcast:15 row_mask:0xa bank_mask:0xf" % (r, r, r))
    for r in regs: o.append("v_add_f32_dpp v%d, v%d, v%d row_bcast:31 row_mask:0xc bank_mask:0xf" % (r, r, r))
    o += ["v_readlane_b32 %s, v%d, 63" % (sr, r) for r, sr in zip(regs, sregs)]
    return o

def ln_ops(vm):
    o = []
    F, D, T = 160, 176, 192
    for r in range(2):
        for j in range(4):
            o += ["v_lshlrev_b32 v%d, 16, v%d" % (F + 8 * r + 2 * j, 16 + 4 * r + j), "v_and_b32 v%d, 0xffff0000, v%d" % (F + 8 * r + 2 * j + 1, 16 + 4 * r + j)]
    o += ["v_readfirstlane_b32 s4, v%d" % F, "v_readfirstlane_b32 s6, v%d" % (F + 8)]
    for j in range(4):
        for r in range(2):
            o.append("v_pk_add_f32 %s, %s, s[%d:%d] op_sel_hi:[1,0] neg_lo:[0,1] neg_hi:[0,1]" % (vr(D + 8 * r + 2 * j, 2), vr(F + 8 * r + 2 * j, 2), 4 + 2 * r, 5 + 2 * r))
    for r in range(2):
        d = D + 8 * r; t = T + 6 * r
        o += ["v_pk_add_f32 %s, %s, %s" % (vr(t, 2), vr(d, 2), vr(d + 2, 2)), "v_pk_add_f32 %s, %s, %s" % (vr(t + 2, 2), vr(d + 4, 2), vr(d + 6, 2)),
              "v_pk_mul_f32 %s, %s, %s" % (vr(t + 4, 2), vr(d, 2), vr(d, 2))]
    for j in range(1, 4):
        for r in range(2):
            d = D + 8 * r; t = T + 6 * r
            o.append("v_pk_fma_f32 %s, %s, %s, %s" % (vr(t + 4, 2), vr(d + 2 * j, 2), vr(d + 2 * j, 2), vr(t + 4, 2)))
            if j == 1: o.append("v_pk_add_f32 %s, %s, %s" % (vr(t, 2), vr(t, 2), vr(t + 2, 2)))
    for r in range(2):
        t = T + 6 * r
        o += ["v_add_f32 v%d, v%d, v%d" % (t, t, t + 1), "v_add_f32 v%d, v%d, v%d" % (t + 4, t + 4, t + 5)]
    o += wave_sums([T, T + 6, T + 4, T + 10], ["s8", "s9", "s10", "s11"])
    c = 204
    o += ["v_mov_b32 v%d, 0x3b000000" % c]
    o += ["v_mul_f32 v%d, s8, v%d" % (T, c), "v_mul_f32 v%d, s9, v%d" % (T + 1, c), "v_mul_f32 v%d, s10, v%d" % (T + 2, c), "v_mul_f32 v%d, s11, v%d" % (T + 3, c)]
    o += ["v_fma_f32 v%d, -v%d, v%d, v%d" % (T + 2, T, T, T + 2), "v_fma_f32 v%d, -v%d, v%d, v%d" % (T + 3, T + 1, T + 1, T + 3)]
    o += ["v_add_f32 v%d, s4, v%d" % (T, T), "v_add_f32 v%d, s6, v%d" % (T + 1, T + 1)]
    o += ["v_max_f32 v%d, 0, v%d" % (T + 2, T + 2), "v_max_f32 v%d, 0, v%d" % (T + 3, T + 3)]
    MB, M0, S0, S1, RI = T + 4, T + 6, T + 10, T + 11, D
    o += ["v_cvt_pk_bf16_f32 v%d, v%d, v%d" % (MB, T, T + 1), "v_cvt_pk_bf16_f32 v%d, v%d, v%d" % (T + 2, T + 2, T + 3)]
    o += ["v_lshlrev_b32 v%d, 16, v%d" % (M0, MB), "v_and_b32 v%d, 0xffff0000, v%d" % (M0 + 2, MB)]
    o += ["v_lshlrev_b32 v%d, 16, v%d" % (S0, T + 2), "v_and_b32 v%d, 0xffff0000, v%d" % (S1, T + 2)]
    o += ["v_add_f32 v%d, %s, v%d" % (S0, hx(f2u(1e-5)), S0), "v_add_f32 v%d, %s, v%d" % (S1, hx(f2u(1e-5)), S1)]
    sub = [["v_pk_add_f32 %s, %s, %s op_sel_hi:[1,0] neg_lo:[0,1] neg_hi:[0,1]" % (vr(F + 8 * r + 2 * j, 2), vr(F + 8 * r + 2 * j, 2), vr(M0 + 2 * r, 2)) for j in range(4)] for r in range(2)]
    o += ["v_cvt_pk_bf16_f32 v%d, v%d, v%d" % (T + 2, S0, S1)] + sub[0][:2]
    o += ["v_lshlrev_b32 v%d, 16, v%d" % (S0, T + 2), "v_and_b32 v%d, 0xffff0000, v%d" % (S1, T + 2)] + sub[0][2:]
    o += ["v_sqrt_f32 v%d, v%d" % (S0, S0), "v_sqrt_f32 v%d, v%d" % (S1, S1)] + sub[1][:2]
    o += ["v_cvt_pk_bf16_f32 v%d, v%d, v%d" % (T + 2, S0, S1)] + sub[1][2:]
    o += ["v_lshlrev_b32 v%d, 16, v%d" % (S0, T + 2), "v_and_b32 v%d, 0xffff0000, v%d" % (S1, T + 2)]
    o += ["v_rcp_f32 v%d, v%d" % (RI, S0), "v_rcp_f32 v%d, v%d" % (RI + 2, S1)]
    for r in range(2):
        for j in range(4): o.append("v_cvt_pk_bf16_f32 v%d, v%d, v%d" % (16 + 4 * r + j, F + 8 * r + 2 * j, F + 8 * r + 2 * j + 1))
    for r in range(2):
        for j in range(4):
            o += ["v_lshlrev_b32 v%d, 16, v%d" % (F + 8 * r + 2 * j, 16 + 4 * r + j), "v_and_b32 v%d, 0xffff0000, v%d" % (F + 8 * r + 2 * j + 1, 16 + 4 * r + j)]
    for r in range(2):
        for j in range(4): o.append("v_pk_mul_f32 %s, %s, %s op_sel_hi:[1,0]" % (vr(F + 8 * r + 2 * j, 2), vr(F + 8 * r + 2 * j, 2), vr(RI + 2 * r, 2)))
    for r in range(2):
        for j in range(4): o.append("v_cvt_pk_bf16_f32 v%d, v%d, v%d" % (16 + 4 * r + j, F + 8 * r + 2 * j, F + 8 * r + 2 * j + 1))
    o += ["s_mul_i32 s4, %s, %d" % (W, 2 * LNP), "s_add_u32 s4, s4, %d" % LNS, "v_add_u32 v%d, s4, v12" % c]
    o += ["ds_write_b128 v%d, v[16:19]" % c, "ds_write_b128 v%d, v[20:23] offset:%d" % (c, LNP)]
    o += tag_from("v29")
    o += ["v_xor_b32 v%d, 0x80008000, v%d" % (MB, MB), "v_and_b32 v%d, 0xffff, v%d" % (T, MB), "v_or_b32 v%d, v%d, v%d" % (T, T, S0),
          "v_lshrrev_b32 v%d, 16, v%d" % (T + 1, MB), "v_or_b32 v%d, v%d, v%d" % (T + 1, T + 1, S1),
          "v_cmp_eq_u32 vcc, 0, v1", "v_lshlrev_b32 v%d, 3, v1" % (T + 2), "v_cndmask_b32 v%d, v%d, v%d, vcc" % (T, T + 1, T), "v_mov_b32 v%d, %s" % (T + 1, TAG),
          "s_lshl_b32 s4, %s, 6" % G, "s_lshl_b32 s5, %s, 4" % W, "s_add_u32 s4, s4, s5", "s_add_u32 s4, s4, %d" % WS_ST]
    o.append(("s_mov_b64 exec, 3", "buffer_store_dwordx2 %s, v%d, %s, s4 offen sc1" % (vr(T, 2), T + 2, sWS), "s_mov_b64 exec, -1"))
    vm.op("st")
    return o

def kgen_ops():
    o = []
    for i in range(5): o.append("v_lshlrev_b32 v%d, 16, v%d" % (24 + i, 24 + i))
    o += ["v_mul_f32 v28, %s, v28" % LOG2E, "v_mul_f32 v24, %s, v24" % LOG2E, "v_exp_f32 v28, v28", "v_exp_f32 v24, v24",
          "v_cvt_pk_bf16_f32 v24, v24, v28", "v_and_b32 v28, 0xffff0000, v24", "v_lshlrev_b32 v24, 16, v24",
          "v_mul_f32 v24, v24, v28", "v_mul_f32 v25, v25, v28",
          "v_mul_f32 v24, %s, v24" % hx(f2u(-1.4426950408889634)), "v_mul_f32 v25, %s, v25" % INV2PI, "v_add_f32 v28, v28, v28"]
    EA = 64
    o += ["v_mul_f32 v%d, v26, v28" % EA, "v_mul_f32 v%d, v27, v28" % (EA + 1)]
    Z1, Z8, Z256, Z32 = 30, 32, 34, 36
    zs = ((Z8, 8.0), (Z1, 1.0), (Z32, 32.0), (Z256, 256.0))
    for k, (z, p) in enumerate(zs):
        t = 116 + 4 * k
        o += ["v_mul_f32 v%d, %s, v24" % (t, hx(f2u(p))), "v_mul_f32 v%d, %s, v25" % (t + 1, hx(f2u(p)))]
    for k, (z, p) in enumerate(zs):
        t = 116 + 4 * k
        o += ["v_rndne_f32 v%d, v%d" % (t + 2, t + 1), "v_exp_f32 v%d, v%d" % (t, t)]
    for k, (z, p) in enumerate(zs):
        t = 116 + 4 * k
        o += ["v_sub_f32 v%d, v%d, v%d" % (t + 1, t + 1, t + 2)]
    for k, (z, p) in enumerate(zs):
        t = 116 + 4 * k
        o += ["v_cos_f32 v%d, v%d" % (z, t + 1), "v_sin_f32 v%d, v%d" % (z + 1, t + 1)]
    for k, (z, p) in enumerate(zs):
        t = 116 + 4 * k
        o += ["v_pk_mul_f32 %s, %s, %s op_sel_hi:[1,0]" % (vr(z, 2), vr(z, 2), vr(t, 2))]
    def wr(row, src, neg):
        t = 132 + ((row - 21) % 4 if not neg else (4 if row in (0, 1, 2, 3, 4, 5, 6, 7, 13, 15) else 5))
        return ["v_cvt_pk_bf16_f32 v%d, v%d, %sv%d" % (t, src, "-" if neg else "", src + 1), "ds_write_addtid_b32 v%d offset:%d" % (t, 4096 + row * 272)]
    plan = [(i, i - 1, Z1) for i in range(1, 8)] + [(13, 10, Z256), (15, 13, Z256)]
    plan2 = [(8, 0, Z256), (12, 8, Z256), (14, 12, Z256), (9, 2, Z256), (16, 14, Z256), (10, 4, Z256), (17, 16, Z256), (11, 6, Z256), (18, 17, Z256), (19, 18, Z256), (20, 19, Z256)]
    ca = [wr(0, EA, True)] + [cmul(EA + 2 * d, EA + 2 * s_, z, 54) + wr(d, EA + 2 * d, True) for d, s_, z in plan]
    cb = [cmul(EA + 2 * d, EA + 2 * s_, z, 56) + wr(d, EA + 2 * d, True) for d, s_, z in plan2]
    C = [38, 40, 42, 44]
    ch = [[], [], [], []]
    ch[0] = [["v_mov_b32 v140, 0x00003f80", "ds_write_addtid_b32 v140 offset:%d" % (4096 + 21 * 272)] + wr(25, Z32, False)]
    ch[1] = [wr(22, Z8, False)]
    ch[2] = [cmul(C[2], Z8, Z8, 50) + wr(23, C[2], False)]
    ch[3] = [[], cmul(C[3], C[2], Z8, 52) + wr(24, C[3], False)]
    for b in range(8, 32, 4): ch[0].append(cmul(C[0], Z32 if b == 8 else C[0], Z32, 46) + wr(21 + b, C[0], False))
    for b in range(5, 32, 4): ch[1].append(cmul(C[1], Z8 if b == 5 else C[1], Z32, 48) + wr(21 + b, C[1], False))
    ch[2].append([])
    for b in range(6, 32, 4): ch[2].append(cmul(C[2], C[2], Z32, 50) + wr(21 + b, C[2], False))
    for b in range(7, 32, 4): ch[3].append(cmul(C[3], C[3], Z32, 52) + wr(21 + b, C[3], False))
    chains = [ca, cb] + ch
    pend = []
    for i in range(max(len(c) for c in chains)):
        grp = [c[i] for c in chains if i < len(c) and c[i]]
        va, ds = [], []
        for k in range(max(len(x) for x in grp)):
            for x in grp:
                if k < len(x): (ds if x[k].startswith("ds_") else va).append(x[k])
        ncv = len([x for x in va if not x.startswith("v_pk")])
        npk = len(va) - ncv
        if npk >= len(pend) and pend: o += interleave(va[:npk], pend) + va[npk:]
        else: o += pend + va
        pend = ds
    o += pend
    return o

def a_p0():
    vm = VM()
    e("s_lshl_b32 s74, %s, 9" % CP, "s_lshl_b32 s75, %s, 7" % W, "s_add_u32 s74, s74, s75", "v_lshl_add_u32 v14, v1, 1, s74")
    for i in range(4): e("global_load_ushort v%d, v14, s[%d:%d]" % (24 + i, 18 + 2 * i, 19 + 2 * i))
    e("s_lshl_b32 s74, %s, 2" % CP, "s_lshl_b32 s75, %s, 1" % WM, "s_add_u32 s74, s74, s75", "v_mov_b32 v15, s74")
    e("global_load_ushort v28, v15, s[26:27]")
    e("buffer_load_dword v29, off, %s, 0 sc1" % sWS)
    e("v_and_b32 v30, 31, v1", "v_lshrrev_b32 v31, 5, v1")
    e("v_bfe_u32 v32, v1, 1, 3")
    e("s_lshl_b32 s74, %s, 13" % WM, "s_add_u32 s74, s74, %d" % RB, "v_lshl_add_u32 v33, v30, 7, s74")
    for s in range(4):
        e("v_add_u32 v34, %d, v31" % (2 * s), "v_xor_b32 v34, v34, v32", "v_lshl_add_u32 v%d, v34, 4, v33" % (XA + s),
          "v_add_u32 v%d, %d, v%d" % (XA2 + s, 2 * SLOT, XA + s))
    e("v_bfe_u32 v34, v1, 4, 1", "v_mul_u32_u24 v34, %d, v34" % WMAT)
    e("v_bfe_u32 v35, v1, 2, 2", "v_lshl_add_u32 v35, v31, 3, v35", "v_mul_u32_u24 v35, 192, v35")
    e("v_and_b32 v36, 3, v1", "v_lshlrev_b32 v36, 3, v36", "v_add3_u32 v34, v34, v35, v36")
    e("s_mul_i32 s74, %s, 96" % WN, "s_add_u32 s74, s74, %d" % (RB + WOFF), "v_add_u32 v%d, s74, v34" % WA, "v_add_u32 v%d, %d, v%d" % (WA2, 2 * SLOT, WA))
    for i in range(4): e("v_mov_b32 v%d, 0x3f803f80" % (ONES + i))
    e("s_mul_i32 s74, %s, %d" % (W, E_W), "s_add_u32 s74, s74, %d" % E_BASE, "s_sub_u32 m0, s74, 4096")
    e("v_mul_u32_u24 v14, 272, v30", "v_lshl_add_u32 v14, v31, 4, v14", "v_add_u32 v14, s74, v14")
    e("s_mul_i32 s75, %s, 3072" % W, "s_add_u32 s75, s75, %d" % T_BASE)
    TA = 58
    e("v_lshlrev_b32 v%d, 5, v30" % TA, "v_lshl_add_u32 v%d, v31, 4, v%d" % (TA, TA), "v_add_u32 v%d, s75, v%d" % (TA, TA))
    e("v_cmp_eq_u32 vcc, 0, v31")
    e("v_lshlrev_b32 v34, 4, v30", "v_add_u32 v34, 1024, v34", "v_lshlrev_b32 v35, 3, v30", "v_add_u32 v35, 1536, v35")
    e("v_add_u32 v36, 8, v34", "v_add_u32 v37, 256, v35")
    e("v_cndmask_b32 v34, v35, v34, vcc", "v_cndmask_b32 v35, v37, v36, vcc")
    e("v_add_u32 v%d, s75, v34" % (TA + 1), "v_add_u32 v%d, s75, v35" % (TA + 2))
    e("v_lshlrev_b32 v34, 2, v30", "v_lshl_add_u32 v34, v31, 9, v34", "v_add_u32 v%d, s75, v34" % (TA + 3))
    if "--prioA" in sys.argv: e("s_setprio 3")
    e("s_waitcnt vmcnt(0)")
    e(stamp("lnld"))
    e(kgen_ops())
    e(stamp("kg_chain"))
    e("s_waitcnt lgkmcnt(0)")
    for s in range(8):
        e("ds_read_b128 %s, v14 offset:%d" % (vr(64 + 8 * s, 4), 32 * s), "ds_read_b128 %s, v14 offset:%d" % (vr(68 + 8 * s, 4), 21 * 272 + 32 * s))
    e(tag_from("v29"))
    for s in range(8):
        e("s_waitcnt lgkmcnt(%d)" % (14 - 2 * s))
        e("v_mfma_f32_32x32x16_bf16 v[32:47], %s, %s, %s" % (vr(64 + 8 * s, 4), vr(68 + 8 * s, 4), "0" if s == 0 else "v[32:47]"))
    e("ds_write_b128 v%d, v[32:35]" % TA, "ds_write_b64 v%d, v[36:37]" % (TA + 1), "ds_write_b64 v%d, v[38:39]" % (TA + 2))
    for i in range(4): e("ds_write_b32 v%d, v%d offset:%d" % (TA + 3, 40 + i, 2048 + 128 * i))
    e(stamp("kgen"))
    return vm

def g1_reads(stage, s, buf):
    slot = slot_of(stage)
    o = []
    for b in range(2):
        if slot < 2: o.append("ds_read_b128 %s, v%d offset:%d" % (vr(buf + 4 * b, 4), XA + s, slot * SLOT + 4096 * b))
        else: o.append("ds_read_b128 %s, v%d offset:%d" % (vr(buf + 4 * b, 4), XA2 + s, 4096 * b))
    for a in range(3):
        for q in range(2):
            off = (16 * s + 4 * q) * 192 + 32 * a
            if slot < 2: o.append("ds_read_b64_tr_b16 %s, v%d offset:%d" % (vr(buf + 8 + 4 * a + 2 * q, 2), WA, slot * SLOT + off))
            else: o.append("ds_read_b64_tr_b16 %s, v%d offset:%d" % (vr(buf + 8 + 4 * a + 2 * q, 2), WA2, off))
    return [o[0], o[2], o[3], o[1], o[4], o[5], o[6], o[7]]

def g1_mfmas(buf, first, ones):
    o = []
    for a in range(3):
        for b in range(2):
            acc = ACC + 16 * (2 * a + b)
            o.append("v_mfma_f32_32x32x16_bf16 %s, %s, %s, %s" % (vr(acc, 16), vr(buf + 8 + 4 * a, 4), vr(buf + 4 * b, 4), "0" if first else vr(acc, 16)))
        if ones:
            acc = ONEACC + 16 * a
            o.append("v_mfma_f32_32x32x16_bf16 %s, %s, %s, %s" % (vr(acc, 16), vr(ONES, 4), vr(buf + 8 + 4 * a, 4), "0" if first else vr(acc, 16)))
    return o

def wd_dma(t0, region, n0, cnt, vm, lab, vo):
    o = []
    for i in range(cnt):
        o.append("s_add_u32 m0, s76, %d" % (region + i * 1024))
        o.append("s_add_u32 s78, s77, %d" % ((16 * t0 + 8 * i) * 1024))
        o.append("buffer_load_dwordx4 v%d, %s, s78 offen lds" % (vo, sWD))
        vm.op(lab)
    return o

def wd_setup(cnt):
    return ["s_mul_i32 s76, %s, %d" % (W, cnt * 1024), "s_lshl_b32 s77, s76, 3", "s_lshl_b32 s78, %s, 7" % J2, "s_add_u32 s77, s77, s78"]

def wd_voff(v, t):
    return ["v_lshrrev_b32 v%d, 3, v1" % t, "v_bfe_u32 v%d, v1, 4, 1" % (t + 1), "v_lshlrev_b32 v%d, 2, v%d" % (t + 1, t + 1),
            "v_and_b32 v%d, 7, v1" % v, "v_xor_b32 v%d, v%d, v%d" % (v, v, t + 1), "v_lshlrev_b32 v%d, 4, v%d" % (v, v),
            "v_lshl_add_u32 v%d, v%d, 10, v%d" % (v, t, v)]

def wd_loc(t):
    if t < 60: return RB + (t // 20) * SLOT + (t % 20) * 2048
    if t < 80: return RB + (t - 60) * 2048
    return W2B + (t - 80) * 2048

def final_xload(vm, dst, t):
    o = ["v_lshrrev_b32 v%d, 3, v0" % t, "v_and_b32 v%d, 7, v0" % (t + 1), "v_lshlrev_b32 v%d, 4, v%d" % (t + 1, t + 1),
         "v_lshl_add_u32 v%d, v%d, 10, v%d" % (t, t, t + 1),
         "s_lshl_b32 s74, %s, 16" % I2, "s_lshl_b32 s75, %s, 7" % J2, "s_add_u32 s74, s74, s75", "v_add_u32 v%d, s74, v%d" % (t, t),
         "global_load_dwordx4 %s, v%d, s[16:17]" % (vr(dst, 4), t)]
    vm.op("xf")
    return o

XF, XFA = 56, 60

def a_main(vm):
    bufs = (FR0, FR1)
    prev = None
    n = 0
    gl = []
    CA, CB, KC = 160, 172, 36
    prep = ["s_mov_b32 s74, 0x07060302"]
    for a in range(3): prep += ["v_add_f32 v%d, v%d, v%d" % (20 + a, 20 + a, 24 + a), "v_add_f32 v%d, v%d, v%d" % (28 + a, 28 + a, 32 + a)]
    for a in range(3): prep += ["v_add_f32 v%d, v%d, v%d" % (20 + a, 20 + a, 28 + a)]
    for a in range(3):
        prep += ["v_and_b32 v24, 0xffff0000, v%d" % (20 + a), "v_sub_f32 v24, v%d, v24" % (20 + a), "v_and_b32 v25, 0xffff0000, v24", "v_sub_f32 v25, v24, v25",
                 "v_perm_b32 v%d, v24, v%d, s74" % (CA + 4 * a, 20 + a), "v_lshrrev_b32 v%d, 16, v25" % (CA + 4 * a + 1)]
    for b in range(2):
        sv = 16 + 2 * b
        prep += ["v_and_b32 v%d, 0xffff, v%d" % (CB + 4 * b + 1, sv), "v_lshl_or_b32 v%d, v%d, 16, v%d" % (CB + 4 * b, sv, CB + 4 * b + 1),
                 "v_and_b32 v%d, 0xffff0000, v%d" % (sv, sv), "v_rcp_f32 v%d, v%d" % (sv + 1, sv)]
    for b in range(2):
        sv = 16 + 2 * b
        prep += ["v_mul_f32 v%d, v%d, v%d" % (KC + 4 * b + 2, sv, sv), "v_mul_f32 v%d, %s, v%d" % (KC + 4 * b, hx(f2u(GK1)), sv + 1),
                 "v_mul_f32 v%d, v%d, v%d" % (KC + 4 * b + 1, sv + 1, sv + 1), "v_mul_f32 v%d, v%d, v%d" % (KC + 4 * b + 1, KC + 4 * b + 1, sv + 1),
                 "v_mul_f32 v%d, %s, v%d" % (KC + 4 * b + 1, hx(f2u(GK2)), KC + 4 * b + 1)]
    hb = ["s_lshl_b32 s84, %s, 1" % MT, "s_add_u32 s84, s84, %s" % WM, "s_mul_i32 s84, s84, 172", "s_mul_i32 s85, %s, 6" % FT, "s_mul_i32 s78, %s, 3" % WN,
          "s_add_u32 s85, s85, s78", "s_add_u32 s84, s84, s85", "s_lshl_b32 s84, s84, 10", "s_add_u32 s84, s84, %d" % WS_H]
    WDV, WB = 13, 50
    g2a = wd_voff(WDV, 14) + \
        ["v_bfe_u32 v14, v1, 2, 2", "v_lshrrev_b32 v15, 5, v1", "v_lshl_add_u32 v15, v15, 2, v14", "v_lshrrev_b32 v14, 1, v14", "v_lshlrev_b32 v14, 2, v14",
         "v_bfe_u32 v62, v1, 4, 1", "v_lshlrev_b32 v62, 1, v62", "v_bfe_u32 v63, v1, 1, 1", "v_add_u32 v62, v62, v63", "v_xor_b32 v62, v62, v14",
         "v_lshlrev_b32 v62, 4, v62", "v_lshl_add_u32 v62, v15, 7, v62", "v_and_b32 v63, 1, v1", "v_lshl_add_u32 v62, v63, 3, v62",
         "s_lshl_b32 s74, %s, 11" % WN, "v_add_u32 v%d, s74, v62" % WB, "v_xor_b32 v%d, 64, v%d" % (WB + 1, WB)]
    for k in (1, 2):
        g2a += ["v_add_u32 v%d, %d, v%d" % (WB + 2 * k, 65536 * k, WB), "v_add_u32 v%d, %d, v%d" % (WB + 2 * k + 1, 65536 * k, WB + 1)]
    for st in range(8):
        e("s_barrier")
        e(stamp("st%d" % st))
        for s in range(4):
            rd = g1_reads(st, s, bufs[n & 1])
            extra = []
            if st == 1 and s == 2:
                extra = ["v_mov_b32 v44, v%d" % ONEACC, "v_mov_b32 v45, v%d" % (ONEACC + 16), "v_mov_b32 v46, v%d" % (ONEACC + 32), "v_mov_b32 v47, %s" % TAG,
                         "s_lshr_b32 s74, %s, 3" % MT, "s_lshl_b32 s74, s74, 4", "s_add_u32 s74, s74, %s" % FT, "s_lshl_b32 s74, s74, 1", "s_add_u32 s74, s74, %s" % WN,
                         "s_lshl_b32 s80, s74, 12", "s_add_u32 s80, s80, %d" % WS_CS, "s_lshl_b32 s75, %s, 9" % KS, "s_add_u32 s74, s80, s75",
                         "v_and_b32 v48, 0x1ff, v12",
                         "buffer_store_dwordx4 v[44:47], v48, %s, s74 offen sc1" % sWS]
                vm.op("cs")
            if st == 2: extra = g2a[len(g2a) * s // 4: len(g2a) * (s + 1) // 4]
            if st == 3 and s == 0:
                extra = ["v_mov_b32 v%d, 0" % r for r in (CA + 2, CA + 3, CA + 6, CA + 7, CA + 10, CA + 11, CB + 2, CB + 3, CB + 6, CB + 7)]
            if st == 3 and s == 1: extra = hb
            if st == 3 and s == 2:
                extra = ["v_lshrrev_b32 v49, 5, v1", "v_lshl_add_u32 v49, v49, 11, v48", "v_lshrrev_b32 v48, 1, v48",
                         "s_lshl_b32 s81, %s, 10" % MT, "s_lshl_b32 s75, %s, 9" % WM, "s_add_u32 s81, s81, s75", "s_add_u32 s81, s81, %d" % WS_ST]
                gl = ["buffer_load_dwordx2 v[16:17], v48, %s, s81 offen sc1" % sWS, "buffer_load_dwordx2 v[18:19], v48, %s, s81 offen offset:256 sc1" % sWS]
                gl += ["buffer_load_dwordx4 %s, v49, %s, s80 offen offset:%d sc1" % (vr(20 + 4 * p, 4), sWS, 512 * p) for p in range(4)]
            if st == 6 and s == 0: extra = gl[:3]
            if st == 6 and s == 1: extra = gl[3:]
            if st == 7 and s == 2:
                e(vm.all(), check_retry(gl, [17, 19, 23, 27, 31, 35], 44))
                extra = prep[:22]
            if st == 7 and s == 3: extra = prep[22:40]
            if prev is None: e(rd)
            else:
                k = len(rd)
                e(interleave(prev[:3], rd, per=3), interleave(prev[3:], extra))
            e("s_waitcnt lgkmcnt(0)")
            prev = g1_mfmas(bufs[n & 1], st == 0 and s == 0, st == 0)
            n += 1
    e(interleave(prev, prep[40:]))
    for a in range(3):
        for b in range(2):
            acc = ACC + 16 * (2 * a + b)
            e("v_mfma_f32_32x32x16_bf16 %s, %s, %s, %s" % (vr(acc, 16), vr(CA + 4 * a, 4), vr(CB + 4 * b, 4), vr(acc, 16)))
    e(stamp("loopend"))
    for a in range(3):
        skip = newlab("skiph")
        e("s_cmp_ge_u32 s85, %d" % (86 - a), "s_cbranch_scc1 " + skip)
        seq = []
        for b in range(2):
            acc = ACC + 16 * (2 * a + b)
            k = vr(KC + 4 * b, 2); s2 = vr(KC + 4 * b + 2, 2)
            Q = 180 + 16 * b; P = 188 + 16 * b; O = 212 + 4 * ((2 * a + b) % 4)
            o = []
            for j in range(4): o.append("v_pk_mul_f32 %s, %s, %s" % (vr(Q + 2 * j, 2), vr(acc + 2 * j, 2), vr(acc + 2 * j, 2)))
            for j in range(4): o.append("v_pk_fma_f32 %s, %s, %s, %s op_sel:[0,1,0] op_sel_hi:[1,1,0]" % (vr(Q + 2 * j, 2), vr(Q + 2 * j, 2), k, k))
            for j in range(4): o.append("v_pk_mul_f32 %s, %s, %s" % (vr(Q + 2 * j, 2), vr(Q + 2 * j, 2), vr(acc + 2 * j, 2)))
            for j in range(8): o.append("v_exp_f32 v%d, v%d" % (Q + j, Q + j))
            for j in range(4): o.append("v_pk_mul_f32 %s, %s, %s" % (vr(P + 2 * j, 2), vr(acc + 2 * j, 2), vr(acc + 8 + 2 * j, 2)))
            for j in range(4): o.append("v_pk_fma_f32 %s, %s, %s, %s op_sel:[0,0,0] op_sel_hi:[1,0,0]" % (vr(Q + 2 * j, 2), vr(Q + 2 * j, 2), s2, s2))
            for j in range(8): o.append("v_rcp_f32 v%d, v%d" % (Q + j, Q + j))
            for j in range(4): o.append("v_pk_mul_f32 %s, %s, %s" % (vr(P + 2 * j, 2), vr(P + 2 * j, 2), vr(Q + 2 * j, 2)))
            for j in range(4): o.append("v_cvt_pk_bf16_f32 v%d, v%d, v%d" % (O + j, P + 2 * j, P + 2 * j + 1))
            o.append(("s_add_u32 s78, s84, %d" % (b * 86 * 1024), "buffer_store_dwordx4 %s, v12, %s, s78 offen offset:%d sc1" % (vr(O, 4), sWS, a * 1024)))
            seq.append(o)
        e(merge(seq[0], seq[1]))
        e(skip + ":")
    vm.op("h")
    e(stamp("gelu"))
    e(lds_signal(C_G, 14), lds_wait(C_G, 4, 14))
    e(wd_setup(10), wd_dma(40, wd_loc(40), 0, 10, vm, "1c", WDV))
    def wd_reads(jj, dst):
        o = []
        for dt in range(2):
            for q in range(2):
                a = wd_loc(2 * jj) + 1024 * q
                o.append("ds_read_b64_tr_b16 %s, v%d offset:%d" % (vr(dst + 4 * dt + 2 * q, 2), WB + 2 * (a >> 16) + dt, a & 0xffff))
        return o
    PRE = 96
    e(lds_wait(C_B1, 4, 14))
    e(stamp("b1ok"))
    for jj in range(10): e(wd_reads(jj, PRE + 8 * jj))
    e("s_lshl_b32 s74, %s, 1" % MT, "s_add_u32 s74, s74, %s" % WM, "s_lshl_b32 s74, s74, 5", "s_lshl_b32 s75, %s, 1" % FT, "s_add_u32 s74, s74, s75",
      "s_add_u32 s74, s74, %s" % WN, "s_lshl_b32 s74, s74, 7", "s_add_u32 s74, s74, %d" % WS_F4, "v_mov_b32 v20, %s" % TAG)
    e("s_waitcnt lgkmcnt(0)")
    e(lds_signal(C_A2, 14))
    e(vm.wait("h"))
    e("s_mov_b64 exec, 1", "buffer_store_dword v20, off, %s, s74 sc1" % sWS, "s_mov_b64 exec, -1"); vm.op("f4")
    e(stamp("hack"))
    e(lds_wait(C_A2, 4, 14))
    e(wd_dma(60, wd_loc(60), 0, 10, vm, "2a", WDV))
    e(final_xload(vm, XF, XFA))
    e("v_min_u32 v14, 28, v1", "v_lshlrev_b32 v14, 7, v14", "s_lshl_b32 s82, %s, 12" % I2, "s_add_u32 s82, s82, %d" % WS_F4)
    pl = ["buffer_load_dword v15, v14, %s, s82 offen sc1" % sWS]
    e(pl)
    A2 = 64; HB = 176; NH = 12; WF = (224, 232)
    e("s_lshl_b32 s74, %s, 1" % I2, "s_add_u32 s74, s74, %s" % WM, "s_mul_i32 s74, s74, 86", "s_add_u32 s74, s74, %s" % WN, "s_lshl_b32 s83, s74, 10",
      "s_add_u32 s83, s83, %d" % WS_H)
    e("v_and_b32 v18, 31, v1", "v_mul_u32_u24 v18, 272, v18", "v_lshrrev_b32 v19, 5, v1", "v_lshl_add_u32 v18, v19, 4, v18")
    e("s_mul_i32 s74, %s, %d" % (WN, 64 * 272), "s_mul_i32 s75, %s, %d" % (WM, 32 * 272), "s_add_u32 s74, s74, s75", "s_add_u32 s74, s74, %d" % PB, "v_add_u32 v18, s74, v18")
    e(vm.all())
    e(check_retry(pl, [15], 16))
    e(stamp("hpoll"))
    def hload(jj):
        vm.op("h%d" % jj)
        o = []
        if jj % 2 == 0 and jj > 0: o.append("s_add_u32 s83, s83, 4096")
        o.append("buffer_load_dwordx4 %s, v12, %s, s83 offen offset:%d sc1" % (vr(HB + 4 * (jj % NH), 4), sWS, 2048 * (jj & 1)))
        return o
    PD = NH - 1
    for jj in range(PD): e(hload(jj))
    e(lds_signal(C_A3, 20))
    for jj in range(43):
        if jj == 9: e(lds_wait(C_B2, 4, 20), lds_wait(C_A3, 4, 20))
        if jj == 40:
            e("s_barrier"); e(stamp("b10"))
            e(wd_reads(jj, WF[jj & 1]))
        wf = PRE + 8 * jj if jj < 10 else WF[jj & 1]
        e(vm.wait("h%d" % jj).replace("s_waitcnt", "s_waitcnt lgkmcnt(0)") if jj >= 10 else vm.wait("h%d" % jj))
        if jj == 1: e(stamp("h0"))
        if jj == 39: e(stamp("h39"))
        hb_ = vr(HB + 4 * (jj % NH), 4)
        e("v_mfma_f32_32x32x16_bf16 %s, %s, %s, %s" % (vr(A2, 16), vr(wf, 4), hb_, "0" if jj == 0 else vr(A2, 16)))
        if jj + 1 < 43 and jj + 1 >= 10 and jj + 1 != 40: e(wd_reads(jj + 1, WF[(jj + 1) & 1]))
        if jj + PD < 43: e(hload(jj + PD))
        e("v_mfma_f32_32x32x16_bf16 %s, %s, %s, %s" % (vr(A2 + 16, 16), vr(wf + 4, 4), hb_, "0" if jj == 0 else vr(A2 + 16, 16)))
    e(stamp("g2end"))
    for dt in range(2):
        for jj in range(4): e("ds_write_b128 v18, %s offset:%d" % (vr(A2 + 16 * dt + 4 * jj, 4), 128 * dt + 32 * jj))
    e("s_waitcnt lgkmcnt(0)")
    e("s_branch L_final")

VX0, VX1, VW = 2, 3, 4
KD_ = "s86"
def stage_dma(st, vm):
    slot = RB + slot_of(st) * SLOT
    o = ["s_lshl_b32 s78, %s, 7" % KD_, "s_add_u32 s78, s78, s84", "s_mul_i32 s79, %s, %d" % (KD_, 64 * 2752), "s_add_u32 s79, s79, s85",
         "s_add_u32 %s, %s, 1" % (KD_, KD_), "s_and_b32 %s, %s, 7" % (KD_, KD_)]
    for i in range(4):
        g = ["s_add_u32 m0, s80, %d" % (slot + 1024 * i)]
        if i: g.append("s_add_u32 s78, s78, 8192")
        g.append("buffer_load_dwordx4 v%d, %s, s78 offen lds" % (VX0 + (i & 1), sX)); vm.op("st%d" % st)
        o.append(tuple(g))
    for i in range(3):
        for m, srd in enumerate((sWG, sWU)):
            o.append(("s_add_u32 m0, s81, %d" % (slot + WOFF + m * WMAT + 1024 * i), "buffer_load_dwordx4 v%d, %s, s79 offen lds" % (VW + i, srd)))
            vm.op("st%d" % st)
    return o

def b_path():
    vm = VM()
    e("L_B:")
    e("s_lshl_b32 s74, %s, 13" % G, "s_lshl_b32 s75, %s, 11" % W, "s_add_u32 s74, s74, s75", "v_add_u32 v13, s74, v12")
    e("global_load_dwordx4 v[16:19], v13, s[16:17]", "global_load_dwordx4 v[20:23], v13, s[16:17] offset:1024")
    vm.op("ln"); vm.op("ln")
    e("v_lshrrev_b32 v210, 3, v1", "v_lshrrev_b32 v211, 4, v1", "v_and_b32 v212, 7, v1", "v_xor_b32 v211, v211, v212", "v_lshlrev_b32 v211, 4, v211",
      "v_lshl_add_u32 v%d, v210, 10, v211" % VX0, "v_xor_b32 v%d, 64, v%d" % (VX1, VX0))
    e("s_waitcnt vmcnt(0)" if False else "s_nop 0")
    for i in range(3):
        e("v_add_u32 v210, %d, v1" % (64 * i), "v_mul_u32_u24 v211, 5462, v210", "v_lshrrev_b32 v211, 16, v211", "v_mul_u32_u24 v212, 12, v211",
          "v_sub_u32 v212, v210, v212", "v_mul_u32_u24 v211, 2752, v211", "v_lshl_add_u32 v%d, v212, 4, v211" % (VW + i))
    e("s_lshl_b32 s80, %s, 12" % W, "s_mul_i32 s81, %s, 3072" % W)
    e("s_lshl_b32 s84, %s, 17" % MT, "s_lshl_b32 s74, %s, 15" % W, "s_add_u32 s84, s84, s74")
    e("s_mul_i32 s85, s87, 192", "s_mul_i32 s74, %s, %d" % (W, 16 * 2752), "s_add_u32 s85, s85, s74")
    e("buffer_load_dword v29, off, %s, 0 sc1" % sWS); vm.op("ep")
    e("s_lshl_b32 s74, %s, 2" % CP, "s_lshl_b32 s75, %s, 1" % WM, "s_add_u32 s74, s74, s75", "v_mov_b32 v15, s74")
    e("global_load_ushort v28, v15, s[28:29]"); vm.op("dsk")
    e(stage_dma(0, vm))
    WDV, VK, VU = 7, 8, 9
    e(wd_voff(WDV, 210))
    e("v_min_u32 v210, 31, v1", "v_lshlrev_b32 v210, 2, v210", "v_add_u32 v210, %d, v210" % CNT_BASE, "v_mov_b32 v211, 0", "ds_write_b32 v210, v211")
    e("v_and_b32 v210, 1, v1", "v_mul_u32_u24 v210, %d, v210" % R_CP, "v_bfe_u32 v212, v1, 1, 3", "v_sub_u32 v212, 7, v212", "v_lshl_add_u32 v210, v212, 6, v210",
      "v_lshrrev_b32 v212, 4, v1", "v_lshl_add_u32 v210, v212, 4, v210", "s_mul_i32 s74, %s, %d" % (WM, 2 * R_CP), "s_add_u32 s74, s74, %d" % R_BASE, "s_lshl_b32 s75, %s, 8" % WN, "s_add_u32 s74, s74, s75", "v_add_u32 v%d, s74, v210" % VK)
    e("v_bfe_u32 v210, v1, 2, 2", "v_add_u32 v210, v210, v212", "v_lshlrev_b32 v210, 4, v210", "v_and_b32 v213, 3, v1", "v_lshl_add_u32 v210, v213, 2, v210",
      "v_and_b32 v213, 1, v1", "v_mul_u32_u24 v213, %d, v213" % (U_CP - 4), "v_sub_u32 v210, v210, v213",
      "s_mul_i32 s74, %s, %d" % (WM, 2 * U_CP), "s_add_u32 s74, s74, %d" % (U_BASE + U_CP), "s_add_u32 s74, s74, s75", "v_add_u32 v%d, s74, v210" % VU)
    LNA = 10
    e("v_bfe_u32 v210, v1, 2, 2", "v_mul_u32_u24 v210, %d, v210" % LNP, "v_lshrrev_b32 v211, 4, v1", "v_lshl_add_u32 v210, v211, 5, v210",
      "v_and_b32 v211, 3, v1", "v_lshl_add_u32 v210, v211, 3, v210", "s_lshl_b32 s74, %s, 8" % W, "s_add_u32 s74, s74, %d" % LNS, "v_add_u32 v%d, s74, v210" % LNA)
    T8, T16, TM, RD, RC, RB = 84, 85, 86, 87, 88, 89
    e("s_mul_i32 s74, %s, 6144" % WM, "s_add_u32 s74, s74, %d" % T_BASE)
    e("v_lshl_add_u32 v%d, v1, 3, s74" % T8, "v_add_u32 v%d, s74, v12" % T16, "v_add_u32 v%d, -4, v%d" % (TM, T16))
    e("s_mul_i32 s74, %s, %d" % (W, R_CP), "s_add_u32 s74, s74, %d" % R_BASE, "v_sub_u32 v213, 63, v1")
    e("v_lshl_add_u32 v%d, v213, 5, s74" % RD, "v_lshl_add_u32 v%d, v213, 4, s74" % RC, "v_lshl_add_u32 v%d, v213, 3, s74" % RB)
    e("s_cmp_eq_u32 %s, 1" % WN, "s_cselect_b64 s[72:73], -1, 0")
    e(vm.wait("dsk"), stamp("lnld"))
    d1 = stage_dma(1, VM())
    ln = flat(ln_ops(VM()))
    e(merge(ln[:-1], d1[:9]))
    for i in range(3): vm.op("st1")
    e(ln[-1]); vm.op("stats")
    e(stamp("lndone"))
    e(d1[9:])
    for i in range(7): vm.op("st1")
    e(stamp("iss1"), vm.wait("st0").replace("s_waitcnt", "s_waitcnt lgkmcnt(0)"))
    e(stamp("st0land"))
    def endit(st, lg=False):
        w = vm.wait("st%d" % st)
        if lg: w = w.replace("s_waitcnt", "s_waitcnt lgkmcnt(0)")
        e(stamp("iss%d" % (st + 1)), w, stamp("land%d" % st), "s_barrier")
    if "--prioB" in sys.argv: e("s_setprio 1")
    e("s_barrier")
    for rnd in range(2):
        for q in range(2): e("ds_read_b64_tr_b16 %s, v%d offset:%d" % (vr(20 + 4 * rnd + 2 * q, 2), LNA, 4 * q * LNP + 128 * rnd))
    e(stage_dma(2, vm))
    e("s_lshl_b32 s74, %s, 13" % G, "s_lshl_b32 s75, %s, 11" % W, "s_add_u32 s74, s74, s75", "s_add_u32 s74, s74, %d" % WS_XT)
    e("s_waitcnt lgkmcnt(0)")
    for rnd in range(2):
        e("buffer_store_dwordx4 %s, v12, %s, s74 offen offset:%d sc1" % (vr(20 + 4 * rnd, 4), sWS, 1024 * rnd)); vm.op("xt")
    endit(1)
    rd = []
    for t in range(2):
        b = 32 + 16 * t; o = 3072 * t
        rd += ["ds_read_b64 %s, v%d offset:%d" % (vr(b, 2), T8, o + 2048), "ds_read_b32 v%d, v%d offset:%d" % (b + 2, T8, o + 2056),
               "ds_read_b32 v%d, v%d offset:%d" % (b + 3, T8, o + 1020),
               "ds_read_b64 %s, v%d offset:%d" % (vr(b + 4, 2), T8, o + 1536), "ds_read_b32 v%d, v%d offset:%d" % (b + 6, T8, o + 1544),
               "ds_read_b32 v%d, v%d offset:%d" % (b + 7, TM, o),
               "ds_read_b64 %s, v%d offset:%d" % (vr(b + 8, 2), T8, o + 1024), "ds_read_b32 v%d, v%d offset:%d" % (b + 10, T8, o + 1032),
               "ds_read_b128 %s, v%d offset:%d" % (vr(b + 12, 4), T16, o)]
    e(merge(stage_dma(3, vm), rd))
    endit(2, True)
    S = "s[72:73]"
    cv = lambda d, lo, hi: "v_cvt_pk_bf16_f32 v%d, v%d, v%d" % (d, lo, hi)
    x1 = ["v_cmp_eq_u32 vcc, 0, v1", "v_lshlrev_b32 v28, 16, v28"]
    x1 += ["v_add_f32 v%d, v%d, v%d" % (32 + k, 32 + k, 48 + k) for k in (0, 1, 2, 3, 4, 5, 6, 7, 8, 9, 10, 12, 13, 14, 15)]
    x1 += ["v_cndmask_b32 v28, 0, v28, vcc", "v_cndmask_b32 v35, v40, v35, vcc", "v_cndmask_b32 v39, v39, 0, vcc", "v_add_f32 v44, v44, v28"]
    x1 += ["v_cndmask_b32 v48, v33, v34, %s" % S, "v_cndmask_b32 v49, v32, v33, %s" % S,
           cv(64, 34, 34), cv(65, 34, 48), cv(66, 33, 33), cv(67, 33, 33), cv(68, 33, 33), cv(69, 49, 32), cv(70, 32, 32), cv(71, 32, 32)]
    e(merge(stage_dma(4, vm), x1))
    endit(3)
    x2 = ["v_cndmask_b32 v48, v37, v38, %s" % S, "v_cndmask_b32 v49, v36, v37, %s" % S, cv(72, 38, 48), cv(73, 37, 37), cv(74, 49, 36), cv(75, 36, 36),
          "v_cndmask_b32 v48, v41, v42, %s" % S, "v_cndmask_b32 v49, v40, v41, %s" % S, "v_cndmask_b32 v50, v35, v40, %s" % S, cv(76, 48, 49), cv(77, 40, 50),
          "v_cndmask_b32 v48, v46, v47, %s" % S, "v_cndmask_b32 v49, v45, v46, %s" % S, "v_cndmask_b32 v50, v44, v45, %s" % S, "v_cndmask_b32 v51, v39, v44, %s" % S,
          cv(78, 48, 49), cv(79, 50, 51), "v_mov_b32 v80, 0", "v_mov_b32 v81, 0",
          "ds_write_b128 v%d, v[64:67]" % RD, "ds_write_b128 v%d, v[68:71] offset:16" % RD, "ds_write_b128 v%d, v[72:75] offset:2048" % RC,
          "ds_write_b64 v%d, v[76:77] offset:3072" % RB, "ds_write_b64 v%d, v[78:79] offset:3584" % RB, "ds_write_b64 v%d, v[80:81] offset:4096" % RB]
    e("s_lshl_b32 s74, %s, 2" % G, "s_add_u32 s74, s74, %d" % WS_F3, "s_cmp_eq_u32 %s, 0" % W, "s_cselect_b32 s74, s74, 0x7ffffff0", "v_mov_b32 v16, %s" % TAG)
    e("s_mov_b64 exec, 1", "buffer_store_dword v16, off, %s, s74 sc1" % sWS, "s_mov_b64 exec, -1"); vm.op("f3s")
    e(merge(stage_dma(5, vm), x2[:19]))
    endit(4)
    UG, UL = 90, 91
    x3 = ["v_lshrrev_b32 v16, 1, v1", "v_and_b32 v17, 1, v1", "v_lshlrev_b32 v%d, 13, v16" % UG, "v_lshl_add_u32 v%d, v17, 4, v%d" % (UG, UG),
          "v_mul_u32_u24 v17, %d, v17" % (2 * U_CP), "v_lshl_add_u32 v17, v16, 4, v17", "s_lshl_b32 s74, %s, 10" % W, "s_add_u32 s74, s74, %d" % U_BASE, "v_add_u32 v%d, s74, v17" % UL,
          "s_mul_i32 s74, %s, %d" % (W, U_CP), "s_add_u32 s74, s74, %d" % U_BASE, "s_sub_u32 s75, 15, %s" % WN, "v_min_u32 v92, s75, v1", "v_lshl_add_u32 v92, v92, 2, s74",
          "ds_write_b32 v92, v80"]
    x3 += ["v_mov_b32 v%d, 0" % (32 + i) for i in range(32)]
    e(merge(stage_dma(6, vm), x3[:14]))
    endit(5)
    e(merge(stage_dma(7, vm), x3[15:]))
    endit(6, True)
    e("s_mov_b32 s82, %d" % WS_F3)
    pl = ["buffer_load_dwordx4 v[20:23], v12, %s, s82 offen sc1" % sWS]
    e(pl); vm.op("f3")
    e(wd_setup(10))
    d1a = wd_dma(0, wd_loc(0), 0, 10, VM(), "x", WDV)
    N1 = 4
    e(d1a[:3 * N1])
    for i in range(N1): vm.op("1a")
    endit(7)
    e(stamp("b7"))
    if "--prioB" in sys.argv: e("s_setprio 0")
    e(vm.wait("f3"))
    e(check_retry(pl, [20, 21, 22, 23], 24))
    e(stamp("f3ok"))
    e("s_lshl_b32 s74, %s, 19" % W, "s_lshl_b32 s75, %s, 5" % CP, "s_add_u32 s74, s74, s75", "s_add_u32 s74, s74, %d" % WS_XT, "s_add_u32 s75, s74, 0x40000")
    e("buffer_load_dwordx4 v[20:23], v%d, %s, s74 offen sc1" % (UG, sWS)); vm.op("u")
    e("buffer_load_dwordx4 v[24:27], v%d, %s, s75 offen sc1" % (UG, sWS)); vm.op("u")
    e("s_or_b32 s74, s2, %s" % W, "s_cmp_eq_u32 s74, 0", "s_cselect_b32 s74, 0, 0x7ffffff0", "v_mov_b32 v16, %s" % TAG)
    e("s_mov_b64 exec, 1", "buffer_store_dword v16, off, %s, s74 sc1" % sWS, "s_mov_b64 exec, -1"); vm.op("eps")
    e(x2[19:], x3[14])
    e(d1a[3 * N1:])
    for i in range(10 - N1): vm.op("1a")
    e(wd_dma(20, wd_loc(20), 0, 10, vm, "1b", WDV))
    e(vm.wait("u"))
    for k in range(2):
        b = 20 + 4 * k
        e("ds_write_b128 v%d, %s offset:%d" % (UL, vr(b, 4), 64 + 512 * k))
        e("ds_write_b32 v%d, v%d offset:%d" % (UL, b, U_CP + 60 + 512 * k), "ds_write_b32 v%d, v%d offset:%d" % (UL, b + 1, U_CP + 64 + 512 * k),
          "ds_write_b32 v%d, v%d offset:%d" % (UL, b + 2, U_CP + 68 + 512 * k), "ds_write_b32 v%d, v%d offset:%d" % (UL, b + 3, U_CP + 72 + 512 * k))
    e("s_waitcnt lgkmcnt(0)")
    e(lds_signal(C_U, 16))
    e(vm.wait("1a"), lds_signal(C_B1, 16))
    e(stamp("uwr"))
    e(lds_wait(C_U, 4, 16))
    CA = 32; FB = (64, 128)
    def reads(rho, buf):
        o = []
        for i in range(8):
            o.append("ds_read_b128 %s, v%d offset:%d" % (vr(buf + 4 * i, 4), VK, 512 * (7 - i) + 64 * rho))
            o.append("ds_read_b64 %s, v%d offset:%d" % (vr(buf + 32 + 4 * i, 2), VU, 512 * i + 64 * rho))
            o.append("ds_read_b64 %s, v%d offset:%d" % (vr(buf + 34 + 4 * i, 2), VU, 512 * i + 64 * rho + 8))
        return o
    e(reads(0, FB[0]))
    e(lds_wait(C_G, 4, 16))
    e(vm.all(), lds_signal(C_B2, 16))
    e(stamp("cvgo"))
    e("s_mov_b32 s79, 0", "L_cv:")
    for rho in range(2):
        buf = FB[rho]
        pairs = sorted([(sg, t) for t in range(8) for sg in range(t + 1)])
        mf = ["v_mfma_f32_16x16x32_bf16 %s, %s, %s, %s" % (vr(CA + 4 * t, 4), vr(buf + 4 * (t - sg), 4), vr(buf + 32 + 4 * sg, 4), vr(CA + 4 * t, 4)) for sg, t in pairs]
        e("s_waitcnt lgkmcnt(0)")
        fill = reads(rho + 1, FB[1 - rho])
        if rho == 1: fill += ["v_add_u32 v%d, 128, v%d" % (VK, VK), "v_add_u32 v%d, 128, v%d" % (VU, VU)]
        e(interleave(mf, fill, per=1))
    e("s_add_u32 s79, s79, 1", "s_cmp_lt_u32 s79, 2", "s_cbranch_scc1 L_cv")
    e(stamp("conv"))
    e("s_waitcnt lgkmcnt(0)", lds_signal(C_CV, 18))
    e("s_lshl_b32 s74, %s, 12" % W, "s_add_u32 s74, s74, %d" % R_BASE, "v_add_u32 v24, s74, v12", "v_xor_b32 v25, 4096, v12", "s_xor_b32 s75, %s, 1" % W,
      "s_lshl_b32 s75, s75, 12", "s_add_u32 s75, s75, %d" % R_BASE, "v_add_u32 v25, s75, v12")
    e(lds_wait(C_CV, 4, 18))
    lo, dn = newlab("rlo"), newlab("rdn")
    e("s_cmp_eq_u32 %s, 0" % WN, "s_cbranch_scc1 " + lo)
    for k in range(4): e("ds_write_b128 v24, %s offset:%d" % (vr(CA + 4 * k, 4), 1024 * k))
    e("s_waitcnt lgkmcnt(0)")
    for k in range(16): e("v_mov_b32 v%d, v%d" % (CA + k, CA + 16 + k))
    e("s_branch " + dn, lo + ":")
    for k in range(4): e("ds_write_b128 v24, %s offset:%d" % (vr(CA + 16 + 4 * k, 4), 1024 * k))
    e(dn + ":")
    e("s_waitcnt lgkmcnt(0)", lds_signal(C_X, 18))
    e(wd_setup(3), wd_dma(80, wd_loc(80), 0, 3, vm, "2b", WDV))
    e(lds_wait(C_X, 4, 18))
    for k in range(4): e("ds_read_b128 %s, v25 offset:%d" % (vr(64 + 4 * k, 4), 1024 * k))
    e("s_lshl_b32 s76, %s, 20" % WN)
    for k in range(1, 4): e("s_add_u32 s%d, s76, %d" % (76 + k, k * 4 * 65536))
    e("v_lshrrev_b32 v16, 4, v1", "v_lshlrev_b32 v16, 16, v16", "v_and_b32 v17, 1, v1", "v_lshl_add_u32 v16, v17, 6, v16", "v_bfe_u32 v18, v1, 1, 3", "v_lshl_add_u32 v16, v18, 3, v16")
    e("s_lshl_b32 s74, %s, 1" % CP, "s_add_u32 s74, s74, %s" % WM, "s_lshl_b32 s75, s74, 7", "s_add_u32 s75, s75, %d" % WS_Z)
    e("v_cmp_eq_u32 vcc, 1, v17")
    e("s_waitcnt lgkmcnt(0)")
    for k in range(8): e("v_pk_add_f32 %s, %s, %s" % (vr(CA + 2 * k, 2), vr(CA + 2 * k, 2), vr(64 + 2 * k, 2)))
    for k in range(4): e(cv(48 + 4 * k, CA + 4 * k, CA + 4 * k + 1), cv(49 + 4 * k, CA + 4 * k + 2, CA + 4 * k + 3))
    for k in range(4): e("v_cndmask_b32 v%d, v%d, v%d, vcc" % (50 + 4 * k, 49 + 4 * k, 48 + 4 * k))
    for k in range(4): e("v_mov_b32_dpp v%d, v%d quad_perm:[1,0,3,2] row_mask:0xf bank_mask:0xf" % (51 + 4 * k, 50 + 4 * k))
    for k in range(4):
        o = 48 + 4 * k
        e("v_cndmask_b32 v%d, v%d, v%d, vcc" % (o, o, o + 3), "v_cndmask_b32 v%d, v%d, v%d, vcc" % (o + 1, o + 3, o + 1))
        e("s_add_u32 s%d, s%d, s75" % (76 + k, 76 + k))
        e("buffer_store_dwordx2 %s, v16, %s, s%d offen sc1" % (vr(o, 2), sWS, 76 + k)); vm.op("z")
    e("s_lshl_b32 s75, %s, 9" % WN, "s_add_u32 s74, s74, s75", "s_lshl_b32 s83, s74, 6", "s_add_u32 s83, s83, %d" % WS_F5, "v_mov_b32 v30, %s" % TAG)
    e(final_xload(vm, XF, XFA))
    e(vm.wait("z"))
    e("s_mov_b64 exec, 1", "buffer_store_dword v30, off, %s, s83 sc1" % sWS, "s_mov_b64 exec, -1"); vm.op("f5")
    e(stamp("zflag"))
    e("s_lshr_b32 s74, %s, 4" % I2, "s_lshl_b32 s74, s74, 15",
      "s_lshl_b32 s75, %s, 12" % J2, "s_add_u32 s82, s74, s75", "s_lshl_b32 s75, %s, 10" % W, "s_add_u32 s82, s82, s75", "s_add_u32 s82, s82, %d" % WS_F5,
      "v_and_b32 v14, 15, v1", "v_lshlrev_b32 v14, 6, v14")
    pl = ["buffer_load_dword v15, v14, %s, s82 offen sc1" % sWS]
    e(pl, vm.all())
    e(check_retry(pl, [15], 16))
    e(stamp("zpoll"))
    e("s_lshl_b32 s74, %s, 16" % I2, "s_lshl_b32 s75, %s, 13" % J2, "s_add_u32 s74, s74, s75", "s_lshl_b32 s75, %s, 11" % W, "s_add_u32 s74, s74, s75",
      "s_add_u32 s74, s74, %d" % WS_Z, "s_add_u32 m0, s75, %d" % Z_LDS)
    e("buffer_load_dwordx4 v12, %s, s74 offen sc1 lds" % sWS, "buffer_load_dwordx4 v12, %s, s74 offen offset:1024 sc1 lds" % sWS)
    e("v_bfe_u32 v14, v1, 2, 2", "v_lshlrev_b32 v14, 7, v14", "v_lshrrev_b32 v15, 4, v1", "v_lshl_add_u32 v14, v15, 5, v14", "v_and_b32 v15, 3, v1", "v_lshl_add_u32 v14, v15, 3, v14",
      "s_add_u32 s75, s75, %d" % Z_LDS, "v_add_u32 v14, s75, v14")
    e("v_mul_u32_u24 v15, 272, v1", "s_lshl_b32 s75, %s, 6" % W, "s_add_u32 s75, s75, %d" % P2, "v_add_u32 v15, s75, v15")
    e(vm.all())
    e(stamp("zland"))
    for q in range(4): e("ds_read_b64_tr_b16 %s, v14 offset:%d" % (vr(20 + 2 * q, 2), 512 * q))
    e("s_barrier")
    e("s_waitcnt lgkmcnt(0)")
    for k in range(8): e("v_lshlrev_b32 v%d, 16, v%d" % (32 + 2 * k, 20 + k), "v_and_b32 v%d, 0xffff0000, v%d" % (33 + 2 * k, 20 + k))
    for q in range(4): e("ds_write_b128 v15, %s offset:%d" % (vr(32 + 4 * q, 4), 16 * q))
    e("s_waitcnt lgkmcnt(0)")

def final():
    e("L_final:")
    e("v_lshrrev_b32 v14, 3, v0", "v_mul_u32_u24 v14, 272, v14", "v_and_b32 v15, 7, v0", "v_lshl_add_u32 v14, v15, 5, v14", "v_add_u32 v15, %d, v14" % P2)
    for j in range(4): e("v_lshlrev_b32 v%d, 16, v%d" % (32 + 2 * j, XF + j), "v_and_b32 v%d, 0xffff0000, v%d" % (33 + 2 * j, XF + j))
    e("s_barrier")
    e(stamp("fin"))
    e("ds_read_b128 v[16:19], v14 offset:%d" % PB, "ds_read_b128 v[20:23], v14 offset:%d" % (PB + 16),
      "ds_read_b128 v[24:27], v14 offset:%d" % (PB + 64 * 272), "ds_read_b128 v[28:31], v14 offset:%d" % (PB + 64 * 272 + 16),
      "ds_read_b128 v[40:43], v15", "ds_read_b128 v[44:47], v15 offset:16")
    e("s_waitcnt lgkmcnt(2)")
    for j in range(4): e("v_pk_add_f32 %s, %s, %s" % (vr(16 + 2 * j, 2), vr(16 + 2 * j, 2), vr(24 + 2 * j, 2)))
    e("s_waitcnt lgkmcnt(0)")
    for j in range(4): e("v_pk_add_f32 %s, %s, %s" % (vr(32 + 2 * j, 2), vr(32 + 2 * j, 2), vr(40 + 2 * j, 2)))
    for j in range(4): e("v_pk_add_f32 %s, %s, %s" % (vr(16 + 2 * j, 2), vr(16 + 2 * j, 2), vr(32 + 2 * j, 2)))
    for j in range(4): e("v_cvt_pk_bf16_f32 v%d, v%d, v%d" % (24 + j, 16 + 2 * j, 17 + 2 * j))
    e("global_store_dwordx4 v%d, v[24:27], s[38:39]" % XFA)
    if DEBUG:
        e("s_waitcnt vmcnt(0)")
        e(stamp("end"))
        e("s_memrealtime s[96:97]", "s_waitcnt lgkmcnt(0)", "v_writelane_b32 v255, s96, 63", "v_writelane_b32 v255, s98, 62")
        e("s_lshl_b32 s74, s2, 11", "s_add_u32 s74, s74, %d" % WS_DBG, "v_lshlrev_b32 v14, 2, v0")
        e("buffer_store_dword v255, v14, %s, s74 offen" % sWS)
        if "--dbgout" in sys.argv:
            e("s_not_b32 s98, s98", "v_mov_b32 v20, s98", "v_mov_b32 v21, s96", "v_mov_b32 v22, 0")
            e("s_cmp_lg_u32 %s, 0" % WAVE, "s_cbranch_scc1 L_end")
            e("s_mov_b64 exec, 1")
            e("global_atomic_umax v22, v20, s[40:41]", "global_atomic_umax v22, v21, s[40:41] offset:4")
            e("s_mov_b64 exec, -1")
            e("s_cmp_lg_u32 s2, 40", "s_cbranch_scc1 L_end")
            sel = ["lnld", "kgen", "st0", "st2", "st6", "st7", "loopend", "gelu", "hack", "hpoll", "b9", "b10"]
            e("v_readlane_b32 s74, v255, 0")
            for n, nm in enumerate(sel + ["fin", "end"]):
                k = {"fin": 60, "end": 61}.get(nm) or STAMPS["A"].index(nm) + 1
                e("v_readlane_b32 s75, v255, %d" % k, "s_sub_u32 s75, s75, s74", "v_mov_b32 v20, s75", "s_mov_b64 exec, 1",
                  "global_store_dword v22, v20, s[40:41] offset:%d" % (8 + 4 * n), "s_mov_b64 exec, -1")
    if "--double" in sys.argv:
        e("s_waitcnt vmcnt(0)", "s_memrealtime s[96:97]", "s_waitcnt lgkmcnt(0)", "s_sub_u32 s74, s96, s98", "s_min_u32 s74, s74, 20000",
          "L_spin:", "s_memrealtime s[92:93]", "s_waitcnt lgkmcnt(0)", "s_sub_u32 s75, s92, s96", "s_cmp_lt_u32 s75, s74", "s_cbranch_scc1 L_spin")
    e("L_end:", "s_endpgm")

prologue()
ROLE[0] = "A"
vm = a_p0()
a_main(vm)
ROLE[0] = "B"
b_path()
ROLE[0] = "AB"
final()
body, npad = pad_hazards(L)

hdr = open("cdna_kernels/%s.s.ref" % NAME).read().split("; Override launch")[0]
out = hdr + "; @launch grid=(256,1,1) block=(512,1,1) lds=163840\n"
out += '.amdgcn_target "amdgcn-amd-amdhsa--gfx950"\n.text\n.globl %s_kernel\n.p2align 8\n.type %s_kernel,@function\n%s_kernel:\n' % (NAME, NAME, NAME)
out += "\n".join(body) + "\n"
out += '''.section .rodata,"a"
.p2align 6
.amdhsa_kernel %s_kernel
  .amdhsa_next_free_vgpr 256
  .amdhsa_next_free_sgpr 102
  .amdhsa_accum_offset 256
  .amdhsa_group_segment_fixed_size 0
  .amdhsa_kernarg_size 112
  .amdhsa_user_sgpr_count 2
  .amdhsa_user_sgpr_kernarg_segment_ptr 1
  .amdhsa_system_sgpr_workgroup_id_x 1
.end_amdhsa_kernel
''' % NAME
path = [a for a in sys.argv[1:] if not a.startswith("--")]
path = path[0] if path else "cdna_kernels/%s.s" % NAME
open(path, "w").write(out)
print("wrote", path, "lines", len(body), "nops inserted", npad)
if DEBUG:
    import json
    json.dump(STAMPS, open(path[:-2] + ".json", "w"))
```

```python
import sys, struct, math
from asmlib import *

NAME = "parallel_sum__ssm_conv_s4d__geglu_ffn__prompt"
DEBUG = "--stamps" in sys.argv

def f2u(x): return struct.unpack("<I", struct.pack("<f", x))[0]
def hx(x): return "0x%08x" % (x & 0xffffffff)
LOG2E = hx(f2u(1.4426950408889634))
INV2PI = hx(f2u(0.15915494309189535))
GK1 = -2.0 * math.sqrt(2.0 / math.pi) * 1.4426950408889634
GK2 = GK1 * 0.044715

WS_EPOCH = 0
WS_F3 = 0x1000
WS_ST = 0x2000
WS_CS = 0x8000
WS_F4 = 0x50000
WS_F5 = 0x70000
WS_DBG = 0x80000
WS_XT = 0x100000
WS_Z = 0x300000
WS_H = 0x700000
WS_SIZE = 0x1000000
SLOT = 41024
XOFF, WOFF, WMAT = 0, 16384, 12320
RB = 40768
R_CP = 4640
U_CP = 4224
U_BASE = 0
R_BASE = RB - 4 * R_CP
T_BASE = 16
LNS = T_BASE + 4 * 3072
LNP = 1088
CNT_BASE = LNS + 8 * LNP
C_X, C_B1, C_A2, C_U, C_CV, C_G, C_B2, C_A3, C_P, C_A1, C_B3, C_A4 = [CNT_BASE + 16 * i for i in range(12)]
E_W = 53 * 272
E_BASE = RB + SLOT - 4 * E_W
assert E_BASE >= R_BASE and CNT_BASE + 256 <= R_BASE and 4 * U_CP <= CNT_BASE and RB + 3 * SLOT == 163840
W2B, Z_LDS, P2, PB = 0, 12288, R_BASE, RB + 40960
def slot_of(st): return (st + 1) % 3
SPIN = 20000

sX, sWG, sWU, sWD, sWS = "s[44:47]", "s[48:51]", "s[52:55]", "s[56:59]", "s[60:63]"
XCD, IDX, MT, FT, WAVE, TAG, W, G = "s64", "s65", "s66", "s67", "s68", "s69", "s70", "s71"
KS, I2, J2, CP, CNT = "s90", "s91", "s92", "s93", "s94"
WM, WN = "s88", "s89"
W4 = "s100"

L = []
def e(*xs):
    for x in xs:
        if isinstance(x, (list, tuple)): e(*x)
        else: L.append(x)

def vr(a, n): return "v[%d:%d]" % (a, a + n - 1)

class VM:
    def __init__(self): self.q = []
    def op(self, lab): self.q.append(lab)
    def wait(self, lab):
        idx = max(i for i, x in enumerate(self.q) if x == lab)
        n = len(self.q) - 1 - idx
        self.q = self.q[idx + 1:]
        assert n <= 63
        return "s_waitcnt vmcnt(%d)" % n
    def all(self):
        self.q = []
        return "s_waitcnt vmcnt(0)"

STAMPS = {"A": [], "B": []}
ROLE = ["AB"]
def stamp(name):
    if not DEBUG: return []
    if ROLE[0] == "AB":
        k = {"start": 0, "fin": 60, "end": 61}[name]
    else:
        lst = STAMPS[ROLE[0]]
        if name not in lst: lst.append(name)
        k = lst.index(name) + 1
        assert k < 60
    o = ["s_memtime s[96:97]", "s_waitcnt lgkmcnt(0)", "v_writelane_b32 v255, s96, %d" % k]
    if "--rt" in sys.argv: o = ["s_memrealtime s[96:97]"] + o[1:]
    return o

def tag_from(v):
    return ["v_readfirstlane_b32 %s, %s" % (TAG, v), "s_mul_i32 %s, %s, 0x9E3779B1" % (TAG, TAG),
            "s_add_u32 %s, %s, 0x7F4A7C15" % (TAG, TAG)]

lab_n = [0]
def newlab(p):
    lab_n[0] += 1
    return "L_%s_%d" % (p, lab_n[0])

def check_retry(loads, tagregs, tmp):
    top, done = newlab("chk"), newlab("ok")
    o = ["s_mov_b32 %s, %d" % (CNT, SPIN), top + ":"]
    o.append("v_xor_b32 v%d, %s, v%d" % (tmp, TAG, tagregs[0]))
    for r in tagregs[1:]:
        o.append("v_xor_b32 v%d, %s, v%d" % (tmp + 1, TAG, r))
        o.append("v_or_b32 v%d, v%d, v%d" % (tmp, tmp, tmp + 1))
    o.append("v_cmp_ne_u32 vcc, 0, v%d" % tmp)
    o.append("s_nop 1")
    o.append("s_cbranch_vccz " + done)
    o.append("s_sub_u32 %s, %s, 1" % (CNT, CNT))
    o.append("s_cbranch_scc1 " + done)
    o.append("s_sleep 1")
    o += loads
    o.append("s_waitcnt vmcnt(0)")
    o.append("s_branch " + top)
    o.append(done + ":")
    return o

def lds_signal(addr, t):
    return ["v_mov_b32 v%d, %s" % (t, W4), "v_mov_b32 v%d, 1" % (t + 1), "ds_write_b32 v%d, v%d offset:%d" % (t, t + 1, addr)]

def lds_wait(addr, target, t):
    top, done = newlab("lw"), newlab("lwd")
    q = t + 2
    return ["v_mov_b32 v%d, 0" % t, "s_mov_b32 %s, 0x400000" % CNT, top + ":", "ds_read_b128 %s, v%d offset:%d" % (vr(q, 4), t, addr), "s_waitcnt lgkmcnt(0)",
            "v_and_b32 v%d, v%d, v%d" % (q, q, q + 1), "v_and_b32 v%d, v%d, v%d" % (q + 2, q + 2, q + 3), "v_and_b32 v%d, v%d, v%d" % (q, q, q + 2),
            "v_readfirstlane_b32 s95, v%d" % q, "s_cmp_lg_u32 s95, 0", "s_cbranch_scc1 " + done,
            "s_sleep 1", "s_sub_u32 %s, %s, 1" % (CNT, CNT), "s_cbranch_scc0 " + top, done + ":"]

def flat(xs):
    o = []
    for x in xs:
        if isinstance(x, list): o += flat(x)
        else: o.append(x)
    return o

def merge(a, b):
    a, b = flat(a), flat(b)
    o = []; i = j = 0
    while i < len(a) or j < len(b):
        if j >= len(b) or (i < len(a) and i * len(b) <= j * len(a)): o.append(a[i]); i += 1
        else: o.append(b[j]); j += 1
    return o

def prologue():
    e("s_cmp_ge_u32 s2, 256", "s_cbranch_scc1 L_end")
    e("s_load_dwordx16 s[16:31], s[0:1], 0", "s_load_dwordx8 s[32:39], s[0:1], 64", "s_load_dwordx4 s[40:43], s[0:1], 96")
    if DEBUG or "--double" in sys.argv:
        e("v_mov_b32 v255, 0", "s_memrealtime s[98:99]")
    e("v_lshrrev_b32 v2, 6, v0", "v_and_b32 v1, 63, v0")
    e("s_and_b32 %s, s2, 7" % XCD, "s_lshr_b32 %s, s2, 3" % IDX)
    e("v_readfirstlane_b32 %s, v2" % WAVE)
    e("s_and_b32 s74, %s, 1" % XCD, "s_lshl_b32 s74, s74, 3", "s_and_b32 s75, %s, 7" % IDX, "s_add_u32 %s, s74, s75" % MT)
    e("s_lshr_b32 s74, %s, 1" % XCD, "s_lshl_b32 s74, s74, 2", "s_lshr_b32 s75, %s, 3" % IDX, "s_add_u32 %s, s74, s75" % FT)
    e("s_lshl_b32 s74, %s, 4" % MT, "s_add_u32 %s, s74, %s" % (G, FT))
    e("s_lshl_b32 s74, %s, 5" % XCD, "s_add_u32 %s, s74, %s" % (CP, IDX))
    e("s_lshl_b32 s74, %s, 2" % XCD, "s_and_b32 s75, %s, 3" % IDX, "s_add_u32 %s, s74, s75" % I2, "s_lshr_b32 %s, %s, 2" % (J2, IDX))
    e("s_lshl_b32 s74, %s, 1" % FT, "s_add_u32 s74, s74, %s" % MT, "s_and_b32 %s, s74, 7" % KS)
    e("s_and_b32 %s, %s, 3" % (W, WAVE), "s_lshr_b32 %s, %s, 1" % (WM, W), "s_and_b32 %s, %s, 1" % (WN, W), "s_lshl_b32 %s, %s, 2" % (W4, W))
    e("v_lshlrev_b32 v12, 4, v1")
    e("s_cmp_lg_u32 %s, 7" % WAVE, "s_cbranch_scc1 L_nopf")
    e("s_getpc_b64 s[76:77]", "L_pc:", "s_lshl_b32 s74, %s, 10" % IDX, "v_lshl_add_u32 v3, v1, 7, s74", "v_min_u32 v3, L_end-L_pc, v3")
    e("s_mov_b64 exec, 0xff", "global_load_dword v250, v3, s[76:77]", "s_mov_b64 exec, -1", "L_nopf:")
    e("s_mov_b32 s47, 0x20000", "s_mov_b32 s51, 0x20000", "s_mov_b32 s55, 0x20000", "s_mov_b32 s59, 0x20000", "s_mov_b32 s63, 0x20000")
    e("s_mov_b32 s50, 1409024", "s_mov_b32 s58, 1409024", "s_mov_b32 s62, %d" % WS_SIZE)
    e("s_waitcnt lgkmcnt(0)")
    e(stamp("start"))
    e("s_mov_b32 s60, s42", "s_mov_b32 s61, s43")
    e("s_add_u32 s74, s36, %d" % (256 * 2752), "s_addc_u32 s75, s37, 0")
    e("s_cmp_eq_u32 %s, 15" % FT)
    e("s_cselect_b32 s48, s36, s32", "s_cselect_b32 s49, s37, s33", "s_cselect_b32 s52, s74, s34", "s_cselect_b32 s53, s75, s35")
    e("s_cselect_b32 s46, 0, 0x200000", "s_cselect_b32 s54, %d, s50" % (256 * 2752))
    e("s_cselect_b32 s87, %s, %s" % (MT, FT))
    e("s_cselect_b32 s86, 0, %s" % KS)
    e("s_mov_b32 s44, s16", "s_mov_b32 s45, s17", "s_mov_b32 s56, s36", "s_mov_b32 s57, s37")
    e("s_cmp_ge_u32 %s, 4" % WAVE, "s_cbranch_scc1 L_B")

XA, XA2, WA, WA2 = 2, 6, 10, 11
ACC, ONEACC, FR0, FR1, ONES = 64, 160, 208, 228, 248

def cmul(dst, a, w, t):
    return ["v_pk_mul_f32 %s, %s, %s op_sel:[0,0] op_sel_hi:[0,1]" % (vr(t, 2), vr(a, 2), vr(w, 2)),
            "v_pk_fma_f32 %s, %s, %s, %s op_sel:[1,1,0] op_sel_hi:[1,0,1] neg_lo:[1,0,0]" % (vr(dst, 2), vr(a, 2), vr(w, 2), vr(t, 2))]

def wave_sums(regs, sregs):
    o = []
    for m in ("row_shr:1", "row_shr:2", "row_shr:4", "row_shr:8"):
        for r in regs: o.append("v_add_f32_dpp v%d, v%d, v%d %s row_mask:0xf bank_mask:0xf" % (r, r, r, m))
    for r in regs: o.append("v_add_f32_dpp v%d, v%d, v%d row_bcast:15 row_mask:0xa bank_mask:0xf" % (r, r, r))
    for r in regs: o.append("v_add_f32_dpp v%d, v%d, v%d row_bcast:31 row_mask:0xc bank_mask:0xf" % (r, r, r))
    o += ["v_readlane_b32 %s, v%d, 63" % (sr, r) for r, sr in zip(regs, sregs)]
    return o

def ln_ops(vm):
    o = []
    F, D, T = 160, 176, 192
    for r in range(2):
        for j in range(4):
            o += ["v_lshlrev_b32 v%d, 16, v%d" % (F + 8 * r + 2 * j, 16 + 4 * r + j), "v_and_b32 v%d, 0xffff0000, v%d" % (F + 8 * r + 2 * j + 1, 16 + 4 * r + j)]
    o += ["v_readfirstlane_b32 s4, v%d" % F, "v_readfirstlane_b32 s6, v%d" % (F + 8)]
    for j in range(4):
        for r in range(2):
            o.append("v_pk_add_f32 %s, %s, s[%d:%d] op_sel_hi:[1,0] neg_lo:[0,1] neg_hi:[0,1]" % (vr(D + 8 * r + 2 * j, 2), vr(F + 8 * r + 2 * j, 2), 4 + 2 * r, 5 + 2 * r))
    for r in range(2):
        d = D + 8 * r; t = T + 6 * r
        o += ["v_pk_add_f32 %s, %s, %s" % (vr(t, 2), vr(d, 2), vr(d + 2, 2)), "v_pk_add_f32 %s, %s, %s" % (vr(t + 2, 2), vr(d + 4, 2), vr(d + 6, 2)),
              "v_pk_mul_f32 %s, %s, %s" % (vr(t + 4, 2), vr(d, 2), vr(d, 2))]
    for j in range(1, 4):
        for r in range(2):
            d = D + 8 * r; t = T + 6 * r
            o.append("v_pk_fma_f32 %s, %s, %s, %s" % (vr(t + 4, 2), vr(d + 2 * j, 2), vr(d + 2 * j, 2), vr(t + 4, 2)))
            if j == 1: o.append("v_pk_add_f32 %s, %s, %s" % (vr(t, 2), vr(t, 2), vr(t + 2, 2)))
    for r in range(2):
        t = T + 6 * r
        o += ["v_add_f32 v%d, v%d, v%d" % (t, t, t + 1), "v_add_f32 v%d, v%d, v%d" % (t + 4, t + 4, t + 5)]
    o += wave_sums([T, T + 6, T + 4, T + 10], ["s8", "s9", "s10", "s11"])
    c = 204
    o += ["v_mov_b32 v%d, 0x3b000000" % c]
    o += ["v_mul_f32 v%d, s8, v%d" % (T, c), "v_mul_f32 v%d, s9, v%d" % (T + 1, c), "v_mul_f32 v%d, s10, v%d" % (T + 2, c), "v_mul_f32 v%d, s11, v%d" % (T + 3, c)]
    o += ["v_fma_f32 v%d, -v%d, v%d, v%d" % (T + 2, T, T, T + 2), "v_fma_f32 v%d, -v%d, v%d, v%d" % (T + 3, T + 1, T + 1, T + 3)]
    o += ["v_add_f32 v%d, s4, v%d" % (T, T), "v_add_f32 v%d, s6, v%d" % (T + 1, T + 1)]
    o += ["v_max_f32 v%d, 0, v%d" % (T + 2, T + 2), "v_max_f32 v%d, 0, v%d" % (T + 3, T + 3)]
    MB, M0, S0, S1, RI = T + 4, T + 6, T + 10, T + 11, D
    o += ["v_cvt_pk_bf16_f32 v%d, v%d, v%d" % (MB, T, T + 1), "v_cvt_pk_bf16_f32 v%d, v%d, v%d" % (T + 2, T + 2, T + 3)]
    o += ["v_lshlrev_b32 v%d, 16, v%d" % (M0, MB), "v_and_b32 v%d, 0xffff0000, v%d" % (M0 + 2, MB)]
    o += ["v_lshlrev_b32 v%d, 16, v%d" % (S0, T + 2), "v_and_b32 v%d, 0xffff0000, v%d" % (S1, T + 2)]
    o += ["v_add_f32 v%d, %s, v%d" % (S0, hx(f2u(1e-5)), S0), "v_add_f32 v%d, %s, v%d" % (S1, hx(f2u(1e-5)), S1)]
    sub = [["v_pk_add_f32 %s, %s, %s op_sel_hi:[1,0] neg_lo:[0,1] neg_hi:[0,1]" % (vr(F + 8 * r + 2 * j, 2), vr(F + 8 * r + 2 * j, 2), vr(M0 + 2 * r, 2)) for j in range(4)] for r in range(2)]
    o += ["v_cvt_pk_bf16_f32 v%d, v%d, v%d" % (T + 2, S0, S1)] + sub[0][:2]
    o += ["v_lshlrev_b32 v%d, 16, v%d" % (S0, T + 2), "v_and_b32 v%d, 0xffff0000, v%d" % (S1, T + 2)] + sub[0][2:]
    o += ["v_sqrt_f32 v%d, v%d" % (S0, S0), "v_sqrt_f32 v%d, v%d" % (S1, S1)] + sub[1][:2]
    o += ["v_cvt_pk_bf16_f32 v%d, v%d, v%d" % (T + 2, S0, S1)] + sub[1][2:]
    o += ["v_lshlrev_b32 v%d, 16, v%d" % (S0, T + 2), "v_and_b32 v%d, 0xffff0000, v%d" % (S1, T + 2)]
    o += ["v_rcp_f32 v%d, v%d" % (RI, S0), "v_rcp_f32 v%d, v%d" % (RI + 2, S1)]
    for r in range(2):
        for j in range(4): o.append("v_cvt_pk_bf16_f32 v%d, v%d, v%d" % (16 + 4 * r + j, F + 8 * r + 2 * j, F + 8 * r + 2 * j + 1))
    for r in range(2):
        for j in range(4):
            o += ["v_lshlrev_b32 v%d, 16, v%d" % (F + 8 * r + 2 * j, 16 + 4 * r + j), "v_and_b32 v%d, 0xffff0000, v%d" % (F + 8 * r + 2 * j + 1, 16 + 4 * r + j)]
    for r in range(2):
        for j in range(4): o.append("v_pk_mul_f32 %s, %s, %s op_sel_hi:[1,0]" % (vr(F + 8 * r + 2 * j, 2), vr(F + 8 * r + 2 * j, 2), vr(RI + 2 * r, 2)))
    for r in range(2):
        for j in range(4): o.append("v_cvt_pk_bf16_f32 v%d, v%d, v%d" % (16 + 4 * r + j, F + 8 * r + 2 * j, F + 8 * r + 2 * j + 1))
    o += ["s_mul_i32 s4, %s, %d" % (W, 2 * LNP), "s_add_u32 s4, s4, %d" % LNS, "v_add_u32 v%d, s4, v12" % c]
    o += ["ds_write_b128 v%d, v[16:19]" % c, "ds_write_b128 v%d, v[20:23] offset:%d" % (c, LNP)]
    o += tag_from("v29")
    o += ["v_xor_b32 v%d, 0x80008000, v%d" % (MB, MB), "v_and_b32 v%d, 0xffff, v%d" % (T, MB), "v_or_b32 v%d, v%d, v%d" % (T, T, S0),
          "v_lshrrev_b32 v%d, 16, v%d" % (T + 1, MB), "v_or_b32 v%d, v%d, v%d" % (T + 1, T + 1, S1),
          "v_cmp_eq_u32 vcc, 0, v1", "v_lshlrev_b32 v%d, 3, v1" % (T + 2), "v_cndmask_b32 v%d, v%d, v%d, vcc" % (T, T + 1, T), "v_mov_b32 v%d, %s" % (T + 1, TAG),
          "s_lshl_b32 s4, %s, 6" % G, "s_lshl_b32 s5, %s, 4" % W, "s_add_u32 s4, s4, s5", "s_add_u32 s4, s4, %d" % WS_ST]
    o.append(("s_mov_b64 exec, 3", "buffer_store_dwordx2 %s, v%d, %s, s4 offen sc1" % (vr(T, 2), T + 2, sWS), "s_mov_b64 exec, -1"))
    vm.op("st")
    return o

def kgen_ops():
    o = []
    for i in range(5): o.append("v_lshlrev_b32 v%d, 16, v%d" % (24 + i, 24 + i))
    o += ["v_mul_f32 v28, %s, v28" % LOG2E, "v_mul_f32 v24, %s, v24" % LOG2E, "v_exp_f32 v28, v28", "v_exp_f32 v24, v24",
          "v_cvt_pk_bf16_f32 v24, v24, v28", "v_and_b32 v28, 0xffff0000, v24", "v_lshlrev_b32 v24, 16, v24",
          "v_mul_f32 v24, v24, v28", "v_mul_f32 v25, v25, v28",
          "v_mul_f32 v24, %s, v24" % hx(f2u(-1.4426950408889634)), "v_mul_f32 v25, %s, v25" % INV2PI, "v_add_f32 v28, v28, v28"]
    EA = 64
    o += ["v_mul_f32 v%d, v26, v28" % EA, "v_mul_f32 v%d, v27, v28" % (EA + 1)]
    Z1, Z8, Z256, Z32 = 30, 32, 34, 36
    zs = ((Z8, 8.0), (Z1, 1.0), (Z32, 32.0), (Z256, 256.0))
    for k, (z, p) in enumerate(zs):
        t = 116 + 4 * k
        o += ["v_mul_f32 v%d, %s, v24" % (t, hx(f2u(p))), "v_mul_f32 v%d, %s, v25" % (t + 1, hx(f2u(p)))]
    for k, (z, p) in enumerate(zs):
        t = 116 + 4 * k
        o += ["v_rndne_f32 v%d, v%d" % (t + 2, t + 1), "v_exp_f32 v%d, v%d" % (t, t)]
    for k, (z, p) in enumerate(zs):
        t = 116 + 4 * k
        o += ["v_sub_f32 v%d, v%d, v%d" % (t + 1, t + 1, t + 2)]
    for k, (z, p) in enumerate(zs):
        t = 116 + 4 * k
        o += ["v_cos_f32 v%d, v%d" % (z, t + 1), "v_sin_f32 v%d, v%d" % (z + 1, t + 1)]
    for k, (z, p) in enumerate(zs):
        t = 116 + 4 * k
        o += ["v_pk_mul_f32 %s, %s, %s op_sel_hi:[1,0]" % (vr(z, 2), vr(z, 2), vr(t, 2))]
    def wr(row, src, neg):
        t = 132 + ((row - 21) % 4 if not neg else (4 if row in (0, 1, 2, 3, 4, 5, 6, 7, 13, 15) else 5))
        return ["v_cvt_pk_bf16_f32 v%d, v%d, %sv%d" % (t, src, "-" if neg else "", src + 1), "ds_write_addtid_b32 v%d offset:%d" % (t, 4096 + row * 272)]
    plan = [(i, i - 1, Z1) for i in range(1, 8)] + [(13, 10, Z256), (15, 13, Z256)]
    plan2 = [(8, 0, Z256), (12, 8, Z256), (14, 12, Z256), (9, 2, Z256), (16, 14, Z256), (10, 4, Z256), (17, 16, Z256), (11, 6, Z256), (18, 17, Z256), (19, 18, Z256), (20, 19, Z256)]
    ca = [wr(0, EA, True)] + [cmul(EA + 2 * d, EA + 2 * s_, z, 54) + wr(d, EA + 2 * d, True) for d, s_, z in plan]
    cb = [cmul(EA + 2 * d, EA + 2 * s_, z, 56) + wr(d, EA + 2 * d, True) for d, s_, z in plan2]
    C = [38, 40, 42, 44]
    ch = [[], [], [], []]
    ch[0] = [["v_mov_b32 v140, 0x00003f80", "ds_write_addtid_b32 v140 offset:%d" % (4096 + 21 * 272)] + wr(25, Z32, False)]
    ch[1] = [wr(22, Z8, False)]
    ch[2] = [cmul(C[2], Z8, Z8, 50) + wr(23, C[2], False)]
    ch[3] = [[], cmul(C[3], C[2], Z8, 52) + wr(24, C[3], False)]
    for b in range(8, 32, 4): ch[0].append(cmul(C[0], Z32 if b == 8 else C[0], Z32, 46) + wr(21 + b, C[0], False))
    for b in range(5, 32, 4): ch[1].append(cmul(C[1], Z8 if b == 5 else C[1], Z32, 48) + wr(21 + b, C[1], False))
    ch[2].append([])
    for b in range(6, 32, 4): ch[2].append(cmul(C[2], C[2], Z32, 50) + wr(21 + b, C[2], False))
    for b in range(7, 32, 4): ch[3].append(cmul(C[3], C[3], Z32, 52) + wr(21 + b, C[3], False))
    chains = [ca, cb] + ch
    pend = []
    for i in range(max(len(c) for c in chains)):
        grp = [c[i] for c in chains if i < len(c) and c[i]]
        va, ds = [], []
        for k in range(max(len(x) for x in grp)):
            for x in grp:
                if k < len(x): (ds if x[k].startswith("ds_") else va).append(x[k])
        ncv = len([x for x in va if not x.startswith("v_pk")])
        npk = len(va) - ncv
        if npk >= len(pend) and pend: o += interleave(va[:npk], pend) + va[npk:]
        else: o += pend + va
        pend = ds
    o += pend
    return o

def a_p0():
    vm = VM()
    e("s_lshl_b32 s74, %s, 9" % CP, "s_lshl_b32 s75, %s, 7" % W, "s_add_u32 s74, s74, s75", "v_lshl_add_u32 v14, v1, 1, s74")
    for i in range(4): e("global_load_ushort v%d, v14, s[%d:%d]" % (24 + i, 18 + 2 * i, 19 + 2 * i))
    e("s_lshl_b32 s74, %s, 2" % CP, "s_lshl_b32 s75, %s, 1" % WM, "s_add_u32 s74, s74, s75", "v_mov_b32 v15, s74")
    e("global_load_ushort v28, v15, s[26:27]")
    e("buffer_load_dword v29, off, %s, 0 sc1" % sWS)
    e("v_and_b32 v30, 31, v1", "v_lshrrev_b32 v31, 5, v1")
    e("v_bfe_u32 v32, v1, 1, 3")
    e("s_lshl_b32 s74, %s, 13" % WM, "s_add_u32 s74, s74, %d" % RB, "v_lshl_add_u32 v33, v30, 7, s74")
    for s in range(4):
        e("v_add_u32 v34, %d, v31" % (2 * s), "v_xor_b32 v34, v34, v32", "v_lshl_add_u32 v%d, v34, 4, v33" % (XA + s),
          "v_add_u32 v%d, %d, v%d" % (XA2 + s, 2 * SLOT, XA + s))
    e("v_bfe_u32 v34, v1, 4, 1", "v_mul_u32_u24 v34, %d, v34" % WMAT)
    e("v_bfe_u32 v35, v1, 2, 2", "v_lshl_add_u32 v35, v31, 3, v35", "v_mul_u32_u24 v35, 192, v35")
    e("v_and_b32 v36, 3, v1", "v_lshlrev_b32 v36, 3, v36", "v_add3_u32 v34, v34, v35, v36")
    e("s_mul_i32 s74, %s, 96" % WN, "s_add_u32 s74, s74, %d" % (RB + WOFF), "v_add_u32 v%d, s74, v34" % WA, "v_add_u32 v%d, %d, v%d" % (WA2, 2 * SLOT, WA))
    for i in range(4): e("v_mov_b32 v%d, 0x3f803f80" % (ONES + i))
    e("s_mul_i32 s74, %s, %d" % (W, E_W), "s_add_u32 s74, s74, %d" % E_BASE, "s_sub_u32 m0, s74, 4096")
    e("v_mul_u32_u24 v14, 272, v30", "v_lshl_add_u32 v14, v31, 4, v14", "v_add_u32 v14, s74, v14")
    e("s_mul_i32 s75, %s, 3072" % W, "s_add_u32 s75, s75, %d" % T_BASE)
    TA = 58
    e("v_lshlrev_b32 v%d, 5, v30" % TA, "v_lshl_add_u32 v%d, v31, 4, v%d" % (TA, TA), "v_add_u32 v%d, s75, v%d" % (TA, TA))
    e("v_cmp_eq_u32 vcc, 0, v31")
    e("v_lshlrev_b32 v34, 4, v30", "v_add_u32 v34, 1024, v34", "v_lshlrev_b32 v35, 3, v30", "v_add_u32 v35, 1536, v35")
    e("v_add_u32 v36, 8, v34", "v_add_u32 v37, 256, v35")
    e("v_cndmask_b32 v34, v35, v34, vcc", "v_cndmask_b32 v35, v37, v36, vcc")
    e("v_add_u32 v%d, s75, v34" % (TA + 1), "v_add_u32 v%d, s75, v35" % (TA + 2))
    e("v_lshlrev_b32 v34, 2, v30", "v_lshl_add_u32 v34, v31, 9, v34", "v_add_u32 v%d, s75, v34" % (TA + 3))
    e("s_lshl_b32 s84, %s, 1" % MT, "s_add_u32 s84, s84, %s" % WM, "s_mul_i32 s84, s84, 172", "s_mul_i32 s85, %s, 6" % FT, "s_mul_i32 s78, %s, 3" % WN,
      "s_add_u32 s85, s85, s78", "s_add_u32 s84, s84, s85", "s_lshl_b32 s84, s84, 10", "s_add_u32 s84, s84, %d" % WS_H)
    e("s_waitcnt vmcnt(0)")
    e(stamp("lnld"))
    e(kgen_ops())
    e(stamp("kg_chain"))
    e("s_waitcnt lgkmcnt(0)")
    for s in range(8):
        e("ds_read_b128 %s, v14 offset:%d" % (vr(64 + 8 * s, 4), 32 * s), "ds_read_b128 %s, v14 offset:%d" % (vr(68 + 8 * s, 4), 21 * 272 + 32 * s))
    e(tag_from("v29"))
    for s in range(8):
        e("s_waitcnt lgkmcnt(%d)" % (14 - 2 * s))
        e("v_mfma_f32_32x32x16_bf16 v[32:47], %s, %s, %s" % (vr(64 + 8 * s, 4), vr(68 + 8 * s, 4), "0" if s == 0 else "v[32:47]"))
    e("ds_write_b128 v%d, v[32:35]" % TA, "ds_write_b64 v%d, v[36:37]" % (TA + 1), "ds_write_b64 v%d, v[38:39]" % (TA + 2))
    for i in range(4): e("ds_write_b32 v%d, v%d offset:%d" % (TA + 3, 40 + i, 2048 + 128 * i))
    e(stamp("kgen"))
    return vm

def g1_reads(stage, s, buf):
    slot = slot_of(stage)
    o = []
    for b in range(2):
        if slot < 2: o.append("ds_read_b128 %s, v%d offset:%d" % (vr(buf + 4 * b, 4), XA + s, slot * SLOT + 4096 * b))
        else: o.append("ds_read_b128 %s, v%d offset:%d" % (vr(buf + 4 * b, 4), XA2 + s, 4096 * b))
    for a in range(3):
        for q in range(2):
            off = (16 * s + 4 * q) * 192 + 32 * a
            if slot < 2: o.append("ds_read_b64_tr_b16 %s, v%d offset:%d" % (vr(buf + 8 + 4 * a + 2 * q, 2), WA, slot * SLOT + off))
            else: o.append("ds_read_b64_tr_b16 %s, v%d offset:%d" % (vr(buf + 8 + 4 * a + 2 * q, 2), WA2, off))
    return [o[0], o[2], o[3], o[1], o[4], o[5], o[6], o[7]]

def g1_mfmas(buf, first, ones):
    o = []
    for a in range(3):
        for b in range(2):
            acc = ACC + 16 * (2 * a + b)
            o.append("v_mfma_f32_32x32x16_bf16 %s, %s, %s, %s" % (vr(acc, 16), vr(buf + 8 + 4 * a, 4), vr(buf + 4 * b, 4), "0" if first else vr(acc, 16)))
        if ones:
            acc = ONEACC + 16 * a
            o.append("v_mfma_f32_32x32x16_bf16 %s, %s, %s, %s" % (vr(acc, 16), vr(ONES, 4), vr(buf + 8 + 4 * a, 4), "0" if first else vr(acc, 16)))
    return o

def wd_dma(t0, k0, cnt, vm, lab, vo):
    o = []
    for k in range(k0, k0 + cnt):
        o.append(("s_add_u32 m0, s76, %d" % (wd_loc(t0) + k * 4096), "s_add_u32 s78, s77, %d" % (t0 * 16384 + k * 32768),
                  "buffer_load_dwordx4 v%d, %s, s78 offen lds" % (vo, sWD)))
        vm.op(lab)
    return o

def wd_setup():
    return ["s_lshl_b32 s76, %s, 10" % W, "s_lshl_b32 s77, s76, 3", "s_lshl_b32 s78, %s, 7" % J2, "s_add_u32 s77, s77, s78"]

def wd_voff(v, t):
    return ["v_lshrrev_b32 v%d, 3, v1" % t, "v_bfe_u32 v%d, v1, 4, 1" % (t + 1), "v_lshlrev_b32 v%d, 2, v%d" % (t + 1, t + 1),
            "v_and_b32 v%d, 7, v1" % v, "v_xor_b32 v%d, v%d, v%d" % (v, v, t + 1), "v_lshlrev_b32 v%d, 4, v%d" % (v, v),
            "v_lshl_add_u32 v%d, v%d, 10, v%d" % (v, t, v)]

def wd_loc(t):
    if t < 60: return RB + t * 2048
    if t < 80: return RB + (t - 60) * 2048
    return W2B + (t - 80) * 2048

def final_xload(vm, dst, t):
    o = ["v_lshrrev_b32 v%d, 3, v0" % t, "v_and_b32 v%d, 7, v0" % (t + 1), "v_lshlrev_b32 v%d, 4, v%d" % (t + 1, t + 1),
         "v_lshl_add_u32 v%d, v%d, 10, v%d" % (t, t, t + 1),
         "s_lshl_b32 s74, %s, 16" % I2, "s_lshl_b32 s75, %s, 7" % J2, "s_add_u32 s74, s74, s75", "v_add_u32 v%d, s74, v%d" % (t, t),
         "global_load_dwordx4 %s, v%d, s[16:17]" % (vr(dst, 4), t)]
    vm.op("xf")
    return o

XF, XFA = 244, 248

SLOW = []
def a_main(vm):
    bufs = (FR0, FR1)
    prev = None
    n = 0
    gl = []
    CA, CB, KC = 160, 172, 36
    prep = ["s_mov_b32 s74, 0x07060302"]
    for a in range(3): prep += ["v_add_f32 v%d, v%d, v%d" % (20 + a, 20 + a, 24 + a), "v_add_f32 v%d, v%d, v%d" % (28 + a, 28 + a, 32 + a)]
    for a in range(3): prep += ["v_add_f32 v%d, v%d, v%d" % (20 + a, 20 + a, 28 + a)]
    for a in range(3):
        prep += ["v_and_b32 v24, 0xffff0000, v%d" % (20 + a), "v_sub_f32 v24, v%d, v24" % (20 + a), "v_and_b32 v25, 0xffff0000, v24", "v_sub_f32 v25, v24, v25",
                 "v_perm_b32 v%d, v24, v%d, s74" % (CA + 4 * a, 20 + a), "v_lshrrev_b32 v%d, 16, v25" % (CA + 4 * a + 1)]
    for b in range(2):
        sv = 16 + 2 * b
        prep += ["v_and_b32 v%d, 0xffff, v%d" % (CB + 4 * b + 1, sv), "v_lshl_or_b32 v%d, v%d, 16, v%d" % (CB + 4 * b, sv, CB + 4 * b + 1),
                 "v_and_b32 v%d, 0xffff0000, v%d" % (sv, sv), "v_rcp_f32 v%d, v%d" % (sv + 1, sv)]
    for b in range(2):
        sv = 16 + 2 * b
        prep += ["v_mul_f32 v%d, v%d, v%d" % (KC + 4 * b + 2, sv, sv), "v_mul_f32 v%d, %s, v%d" % (KC + 4 * b, hx(f2u(GK1)), sv + 1),
                 "v_mul_f32 v%d, v%d, v%d" % (KC + 4 * b + 1, sv + 1, sv + 1), "v_mul_f32 v%d, v%d, v%d" % (KC + 4 * b + 1, KC + 4 * b + 1, sv + 1),
                 "v_mul_f32 v%d, %s, v%d" % (KC + 4 * b + 1, hx(f2u(GK2)), KC + 4 * b + 1)]
    WDV, WB = 13, 50
    g2a = wd_voff(WDV, 14) + \
        ["v_bfe_u32 v14, v1, 2, 2", "v_lshrrev_b32 v15, 5, v1", "v_lshl_add_u32 v15, v15, 2, v14", "v_lshrrev_b32 v14, 1, v14", "v_lshlrev_b32 v14, 2, v14",
         "v_bfe_u32 v62, v1, 4, 1", "v_lshlrev_b32 v62, 1, v62", "v_bfe_u32 v63, v1, 1, 1", "v_add_u32 v62, v62, v63", "v_xor_b32 v62, v62, v14",
         "v_lshlrev_b32 v62, 4, v62", "v_lshl_add_u32 v62, v15, 7, v62", "v_and_b32 v63, 1, v1", "v_lshl_add_u32 v62, v63, 3, v62",
         "s_lshl_b32 s74, %s, 11" % WN, "v_add_u32 v%d, s74, v62" % WB, "v_xor_b32 v%d, 64, v%d" % (WB + 1, WB)]
    for k in (1, 2):
        g2a += ["v_add_u32 v%d, %d, v%d" % (WB + 2 * k, 65536 * k, WB), "v_add_u32 v%d, %d, v%d" % (WB + 2 * k + 1, 65536 * k, WB + 1)]
    for st in range(8):
        e("s_barrier")
        e(stamp("st%d" % st))
        for s in range(4):
            rd = g1_reads(st, s, bufs[n & 1])
            extra = []
            if st == 1 and s == 2:
                extra = ["v_mov_b32 v44, v%d" % ONEACC, "v_mov_b32 v45, v%d" % (ONEACC + 16), "v_mov_b32 v46, v%d" % (ONEACC + 32), "v_mov_b32 v47, %s" % TAG,
                         "s_lshr_b32 s74, %s, 3" % MT, "s_lshl_b32 s74, s74, 4", "s_add_u32 s74, s74, %s" % FT, "s_lshl_b32 s74, s74, 1", "s_add_u32 s74, s74, %s" % WN,
                         "s_lshl_b32 s80, s74, 12", "s_add_u32 s80, s80, %d" % WS_CS, "s_lshl_b32 s75, %s, 9" % KS, "s_add_u32 s74, s80, s75",
                         "v_and_b32 v48, 0x1ff, v12",
                         "buffer_store_dwordx4 v[44:47], v48, %s, s74 offen sc1" % sWS]
                vm.op("cs")
            if st == 2: extra = g2a[len(g2a) * s // 4: len(g2a) * (s + 1) // 4]
            if st == 3 and s == 0:
                extra = ["v_mov_b32 v%d, 0" % r for r in (CA + 2, CA + 3, CA + 6, CA + 7, CA + 10, CA + 11, CB + 2, CB + 3, CB + 6, CB + 7)]
            if st == 3 and s == 2:
                extra = ["v_lshrrev_b32 v49, 5, v1", "v_lshl_add_u32 v49, v49, 11, v48", "v_lshrrev_b32 v48, 1, v48",
                         "s_lshl_b32 s81, %s, 10" % MT, "s_lshl_b32 s75, %s, 9" % WM, "s_add_u32 s81, s81, s75", "s_add_u32 s81, s81, %d" % WS_ST]
                gl = ["buffer_load_dwordx2 v[16:17], v48, %s, s81 offen sc1" % sWS, "buffer_load_dwordx2 v[18:19], v48, %s, s81 offen offset:256 sc1" % sWS]
                gl += ["buffer_load_dwordx4 %s, v49, %s, s80 offen offset:%d sc1" % (vr(20 + 4 * p, 4), sWS, 512 * p) for p in range(4)]
            if st == 6 and s == 0: extra = gl[:3]
            if st == 6 and s == 1: extra = gl[3:]
            if st == 7 and s == 2:
                e(vm.all(), check_retry(gl, [17, 19, 23, 27, 31, 35], 44))
                extra = prep[:22]
            if st == 7 and s == 3: extra = prep[22:40]
            if prev is None: e(rd)
            else:
                k = len(rd)
                e(interleave(prev[:3], rd, per=3), interleave(prev[3:], extra))
            e("s_waitcnt lgkmcnt(0)")
            prev = g1_mfmas(bufs[n & 1], st == 0 and s == 0, st == 0)
            n += 1
    e(interleave(prev, lds_signal(C_A1, 44) + prep[40:]))
    for a in range(3):
        for b in range(2):
            acc = ACC + 16 * (2 * a + b)
            e("v_mfma_f32_32x32x16_bf16 %s, %s, %s, %s" % (vr(acc, 16), vr(CA + 4 * a, 4), vr(CB + 4 * b, 4), vr(acc, 16)))
    e(stamp("loopend"))
    e("s_setprio 3")
    for a in range(3):
        skip = newlab("skiph")
        e("s_cmp_ge_u32 s85, %d" % (86 - a), "s_cbranch_scc1 " + skip)
        seq = []
        for b in range(2):
            acc = ACC + 16 * (2 * a + b)
            k = vr(KC + 4 * b, 2); s2 = vr(KC + 4 * b + 2, 2)
            Q = 180 + 16 * b; P = 188 + 16 * b; O = 212 + 4 * ((2 * a + b) % 4)
            o = []
            for j in range(4): o.append("v_pk_mul_f32 %s, %s, %s" % (vr(Q + 2 * j, 2), vr(acc + 2 * j, 2), vr(acc + 2 * j, 2)))
            for j in range(4): o.append("v_pk_fma_f32 %s, %s, %s, %s op_sel:[0,1,0] op_sel_hi:[1,1,0]" % (vr(Q + 2 * j, 2), vr(Q + 2 * j, 2), k, k))
            for j in range(4): o.append("v_pk_mul_f32 %s, %s, %s" % (vr(Q + 2 * j, 2), vr(Q + 2 * j, 2), vr(acc + 2 * j, 2)))
            for j in range(8): o.append("v_exp_f32 v%d, v%d" % (Q + j, Q + j))
            for j in range(4): o.append("v_pk_mul_f32 %s, %s, %s" % (vr(P + 2 * j, 2), vr(acc + 2 * j, 2), vr(acc + 8 + 2 * j, 2)))
            for j in range(4): o.append("v_pk_fma_f32 %s, %s, %s, %s op_sel:[0,0,0] op_sel_hi:[1,0,0]" % (vr(Q + 2 * j, 2), vr(Q + 2 * j, 2), s2, s2))
            for j in range(8): o.append("v_rcp_f32 v%d, v%d" % (Q + j, Q + j))
            for j in range(4): o.append("v_pk_mul_f32 %s, %s, %s" % (vr(P + 2 * j, 2), vr(P + 2 * j, 2), vr(Q + 2 * j, 2)))
            for j in range(4): o.append("v_cvt_pk_bf16_f32 v%d, v%d, v%d" % (O + j, P + 2 * j, P + 2 * j + 1))
            o.append(("s_add_u32 s78, s84, %d" % (b * 86 * 1024), "buffer_store_dwordx4 %s, v12, %s, s78 offen offset:%d sc1" % (vr(O, 4), sWS, a * 1024)))
            seq.append(o)
        e(merge(seq[0], seq[1]))
        e(skip + ":")
    vm.op("h")
    e(stamp("gelu"))
    e(lds_signal(C_G, 14), wd_setup())
    def wd_reads(jj, dst):
        o = []
        for dt in range(2):
            for q in range(2):
                a = wd_loc(2 * jj) + 1024 * q
                o.append("ds_read_b64_tr_b16 %s, v%d offset:%d" % (vr(dst + 4 * dt + 2 * q, 2), WB + 2 * (a >> 16) + dt, a & 0xffff))
        return o
    PRE = 96
    e(lds_wait(C_B1, 4, 14))
    e(stamp("b1ok"))
    for jj in range(10): e(wd_reads(jj, PRE + 8 * jj))
    A2 = 64; HB = 176; NH = 16; WF = (PRE, PRE + 8)
    e("s_lshl_b32 s74, %s, 1" % I2, "s_add_u32 s74, s74, %s" % WM, "s_mul_i32 s74, s74, 86", "s_add_u32 s74, s74, %s" % WN, "s_lshl_b32 s83, s74, 10",
      "s_add_u32 s83, s83, %d" % WS_H)
    e("v_and_b32 v28, 31, v1", "v_mul_u32_u24 v28, 272, v28", "v_lshrrev_b32 v29, 5, v1", "v_lshl_add_u32 v28, v29, 4, v28")
    e("s_mul_i32 s74, %s, %d" % (WN, 64 * 272), "s_mul_i32 s75, %s, %d" % (WM, 32 * 272), "s_add_u32 s74, s74, s75", "s_add_u32 s74, s74, %d" % PB, "v_add_u32 v28, s74, v28")
    e("s_lshl_b32 s81, %s, 1" % MT, "s_add_u32 s81, s81, %s" % WM, "s_lshl_b32 s81, s81, 5", "s_lshl_b32 s75, %s, 1" % FT, "s_add_u32 s81, s81, s75",
      "s_add_u32 s81, s81, %s" % WN, "s_lshl_b32 s81, s81, 7", "s_add_u32 s81, s81, %d" % WS_F4, "v_mov_b32 v30, %s" % TAG)
    e("v_min_u32 v31, 28, v1", "v_lshlrev_b32 v31, 7, v31", "s_lshl_b32 s82, %s, 12" % I2, "s_add_u32 s82, s82, %d" % WS_F4)
    e("s_waitcnt lgkmcnt(0)")
    e(lds_signal(C_A2, 14), lds_wait(C_A2, 4, 14))
    d2a = wd_dma(60, 0, 10, VM(), "x", WDV)
    N2 = 5
    e(d2a[:N2])
    for i in range(N2): vm.op("2a")
    e(vm.wait("h"))
    e("s_mov_b64 exec, 1", "buffer_store_dword v30, off, %s, s81 sc1" % sWS, "s_mov_b64 exec, -1"); vm.op("f4")
    e(stamp("hack"))
    e("s_setprio 0")
    e(d2a[N2:])
    e(final_xload(vm, XF, XFA))
    pl = ["buffer_load_dword v15, v31, %s, s82 offen sc1" % sWS]
    e(pl, vm.all())
    e(lds_signal(C_A3, 20))
    e(check_retry(pl, [15], 16))
    e(stamp("hpoll"))
    def hload(jj):
        vm.op("h%d" % jj)
        o = []
        if jj % 2 == 0 and jj > 0: o.append("s_add_u32 s83, s83, 4096")
        o.append("buffer_load_dwordx4 %s, v12, %s, s83 offen offset:%d sc1" % (vr(HB + 4 * (jj % NH), 4), sWS, 2048 * (jj & 1)))
        return o
    PD = 12
    for jj in range(PD): e(hload(jj))
    e(lds_wait(C_B2, 4, 20), lds_wait(C_A3, 4, 20))
    for jj in range(43):
        if jj == 18: e(lds_signal(C_P, 20))
        if jj == 39: e(lds_wait(C_B3, 4, 20), stamp("b3ok"))
        if jj == 31: e(lds_signal(C_A4, 20))
        wf = PRE + 8 * jj if jj < 10 else WF[jj & 1]
        e(vm.wait("h%d" % jj).replace("s_waitcnt", "s_waitcnt lgkmcnt(0)") if jj >= 10 else vm.wait("h%d" % jj))
        if jj == 1: e(stamp("h0"))
        if jj == 36: e(stamp("h36"))
        hb_ = vr(HB + 4 * (jj % NH), 4)
        e("v_mfma_f32_32x32x16_bf16 %s, %s, %s, %s" % (vr(A2, 16), vr(wf, 4), hb_, "0" if jj == 0 else vr(A2, 16)))
        if jj + 1 < 43 and jj + 1 >= 10: e(wd_reads(jj + 1, WF[(jj + 1) & 1]))
        if jj + PD < 43: e(hload(jj + PD))
        e("v_mfma_f32_32x32x16_bf16 %s, %s, %s, %s" % (vr(A2 + 16, 16), vr(wf + 4, 4), hb_, "0" if jj == 0 else vr(A2 + 16, 16)))
    e(stamp("g2end"))
    e(lds_wait(C_A4, 4, 20))
    for dt in range(2):
        for jj in range(4): e("ds_write_b128 v28, %s offset:%d" % (vr(A2 + 16 * dt + 4 * jj, 4), 128 * dt + 32 * jj))
    e("s_waitcnt lgkmcnt(0)")
    e("s_branch L_final")
    e(SLOW)

VX0, VX1, VW = 2, 3, 4
KD_ = "s86"
def stage_dma(st, vm):
    slot = RB + slot_of(st) * SLOT
    o = ["s_lshl_b32 s78, %s, 7" % KD_, "s_add_u32 s78, s78, s84", "s_mul_i32 s79, %s, %d" % (KD_, 64 * 2752), "s_add_u32 s79, s79, s85",
         "s_add_u32 %s, %s, 1" % (KD_, KD_), "s_and_b32 %s, %s, 7" % (KD_, KD_)]
    for i in range(4):
        g = ["s_add_u32 m0, s80, %d" % (slot + 1024 * i)]
        if i: g.append("s_add_u32 s78, s78, 8192")
        g.append("buffer_load_dwordx4 v%d, %s, s78 offen lds" % (VX0 + (i & 1), sX)); vm.op("st%d" % st)
        o.append(tuple(g))
    for i in range(3):
        for m, srd in enumerate((sWG, sWU)):
            o.append(("s_add_u32 m0, s81, %d" % (slot + WOFF + m * WMAT + 1024 * i), "buffer_load_dwordx4 v%d, %s, s79 offen lds" % (VW + i, srd)))
            vm.op("st%d" % st)
    return o

def b_path():
    vm = VM()
    e("L_B:")
    e("s_lshl_b32 s74, %s, 13" % G, "s_lshl_b32 s75, %s, 11" % W, "s_add_u32 s74, s74, s75", "v_add_u32 v13, s74, v12")
    e("global_load_dwordx4 v[16:19], v13, s[16:17]", "global_load_dwordx4 v[20:23], v13, s[16:17] offset:1024")
    vm.op("ln"); vm.op("ln")
    e("buffer_load_dword v29, off, %s, 0 sc1" % sWS); vm.op("ep")
    e("s_lshl_b32 s74, %s, 2" % CP, "s_lshl_b32 s75, %s, 1" % WM, "s_add_u32 s74, s74, s75", "v_mov_b32 v15, s74")
    e("global_load_ushort v28, v15, s[28:29]"); vm.op("dsk")
    e("v_lshrrev_b32 v210, 3, v1", "v_lshrrev_b32 v211, 4, v1", "v_and_b32 v212, 7, v1", "v_xor_b32 v211, v211, v212", "v_lshlrev_b32 v211, 4, v211",
      "v_lshl_add_u32 v%d, v210, 10, v211" % VX0, "v_xor_b32 v%d, 64, v%d" % (VX1, VX0))
    e("s_waitcnt vmcnt(0)" if False else "s_nop 0")
    for i in range(3):
        e("v_add_u32 v210, %d, v1" % (64 * i), "v_mul_u32_u24 v211, 5462, v210", "v_lshrrev_b32 v211, 16, v211", "v_mul_u32_u24 v212, 12, v211",
          "v_sub_u32 v212, v210, v212", "v_mul_u32_u24 v211, 2752, v211", "v_lshl_add_u32 v%d, v212, 4, v211" % (VW + i))
    e("s_lshl_b32 s80, %s, 12" % W, "s_mul_i32 s81, %s, 3072" % W)
    e("s_lshl_b32 s84, %s, 17" % MT, "s_lshl_b32 s74, %s, 15" % W, "s_add_u32 s84, s84, s74")
    e("s_mul_i32 s85, s87, 192", "s_mul_i32 s74, %s, %d" % (W, 16 * 2752), "s_add_u32 s85, s85, s74")
    d0 = stage_dma(0, VM())
    e(d0[:12])
    for i in range(6): vm.op("st0")
    WDV, VK, VU = 7, 8, 9
    e(wd_voff(WDV, 210))
    e("v_lshlrev_b32 v210, 2, v1", "v_add_u32 v210, %d, v210" % CNT_BASE, "v_mov_b32 v211, 0", "ds_write_b32 v210, v211")
    e("v_and_b32 v210, 1, v1", "v_mul_u32_u24 v210, %d, v210" % R_CP, "v_bfe_u32 v212, v1, 1, 3", "v_sub_u32 v212, 7, v212", "v_lshl_add_u32 v210, v212, 6, v210",
      "v_lshrrev_b32 v212, 4, v1", "v_lshl_add_u32 v210, v212, 4, v210", "s_mul_i32 s74, %s, %d" % (WM, 2 * R_CP), "s_add_u32 s74, s74, %d" % R_BASE, "s_lshl_b32 s75, %s, 8" % WN, "s_add_u32 s74, s74, s75", "v_add_u32 v%d, s74, v210" % VK)
    e("v_bfe_u32 v210, v1, 2, 2", "v_add_u32 v210, v210, v212", "v_lshlrev_b32 v210, 4, v210", "v_and_b32 v213, 3, v1", "v_lshl_add_u32 v210, v213, 2, v210",
      "v_and_b32 v213, 1, v1", "v_mul_u32_u24 v213, %d, v213" % (U_CP - 4), "v_sub_u32 v210, v210, v213",
      "s_mul_i32 s74, %s, %d" % (WM, 2 * U_CP), "s_add_u32 s74, s74, %d" % (U_BASE + U_CP), "s_add_u32 s74, s74, s75", "v_add_u32 v%d, s74, v210" % VU)
    LNA = 10
    e("v_bfe_u32 v210, v1, 2, 2", "v_mul_u32_u24 v210, %d, v210" % LNP, "v_lshrrev_b32 v211, 4, v1", "v_lshl_add_u32 v210, v211, 5, v210",
      "v_and_b32 v211, 3, v1", "v_lshl_add_u32 v210, v211, 3, v210", "s_lshl_b32 s74, %s, 8" % W, "s_add_u32 s74, s74, %d" % LNS, "v_add_u32 v%d, s74, v210" % LNA)
    T8, T16, TM, RD, RC, RB = 84, 85, 86, 87, 88, 89
    e("s_mul_i32 s74, %s, 6144" % WM, "s_add_u32 s74, s74, %d" % T_BASE)
    e("v_lshl_add_u32 v%d, v1, 3, s74" % T8, "v_add_u32 v%d, s74, v12" % T16, "v_add_u32 v%d, -4, v%d" % (TM, T16))
    e("s_mul_i32 s74, %s, %d" % (W, R_CP), "s_add_u32 s74, s74, %d" % R_BASE, "v_sub_u32 v213, 63, v1")
    e("v_lshl_add_u32 v%d, v213, 5, s74" % RD, "v_lshl_add_u32 v%d, v213, 4, s74" % RC, "v_lshl_add_u32 v%d, v213, 3, s74" % RB)
    e("s_cmp_eq_u32 %s, 1" % WN, "s_cselect_b64 s[72:73], -1, 0")
    e(vm.wait("dsk"), stamp("lnld"))
    d1 = stage_dma(1, VM())
    ln = flat(ln_ops(VM()))
    e(merge(ln[:-1], d0[12:] + [tuple(d1[:6])] + d1[6:9]))
    for i in range(4): vm.op("st0")
    for i in range(3): vm.op("st1")
    e(ln[-1]); vm.op("stats")
    e(stamp("lndone"))
    e(d1[9:12])
    for i in range(3): vm.op("st1")
    e(stamp("iss1"), vm.wait("st0").replace("s_waitcnt", "s_waitcnt lgkmcnt(0)"))
    e(stamp("st0land"))
    def endit(st, lg=False):
        w = vm.wait("st%d" % st)
        if lg: w = w.replace("s_waitcnt", "s_waitcnt lgkmcnt(0)")
        e(stamp("iss%d" % (st + 1)), w, stamp("land%d" % st), "s_barrier")
    if "--prioB" in sys.argv: e("s_setprio 1")
    e("s_barrier")
    for rnd in range(2):
        for q in range(2): e("ds_read_b64_tr_b16 %s, v%d offset:%d" % (vr(20 + 4 * rnd + 2 * q, 2), LNA, 4 * q * LNP + 128 * rnd))
    e(d1[12:])
    for i in range(4): vm.op("st1")
    e(stage_dma(2, vm))
    e("s_lshl_b32 s74, %s, 13" % G, "s_lshl_b32 s75, %s, 11" % W, "s_add_u32 s74, s74, s75", "s_add_u32 s74, s74, %d" % WS_XT)
    e("s_waitcnt lgkmcnt(0)")
    for rnd in range(2):
        e("buffer_store_dwordx4 %s, v12, %s, s74 offen offset:%d sc1" % (vr(20 + 4 * rnd, 4), sWS, 1024 * rnd)); vm.op("xt")
    endit(1)
    rd = []
    for t in range(2):
        b = 32 + 16 * t; o = 3072 * t
        rd += ["ds_read_b64 %s, v%d offset:%d" % (vr(b, 2), T8, o + 2048), "ds_read_b32 v%d, v%d offset:%d" % (b + 2, T8, o + 2056),
               "ds_read_b32 v%d, v%d offset:%d" % (b + 3, T8, o + 1020),
               "ds_read_b64 %s, v%d offset:%d" % (vr(b + 4, 2), T8, o + 1536), "ds_read_b32 v%d, v%d offset:%d" % (b + 6, T8, o + 1544),
               "ds_read_b32 v%d, v%d offset:%d" % (b + 7, TM, o),
               "ds_read_b64 %s, v%d offset:%d" % (vr(b + 8, 2), T8, o + 1024), "ds_read_b32 v%d, v%d offset:%d" % (b + 10, T8, o + 1032),
               "ds_read_b128 %s, v%d offset:%d" % (vr(b + 12, 4), T16, o)]
    e(merge(stage_dma(3, vm), rd))
    endit(2, True)
    S = "s[72:73]"
    cv = lambda d, lo, hi: "v_cvt_pk_bf16_f32 v%d, v%d, v%d" % (d, lo, hi)
    x1 = ["v_cmp_eq_u32 vcc, 0, v1", "v_lshlrev_b32 v28, 16, v28"]
    x1 += ["v_add_f32 v%d, v%d, v%d" % (32 + k, 32 + k, 48 + k) for k in (0, 1, 2, 3, 4, 5, 6, 7, 8, 9, 10, 12, 13, 14, 15)]
    x1 += ["v_cndmask_b32 v28, 0, v28, vcc", "v_cndmask_b32 v35, v40, v35, vcc", "v_cndmask_b32 v39, v39, 0, vcc", "v_add_f32 v44, v44, v28"]
    x1 += ["v_cndmask_b32 v48, v33, v34, %s" % S, "v_cndmask_b32 v49, v32, v33, %s" % S,
           cv(64, 34, 34), cv(65, 34, 48), cv(66, 33, 33), cv(67, 33, 33), cv(68, 33, 33), cv(69, 49, 32), cv(70, 32, 32), cv(71, 32, 32)]
    e(merge(stage_dma(4, vm), x1))
    endit(3)
    x2 = ["v_cndmask_b32 v48, v37, v38, %s" % S, "v_cndmask_b32 v49, v36, v37, %s" % S, cv(72, 38, 48), cv(73, 37, 37), cv(74, 49, 36), cv(75, 36, 36),
          "v_cndmask_b32 v48, v41, v42, %s" % S, "v_cndmask_b32 v49, v40, v41, %s" % S, "v_cndmask_b32 v50, v35, v40, %s" % S, cv(76, 48, 49), cv(77, 40, 50),
          "v_cndmask_b32 v48, v46, v47, %s" % S, "v_cndmask_b32 v49, v45, v46, %s" % S, "v_cndmask_b32 v50, v44, v45, %s" % S, "v_cndmask_b32 v51, v39, v44, %s" % S,
          cv(78, 48, 49), cv(79, 50, 51), "v_mov_b32 v80, 0", "v_mov_b32 v81, 0",
          "ds_write_b128 v%d, v[64:67]" % RD, "ds_write_b128 v%d, v[68:71] offset:16" % RD, "ds_write_b128 v%d, v[72:75] offset:2048" % RC,
          "ds_write_b64 v%d, v[76:77] offset:3072" % RB, "ds_write_b64 v%d, v[78:79] offset:3584" % RB, "ds_write_b64 v%d, v[80:81] offset:4096" % RB]
    e("s_lshl_b32 s74, %s, 2" % G, "s_add_u32 s74, s74, %d" % WS_F3, "s_cmp_eq_u32 %s, 0" % W, "s_cselect_b32 s74, s74, 0x7ffffff0", "v_mov_b32 v16, %s" % TAG)
    e("s_mov_b64 exec, 1", "buffer_store_dword v16, off, %s, s74 sc1" % sWS, "s_mov_b64 exec, -1"); vm.op("f3s")
    e(merge(stage_dma(5, vm), x2[:19]))
    endit(4)
    UG, UL = 90, 91
    x3 = ["v_lshrrev_b32 v16, 1, v1", "v_and_b32 v17, 1, v1", "v_lshlrev_b32 v%d, 13, v16" % UG, "v_lshl_add_u32 v%d, v17, 4, v%d" % (UG, UG),
          "v_mul_u32_u24 v17, %d, v17" % (2 * U_CP), "v_lshl_add_u32 v17, v16, 4, v17", "s_lshl_b32 s74, %s, 10" % W, "s_add_u32 s74, s74, %d" % U_BASE, "v_add_u32 v%d, s74, v17" % UL,
          "s_mul_i32 s74, %s, %d" % (W, U_CP), "s_add_u32 s74, s74, %d" % U_BASE, "s_sub_u32 s75, 15, %s" % WN, "v_min_u32 v92, s75, v1", "v_lshl_add_u32 v92, v92, 2, s74",
          "ds_write_b32 v92, v80"]
    x3 += ["v_mov_b32 v%d, 0" % (32 + i) for i in range(32)]
    e(merge(stage_dma(6, vm), x3[:14]))
    endit(5)
    e(merge(stage_dma(7, vm), x3[15:]))
    endit(6, True)
    e("s_mov_b32 s82, %d" % WS_F3)
    pl = ["buffer_load_dwordx4 v[20:23], v12, %s, s82 offen sc1" % sWS]
    e(pl); vm.op("f3")
    e(wd_setup(), wd_dma(0, 0, 4, vm, "1a", WDV))
    endit(7)
    e(stamp("b7"))
    e("s_setprio 2")
    e(vm.wait("f3"))
    e(check_retry(pl, [20, 21, 22, 23], 24))
    e(stamp("f3ok"))
    e("s_lshl_b32 s74, %s, 19" % W, "s_lshl_b32 s75, %s, 5" % CP, "s_add_u32 s74, s74, s75", "s_add_u32 s74, s74, %d" % WS_XT, "s_add_u32 s75, s74, 0x40000")
    e("buffer_load_dwordx4 v[20:23], v%d, %s, s74 offen sc1" % (UG, sWS)); vm.op("u")
    e("buffer_load_dwordx4 v[24:27], v%d, %s, s75 offen sc1" % (UG, sWS)); vm.op("u")
    e("s_or_b32 s74, s2, %s" % W, "s_cmp_eq_u32 s74, 0", "s_cselect_b32 s74, 0, 0x7ffffff0", "v_mov_b32 v16, %s" % TAG)
    e("s_mov_b64 exec, 1", "buffer_store_dword v16, off, %s, s74 sc1" % sWS, "s_mov_b64 exec, -1"); vm.op("eps")
    e(x2[19:], x3[14])
    e(wd_dma(0, 4, 6, vm, "1a", WDV))
    e(vm.wait("u"))
    for k in range(2):
        b = 20 + 4 * k
        e("ds_write_b128 v%d, %s offset:%d" % (UL, vr(b, 4), 64 + 512 * k))
        e("ds_write_b32 v%d, v%d offset:%d" % (UL, b, U_CP + 60 + 512 * k), "ds_write_b32 v%d, v%d offset:%d" % (UL, b + 1, U_CP + 64 + 512 * k),
          "ds_write_b32 v%d, v%d offset:%d" % (UL, b + 2, U_CP + 68 + 512 * k), "ds_write_b32 v%d, v%d offset:%d" % (UL, b + 3, U_CP + 72 + 512 * k))
    e("s_waitcnt lgkmcnt(0)")
    e(lds_signal(C_U, 16))
    e(stamp("uwr"))
    e(wd_dma(0, 10, 10, vm, "1b", WDV))
    e(vm.wait("1a"), lds_signal(C_B1, 16))
    e(lds_wait(C_A1, 4, 16))
    e(wd_dma(40, 0, 10, vm, "1c", WDV))
    e(stamp("iss1c"))
    e(lds_wait(C_U, 4, 16))
    CA = 32; FB = (64, 128)
    def reads(rho, buf):
        o = []
        for i in range(8):
            o.append("ds_read_b128 %s, v%d offset:%d" % (vr(buf + 4 * i, 4), VK, 512 * (7 - i) + 64 * rho))
            o.append("ds_read_b64 %s, v%d offset:%d" % (vr(buf + 32 + 4 * i, 2), VU, 512 * i + 64 * rho))
            o.append("ds_read_b64 %s, v%d offset:%d" % (vr(buf + 34 + 4 * i, 2), VU, 512 * i + 64 * rho + 8))
        return o
    e(reads(0, FB[0]))
    e(lds_wait(C_G, 4, 16))
    e(stamp("cvgo"))
    e("s_mov_b32 s79, 0", "L_cv:")
    for rho in range(2):
        buf = FB[rho]
        pairs = sorted([(sg, t) for t in range(8) for sg in range(t + 1)])
        mf = ["v_mfma_f32_16x16x32_bf16 %s, %s, %s, %s" % (vr(CA + 4 * t, 4), vr(buf + 4 * (t - sg), 4), vr(buf + 32 + 4 * sg, 4), vr(CA + 4 * t, 4)) for sg, t in pairs]
        e("s_waitcnt lgkmcnt(0)")
        fill = reads(rho + 1, FB[1 - rho])
        if rho == 1: fill += ["v_add_u32 v%d, 128, v%d" % (VK, VK), "v_add_u32 v%d, 128, v%d" % (VU, VU)]
        e(interleave(mf, fill, per=1))
    e(vm.all(), lds_signal(C_B2, 16))
    e("s_add_u32 s79, s79, 1", "s_cmp_lt_u32 s79, 2", "s_cbranch_scc1 L_cv")
    e(stamp("conv"))
    e("s_waitcnt lgkmcnt(0)", lds_signal(C_CV, 18))
    e("s_lshl_b32 s74, %s, 12" % W, "s_add_u32 s74, s74, %d" % R_BASE, "v_add_u32 v24, s74, v12", "v_xor_b32 v25, 4096, v12", "s_xor_b32 s75, %s, 1" % W,
      "s_lshl_b32 s75, s75, 12", "s_add_u32 s75, s75, %d" % R_BASE, "v_add_u32 v25, s75, v12")
    e(lds_wait(C_CV, 4, 18))
    lo, dn = newlab("rlo"), newlab("rdn")
    e("s_cmp_eq_u32 %s, 0" % WN, "s_cbranch_scc1 " + lo)
    for k in range(4): e("ds_write_b128 v24, %s offset:%d" % (vr(CA + 4 * k, 4), 1024 * k))
    e("s_waitcnt lgkmcnt(0)")
    for k in range(16): e("v_mov_b32 v%d, v%d" % (CA + k, CA + 16 + k))
    e("s_branch " + dn, lo + ":")
    for k in range(4): e("ds_write_b128 v24, %s offset:%d" % (vr(CA + 16 + 4 * k, 4), 1024 * k))
    e(dn + ":")
    e("s_waitcnt lgkmcnt(0)", lds_signal(C_X, 18))
    e(lds_wait(C_X, 4, 18))
    for k in range(4): e("ds_read_b128 %s, v25 offset:%d" % (vr(64 + 4 * k, 4), 1024 * k))
    e("v_lshrrev_b32 v16, 4, v1", "v_lshlrev_b32 v16, 17, v16", "v_and_b32 v17, 15, v1", "v_lshl_add_u32 v16, v17, 4, v16")
    e("s_lshl_b32 s74, %s, 1" % CP, "s_add_u32 s74, s74, %s" % WM, "s_lshl_b32 s74, s74, 8", "s_lshl_b32 s75, %s, 21" % WN, "s_add_u32 s74, s74, s75", "s_add_u32 s74, s74, %d" % WS_Z)
    for k in range(4): e("v_mov_b32 v%d, %s" % (50 + 4 * k, TAG), "v_mov_b32 v%d, %s" % (51 + 4 * k, TAG))
    e("s_waitcnt lgkmcnt(0)")
    for k in range(8): e("v_pk_add_f32 %s, %s, %s" % (vr(CA + 2 * k, 2), vr(CA + 2 * k, 2), vr(64 + 2 * k, 2)))
    for k in range(4):
        e(cv(48 + 4 * k, CA + 4 * k, CA + 4 * k + 1), cv(49 + 4 * k, CA + 4 * k + 2, CA + 4 * k + 3))
        if k: e("s_add_u32 s74, s74, 0x80000")
        e("buffer_store_dwordx4 %s, v16, %s, s74 offen sc1" % (vr(48 + 4 * k, 4), sWS)); vm.op("z")
    e(stamp("zst"))
    e(wd_setup(), wd_dma(80, 0, 3, vm, "2b", WDV))
    e(final_xload(vm, XF, XFA))
    e(vm.all(), lds_signal(C_B3, 16))
    e(lds_wait(C_P, 4, 16))
    e("s_lshl_b32 s74, %s, 17" % I2, "s_lshl_b32 s75, %s, 14" % J2, "s_add_u32 s74, s74, s75", "s_lshl_b32 s75, %s, 12" % W, "s_add_u32 s74, s74, s75",
      "s_add_u32 s82, s74, %d" % WS_Z)
    pl = ["buffer_load_dwordx4 %s, v12, %s, s82 offen offset:%d sc1" % (vr(64 + 4 * q, 4), sWS, 1024 * q) for q in range(4)]
    e(pl)
    e("s_lshl_b32 s75, %s, 11" % W, "v_lshrrev_b32 v16, 4, v1", "v_lshlrev_b32 v16, 7, v16", "v_and_b32 v17, 15, v1", "v_lshl_add_u32 v16, v17, 2, v16", "v_add_u32 v16, s75, v16",
      "v_add_u32 v16, %d, v16" % Z_LDS, "v_add_u32 v17, 1024, v16")
    e(vm.all())
    e(check_retry(pl, [66, 70, 74, 78], 18))
    e(stamp("zpoll"))
    for q in range(4): e("ds_write2_b32 v%d, v%d, v%d offset0:%d offset1:%d" % (16 + (q >> 1), 64 + 4 * q, 65 + 4 * q, 128 * (q & 1), 128 * (q & 1) + 16))
    e("v_bfe_u32 v14, v1, 2, 2", "v_lshlrev_b32 v14, 7, v14", "v_lshrrev_b32 v15, 4, v1", "v_lshl_add_u32 v14, v15, 5, v14", "v_and_b32 v15, 3, v1", "v_lshl_add_u32 v14, v15, 3, v14",
      "s_add_u32 s75, s75, %d" % Z_LDS, "v_add_u32 v14, s75, v14")
    e("v_mul_u32_u24 v15, 272, v1", "s_lshl_b32 s75, %s, 6" % W, "s_add_u32 s75, s75, %d" % P2, "v_add_u32 v15, s75, v15")
    e("s_waitcnt lgkmcnt(0)")
    for q in range(4): e("ds_read_b64_tr_b16 %s, v14 offset:%d" % (vr(20 + 2 * q, 2), 512 * q))
    e(lds_wait(C_B3, 4, 40))
    for k in range(8): e("v_lshlrev_b32 v%d, 16, v%d" % (32 + 2 * k, 20 + k), "v_and_b32 v%d, 0xffff0000, v%d" % (33 + 2 * k, 20 + k))
    for q in range(4): e("ds_write_b128 v15, %s offset:%d" % (vr(32 + 4 * q, 4), 16 * q))
    e("s_waitcnt lgkmcnt(0)")

def final():
    e("L_final:")
    e("v_lshrrev_b32 v14, 3, v0", "v_mul_u32_u24 v14, 272, v14", "v_and_b32 v15, 7, v0", "v_lshl_add_u32 v14, v15, 5, v14", "v_add_u32 v15, %d, v14" % P2, "v_add_u32 v14, %d, v14" % PB)
    for j in range(4): e("v_lshlrev_b32 v%d, 16, v%d" % (32 + 2 * j, XF + j), "v_and_b32 v%d, 0xffff0000, v%d" % (33 + 2 * j, XF + j))
    e("s_barrier")
    e(stamp("fin"))
    e("ds_read_b128 v[16:19], v14", "ds_read_b128 v[20:23], v14 offset:16",
      "ds_read_b128 v[24:27], v14 offset:%d" % (64 * 272), "ds_read_b128 v[28:31], v14 offset:%d" % (64 * 272 + 16),
      "ds_read_b128 v[40:43], v15", "ds_read_b128 v[44:47], v15 offset:16")
    e("s_waitcnt lgkmcnt(2)")
    for j in range(4): e("v_pk_add_f32 %s, %s, %s" % (vr(16 + 2 * j, 2), vr(16 + 2 * j, 2), vr(24 + 2 * j, 2)))
    e("s_waitcnt lgkmcnt(0)")
    for j in range(4): e("v_pk_add_f32 %s, %s, %s" % (vr(32 + 2 * j, 2), vr(32 + 2 * j, 2), vr(40 + 2 * j, 2)))
    for j in range(4): e("v_pk_add_f32 %s, %s, %s" % (vr(16 + 2 * j, 2), vr(16 + 2 * j, 2), vr(32 + 2 * j, 2)))
    for j in range(4): e("v_cvt_pk_bf16_f32 v%d, v%d, v%d" % (24 + j, 16 + 2 * j, 17 + 2 * j))
    e("global_store_dwordx4 v%d, v[24:27], s[38:39]" % XFA)
    if DEBUG:
        e("s_waitcnt vmcnt(0)")
        e(stamp("end"))
        e("s_memrealtime s[96:97]", "s_waitcnt lgkmcnt(0)", "v_writelane_b32 v255, s96, 63", "v_writelane_b32 v255, s98, 62")
        e("s_lshl_b32 s74, s2, 11", "s_add_u32 s74, s74, %d" % WS_DBG, "v_lshlrev_b32 v14, 2, v0")
        e("buffer_store_dword v255, v14, %s, s74 offen" % sWS)
        if "--dbgout" in sys.argv:
            e("s_not_b32 s98, s98", "v_mov_b32 v20, s98", "v_mov_b32 v21, s96", "v_mov_b32 v22, 0")
            e("s_cmp_lg_u32 %s, 0" % WAVE, "s_cbranch_scc1 L_end")
            e("s_mov_b64 exec, 1")
            e("global_atomic_umax v22, v20, s[40:41]", "global_atomic_umax v22, v21, s[40:41] offset:4")
            e("s_mov_b64 exec, -1")
            e("s_cmp_lg_u32 s2, 40", "s_cbranch_scc1 L_end")
            sel = ["lnld", "kgen", "st0", "st2", "st6", "st7", "loopend", "gelu", "hack", "hpoll", "b9", "b10"]
            e("v_readlane_b32 s74, v255, 0")
            for n, nm in enumerate(sel + ["fin", "end"]):
                k = {"fin": 60, "end": 61}.get(nm) or STAMPS["A"].index(nm) + 1
                e("v_readlane_b32 s75, v255, %d" % k, "s_sub_u32 s75, s75, s74", "v_mov_b32 v20, s75", "s_mov_b64 exec, 1",
                  "global_store_dword v22, v20, s[40:41] offset:%d" % (8 + 4 * n), "s_mov_b64 exec, -1")
    if "--double" in sys.argv:
        e("s_waitcnt vmcnt(0)", "s_memrealtime s[96:97]", "s_waitcnt lgkmcnt(0)", "s_sub_u32 s74, s96, s98", "s_min_u32 s74, s74, 20000",
          "L_spin:", "s_memrealtime s[92:93]", "s_waitcnt lgkmcnt(0)", "s_sub_u32 s75, s92, s96", "s_cmp_lt_u32 s75, s74", "s_cbranch_scc1 L_spin")
    e("L_end:", "s_endpgm")

prologue()
ROLE[0] = "A"
vm = a_p0()
a_main(vm)
ROLE[0] = "B"
b_path()
ROLE[0] = "AB"
final()
body, npad = pad_hazards(L)

hdr = open("cdna_kernels/%s.s.ref" % NAME).read().split("; Override launch")[0]
out = hdr + "; @launch grid=(256,1,1) block=(512,1,1) lds=163840\n"
out += '.amdgcn_target "amdgcn-amd-amdhsa--gfx950"\n.text\n.globl %s_kernel\n.p2align 8\n.type %s_kernel,@function\n%s_kernel:\n' % (NAME, NAME, NAME)
out += "\n".join(body) + "\n"
out += '''.section .rodata,"a"
.p2align 6
.amdhsa_kernel %s_kernel
  .amdhsa_next_free_vgpr 256
  .amdhsa_next_free_sgpr 102
  .amdhsa_accum_offset 256
  .amdhsa_group_segment_fixed_size 0
  .amdhsa_kernarg_size 112
  .amdhsa_user_sgpr_count 2
  .amdhsa_user_sgpr_kernarg_segment_ptr 1
  .amdhsa_system_sgpr_workgroup_id_x 1
.end_amdhsa_kernel
''' % NAME
path = [a for a in sys.argv[1:] if not a.startswith("--")]
path = path[0] if path else "cdna_kernels/%s.s" % NAME
open(path, "w").write(out)
print("wrote", path, "lines", len(body), "nops inserted", npad)
if DEBUG:
    import json
    json.dump(STAMPS, open(path[:-2] + ".json", "w"))
```

```python
import sys, struct, math
from asmlib import *

NAME = "parallel_sum__ssm_conv_s4d__geglu_ffn__prompt"
DEBUG = "--stamps" in sys.argv
NCLS = int(([a[6:] for a in sys.argv if a.startswith("--cls=")] + ["8"])[0])
NS = 8 // NCLS

def f2u(x): return struct.unpack("<I", struct.pack("<f", x))[0]
def hx(x): return "0x%08x" % (x & 0xffffffff)
LOG2E = hx(f2u(1.4426950408889634))
INV2PI = hx(f2u(0.15915494309189535))
GK1 = -2.0 * math.sqrt(2.0 / math.pi) * 1.4426950408889634
GK2 = GK1 * 0.044715

WS_EPOCH = 0
WS_F3 = 0x1000
WS_ST = 0x2000
WS_CS = 0x8000
WS_F4 = 0x50000
WS_F5 = 0x70000
WS_DBG = 0x80000
WS_XT = 0x100000
WS_Z = 0x300000
WS_H = 0x700000
WS_SIZE = 0x1000000
SLOT = 41024
XOFF, WOFF, WMAT = 0, 16384, 12320
RB = 40768
R_CP = 4640
U_CP = 4224
U_BASE = 0
R_BASE = RB - 4 * R_CP
T_BASE = 16
LNS = T_BASE + 4 * 3072
LNP = 1088
CNT_BASE = LNS + 8 * LNP
C_X, C_B1, C_A2, C_U, C_CV, C_G, C_B2, C_A3, C_P, C_A1, C_B3, C_A4 = [CNT_BASE + 16 * i for i in range(12)]
E_W = 53 * 272
E_BASE = RB + SLOT - 4 * E_W
assert E_BASE >= R_BASE and CNT_BASE + 256 <= R_BASE and 4 * U_CP <= CNT_BASE and RB + 3 * SLOT == 163840
W2B, Z_LDS, P2, PB = 0, 12288, R_BASE, RB + 40960
def slot_of(st): return (st + 1) % 3
SPIN = 20000

sX, sWG, sWU, sWD, sWS = "s[44:47]", "s[48:51]", "s[52:55]", "s[56:59]", "s[60:63]"
XCD, IDX, MT, FT, WAVE, TAG, W, G = "s64", "s65", "s66", "s67", "s68", "s69", "s70", "s71"
KS, I2, J2, CP, CNT = "s90", "s91", "s92", "s93", "s94"
WM, WN = "s88", "s89"
W4 = "s100"

L = []
def e(*xs):
    for x in xs:
        if isinstance(x, (list, tuple)): e(*x)
        else: L.append(x)

def vr(a, n): return "v[%d:%d]" % (a, a + n - 1)

class VM:
    def __init__(self): self.q = []
    def op(self, lab): self.q.append(lab)
    def wait(self, lab):
        idx = max(i for i, x in enumerate(self.q) if x == lab)
        n = len(self.q) - 1 - idx
        self.q = self.q[idx + 1:]
        assert n <= 63
        return "s_waitcnt vmcnt(%d)" % n
    def all(self):
        self.q = []
        return "s_waitcnt vmcnt(0)"

STAMPS = {"A": [], "B": []}
ROLE = ["AB"]
def stamp(name):
    if not DEBUG: return []
    if ROLE[0] == "AB":
        k = {"start": 0, "fin": 60, "end": 61}[name]
    else:
        lst = STAMPS[ROLE[0]]
        if name not in lst: lst.append(name)
        k = lst.index(name) + 1
        assert k < 60
    o = ["s_memtime s[96:97]", "s_waitcnt lgkmcnt(0)", "v_writelane_b32 v255, s96, %d" % k]
    if "--rt" in sys.argv: o = ["s_memrealtime s[96:97]"] + o[1:]
    return o

def tag_from(v):
    return ["v_readfirstlane_b32 %s, %s" % (TAG, v), "s_mul_i32 %s, %s, 0x9E3779B1" % (TAG, TAG),
            "s_add_u32 %s, %s, 0x7F4A7C15" % (TAG, TAG)]

lab_n = [0]
def newlab(p):
    lab_n[0] += 1
    return "L_%s_%d" % (p, lab_n[0])

def check_retry(loads, tagregs, tmp):
    top, done = newlab("chk"), newlab("ok")
    o = ["s_mov_b32 %s, %d" % (CNT, SPIN), top + ":"]
    o.append("v_xor_b32 v%d, %s, v%d" % (tmp, TAG, tagregs[0]))
    for r in tagregs[1:]:
        o.append("v_xor_b32 v%d, %s, v%d" % (tmp + 1, TAG, r))
        o.append("v_or_b32 v%d, v%d, v%d" % (tmp, tmp, tmp + 1))
    o.append("v_cmp_ne_u32 vcc, 0, v%d" % tmp)
    o.append("s_nop 1")
    o.append("s_cbranch_vccz " + done)
    o.append("s_sub_u32 %s, %s, 1" % (CNT, CNT))
    o.append("s_cbranch_scc1 " + done)
    o.append("s_sleep 1")
    o += loads
    o.append("s_waitcnt vmcnt(0)")
    o.append("s_branch " + top)
    o.append(done + ":")
    return o

def lds_signal(addr, t):
    return ["v_mov_b32 v%d, %s" % (t, W4), "v_mov_b32 v%d, 1" % (t + 1), "ds_write_b32 v%d, v%d offset:%d" % (t, t + 1, addr)]

def lds_wait(addr, target, t):
    top, done = newlab("lw"), newlab("lwd")
    q = t + 2
    return ["v_mov_b32 v%d, 0" % t, "s_mov_b32 %s, 0x400000" % CNT, top + ":", "ds_read_b128 %s, v%d offset:%d" % (vr(q, 4), t, addr), "s_waitcnt lgkmcnt(0)",
            "v_and_b32 v%d, v%d, v%d" % (q, q, q + 1), "v_and_b32 v%d, v%d, v%d" % (q + 2, q + 2, q + 3), "v_and_b32 v%d, v%d, v%d" % (q, q, q + 2),
            "v_readfirstlane_b32 s95, v%d" % q, "s_cmp_lg_u32 s95, 0", "s_cbranch_scc1 " + done,
            "s_sleep 1", "s_sub_u32 %s, %s, 1" % (CNT, CNT), "s_cbranch_scc0 " + top, done + ":"]

def flat(xs):
    o = []
    for x in xs:
        if isinstance(x, list): o += flat(x)
        else: o.append(x)
    return o

def merge(a, b):
    a, b = flat(a), flat(b)
    o = []; i = j = 0
    while i < len(a) or j < len(b):
        if j >= len(b) or (i < len(a) and i * len(b) <= j * len(a)): o.append(a[i]); i += 1
        else: o.append(b[j]); j += 1
    return o

def entry():
    e("s_load_dwordx16 s[16:31], s[0:1], 0", "s_load_dwordx8 s[32:39], s[0:1], 64", "s_load_dwordx4 s[40:43], s[0:1], 96")
    e("s_cmp_ge_u32 s2, 256", "s_cbranch_scc1 L_end")
    e("s_getpc_b64 s[76:77]", "L_pc:", "s_lshr_b32 %s, s2, 3" % IDX, "v_and_b32 v2, 0x1c0, v0", "s_lshl_b32 s74, %s, 10" % IDX, "v_lshl_add_u32 v2, v2, 1, s74",
      "v_min_u32 v2, L_end-L_pc, v2", "global_load_dword v252, v2, s[76:77]")
    e("v_readfirstlane_b32 %s, v0" % WAVE)
    if DEBUG or "--double" in sys.argv:
        e("v_mov_b32 v255, 0", "s_memrealtime s[98:99]")

def ids_early():
    e("v_and_b32 v1, 63, v0", "s_and_b32 %s, s2, 7" % XCD)
    e("s_and_b32 s74, s2, 1", "s_and_b32 s75, %s, 7" % IDX, "s_lshl3_add_u32 %s, s74, s75" % MT)
    e("s_lshr_b32 s74, %s, 1" % XCD, "s_lshr_b32 s75, s2, 6", "s_lshl2_add_u32 %s, s74, s75" % FT)
    e("s_bfe_u32 %s, %s, 0x20006" % (W, WAVE), "v_lshlrev_b32 v12, 4, v1")
    e("s_lshl_b32 s74, %s, 5" % XCD, "s_add_u32 %s, s74, %s" % (CP, IDX), "s_lshl_b32 s15, %s, 2" % CP, "v_mov_b32 v15, 0")
    if NCLS == 8: e("s_lshl1_add_u32 s74, %s, %s" % (FT, MT), "s_and_b32 %s, s74, 7" % KS)
    else: e("s_add_u32 s74, %s, %s" % (FT, MT), "s_and_b32 s74, s74, %d" % (NCLS - 1), "s_mul_i32 %s, s74, %d" % (KS, NS))
    e("s_cmp_eq_u32 %s, 15" % FT)
    e("s_cselect_b32 s87, %s, %s" % (MT, FT), "s_cselect_b32 s86, 0, %s" % KS, "s_cselect_b32 s46, 0, 0x200000")
    e("s_mov_b32 s47, 0x20000")

def ids_late():
    e("s_lshr_b32 %s, %s, 6" % (WAVE, WAVE))
    e("s_mov_b32 s59, s47", "s_mov_b32 s63, s47", "s_mov_b32 s58, 1409024", "s_mov_b32 s62, %d" % WS_SIZE)
    e("s_mov_b32 s60, s42", "s_mov_b32 s61, s43", "s_mov_b32 s56, s36", "s_mov_b32 s57, s37")
    e("s_and_b32 s75, %s, 3" % IDX, "s_lshl2_add_u32 %s, %s, s75" % (I2, XCD), "s_lshr_b32 %s, %s, 2" % (J2, IDX))
    e("s_lshr_b32 %s, %s, 1" % (WM, W), "s_and_b32 %s, %s, 1" % (WN, W), "s_lshl_b32 %s, %s, 2" % (W4, W))

def prologue():
    ids_early()
    d0 = stage_dma(0, VM())
    slot = RB + slot_of(0) * SLOT
    e("s_lshl2_add_u32 s74, %s, %s" % (CP, W), "s_lshl_b32 s74, s74, 7", "v_lshl_add_u32 v14, v1, 1, s74")
    e("s_lshl4_add_u32 %s, %s, %s" % (G, MT, FT), "s_lshl2_add_u32 s74, %s, %s" % (G, W), "s_lshl_b32 s74, s74, 11", "v_add_u32 v13, s74, v12")
    dma_setup_x()
    dma_setup_w()
    e(d0[:6])
    e("s_mov_b32 s51, s47", "s_mov_b32 s55, s47", "s_mov_b32 s11, s47", "s_mov_b32 s50, 1409024")
    e("s_cmp_ge_u32 %s, 256" % WAVE)
    e("s_waitcnt lgkmcnt(0)")
    e(stamp("start"))
    e("s_cbranch_scc1 L_B0")
    for i in range(4): e("global_load_ushort v%d, v14, s[%d:%d]" % (24 + i, 18 + 2 * i, 19 + 2 * i))
    e("s_load_dword s14, s[26:27], s15")
    e("s_branch L_j0", "L_B0:")
    e("global_load_dwordx4 v[16:19], v13, s[16:17]", "global_load_dwordx4 v[20:23], v13, s[16:17] offset:1024")
    e("s_load_dword s14, s[28:29], s15")
    e("L_j0:")
    e("global_load_dword v29, v15, s[42:43] sc1")
    e("s_cselect_b32 s74, 2048, 0", "s_cselect_b32 s75, %d, 0" % WMAT, "s_mov_b32 s44, s16", "s_mov_b32 s45, s17")
    e("s_add_u32 s76, s80, s74", "s_lshl3_add_u32 s78, s74, s78", "s_add_u32 m0, s76, %d" % slot, "s_add_u32 s77, s81, s75")
    e("buffer_load_dwordx4 v%d, %s, s78 offen lds" % (VX0, sX), "s_add_u32 s78, s78, 7168", "buffer_load_dwordx4 v%d, %s, s78 offen offset:1024 lds" % (VX1, sX))
    e("s_add_u32 s74, s36, %d" % (256 * 2752), "s_addc_u32 s75, s37, 0", "s_cmp_eq_u32 %s, 15" % FT)
    e("s_cselect_b64 s[48:49], s[36:37], s[32:33]", "s_cselect_b64 s[52:53], s[74:75], s[34:35]", "s_cselect_b32 s54, %d, s50" % (256 * 2752))
    e("s_add_u32 m0, s77, %d" % (slot + WOFF))
    e("s_cmp_ge_u32 %s, 256" % WAVE, "s_cselect_b64 s[8:9], s[52:53], s[48:49]", "s_cselect_b32 s10, s54, s50")
    for i in range(3): e("buffer_load_dwordx4 v%d, s[8:11], s79 offen offset:%d lds" % (VW + i, 1024 * i))
    ids_late()
    e("s_cmp_ge_u32 %s, 4" % WAVE, "s_cbranch_scc1 L_B")

XA, XA2, WA, WA2 = 2, 6, 10, 11
ACC, ONEACC, FR0, FR1, ONES = 64, 160, 208, 228, 248

def cmul(dst, a, w, t):
    return ["v_pk_mul_f32 %s, %s, %s op_sel:[0,0] op_sel_hi:[0,1]" % (vr(t, 2), vr(a, 2), vr(w, 2)),
            "v_pk_fma_f32 %s, %s, %s, %s op_sel:[1,1,0] op_sel_hi:[1,0,1] neg_lo:[1,0,0]" % (vr(dst, 2), vr(a, 2), vr(w, 2), vr(t, 2))]

def wave_sums(regs, sregs):
    o = []
    for m in ("row_shr:1", "row_shr:2", "row_shr:4", "row_shr:8"):
        for r in regs: o.append("v_add_f32_dpp v%d, v%d, v%d %s row_mask:0xf bank_mask:0xf" % (r, r, r, m))
    for r in regs: o.append("v_add_f32_dpp v%d, v%d, v%d row_bcast:15 row_mask:0xa bank_mask:0xf" % (r, r, r))
    for r in regs: o.append("v_add_f32_dpp v%d, v%d, v%d row_bcast:31 row_mask:0xc bank_mask:0xf" % (r, r, r))
    o += ["v_readlane_b32 %s, v%d, 63" % (sr, r) for r, sr in zip(regs, sregs)]
    return o

def ln_ops(vm):
    o = []
    F, D, T = 160, 176, 192
    for r in range(2):
        for j in range(4):
            o += ["v_lshlrev_b32 v%d, 16, v%d" % (F + 8 * r + 2 * j, 16 + 4 * r + j), "v_and_b32 v%d, 0xffff0000, v%d" % (F + 8 * r + 2 * j + 1, 16 + 4 * r + j)]
    o += ["v_readfirstlane_b32 s4, v%d" % F, "v_readfirstlane_b32 s6, v%d" % (F + 8)]
    for j in range(4):
        for r in range(2):
            o.append("v_pk_add_f32 %s, %s, s[%d:%d] op_sel_hi:[1,0] neg_lo:[0,1] neg_hi:[0,1]" % (vr(D + 8 * r + 2 * j, 2), vr(F + 8 * r + 2 * j, 2), 4 + 2 * r, 5 + 2 * r))
    for r in range(2):
        d = D + 8 * r; t = T + 6 * r
        o += ["v_pk_add_f32 %s, %s, %s" % (vr(t, 2), vr(d, 2), vr(d + 2, 2)), "v_pk_add_f32 %s, %s, %s" % (vr(t + 2, 2), vr(d + 4, 2), vr(d + 6, 2)),
              "v_pk_mul_f32 %s, %s, %s" % (vr(t + 4, 2), vr(d, 2), vr(d, 2))]
    for j in range(1, 4):
        for r in range(2):
            d = D + 8 * r; t = T + 6 * r
            o.append("v_pk_fma_f32 %s, %s, %s, %s" % (vr(t + 4, 2), vr(d + 2 * j, 2), vr(d + 2 * j, 2), vr(t + 4, 2)))
            if j == 1: o.append("v_pk_add_f32 %s, %s, %s" % (vr(t, 2), vr(t, 2), vr(t + 2, 2)))
    for r in range(2):
        t = T + 6 * r
        o += ["v_add_f32 v%d, v%d, v%d" % (t, t, t + 1), "v_add_f32 v%d, v%d, v%d" % (t + 4, t + 4, t + 5)]
    o += wave_sums([T, T + 6, T + 4, T + 10], ["s8", "s9", "s10", "s11"])
    c = 204
    o += ["v_mov_b32 v%d, 0x3b000000" % c]
    o += ["v_mul_f32 v%d, s8, v%d" % (T, c), "v_mul_f32 v%d, s9, v%d" % (T + 1, c), "v_mul_f32 v%d, s10, v%d" % (T + 2, c), "v_mul_f32 v%d, s11, v%d" % (T + 3, c)]
    o += ["v_fma_f32 v%d, -v%d, v%d, v%d" % (T + 2, T, T, T + 2), "v_fma_f32 v%d, -v%d, v%d, v%d" % (T + 3, T + 1, T + 1, T + 3)]
    o += ["v_add_f32 v%d, s4, v%d" % (T, T), "v_add_f32 v%d, s6, v%d" % (T + 1, T + 1)]
    o += ["v_max_f32 v%d, 0, v%d" % (T + 2, T + 2), "v_max_f32 v%d, 0, v%d" % (T + 3, T + 3)]
    MB, M0, S0, S1, RI = T + 4, T + 6, T + 10, T + 11, D
    o += ["v_cvt_pk_bf16_f32 v%d, v%d, v%d" % (MB, T, T + 1), "v_cvt_pk_bf16_f32 v%d, v%d, v%d" % (T + 2, T + 2, T + 3)]
    o += ["v_lshlrev_b32 v%d, 16, v%d" % (M0, MB), "v_and_b32 v%d, 0xffff0000, v%d" % (M0 + 2, MB)]
    o += ["v_lshlrev_b32 v%d, 16, v%d" % (S0, T + 2), "v_and_b32 v%d, 0xffff0000, v%d" % (S1, T + 2)]
    o += ["v_add_f32 v%d, %s, v%d" % (S0, hx(f2u(1e-5)), S0), "v_add_f32 v%d, %s, v%d" % (S1, hx(f2u(1e-5)), S1)]
    sub = [["v_pk_add_f32 %s, %s, %s op_sel_hi:[1,0] neg_lo:[0,1] neg_hi:[0,1]" % (vr(F + 8 * r + 2 * j, 2), vr(F + 8 * r + 2 * j, 2), vr(M0 + 2 * r, 2)) for j in range(4)] for r in range(2)]
    o += ["v_cvt_pk_bf16_f32 v%d, v%d, v%d" % (T + 2, S0, S1)] + sub[0][:2]
    o += ["v_lshlrev_b32 v%d, 16, v%d" % (S0, T + 2), "v_and_b32 v%d, 0xffff0000, v%d" % (S1, T + 2)] + sub[0][2:]
    o += ["v_sqrt_f32 v%d, v%d" % (S0, S0), "v_sqrt_f32 v%d, v%d" % (S1, S1)] + sub[1][:2]
    o += ["v_cvt_pk_bf16_f32 v%d, v%d, v%d" % (T + 2, S0, S1)] + sub[1][2:]
    o += ["v_lshlrev_b32 v%d, 16, v%d" % (S0, T + 2), "v_and_b32 v%d, 0xffff0000, v%d" % (S1, T + 2)]
    o += ["v_rcp_f32 v%d, v%d" % (RI, S0), "v_rcp_f32 v%d, v%d" % (RI + 2, S1)]
    for r in range(2):
        for j in range(4): o.append("v_pk_mul_f32 %s, %s, %s op_sel_hi:[1,0]" % (vr(F + 8 * r + 2 * j, 2), vr(F + 8 * r + 2 * j, 2), vr(RI + 2 * r, 2)))
    for r in range(2):
        for j in range(4): o.append("v_cvt_pk_bf16_f32 v%d, v%d, v%d" % (16 + 4 * r + j, F + 8 * r + 2 * j, F + 8 * r + 2 * j + 1))
    o += ["s_mul_i32 s4, %s, %d" % (W, 2 * LNP), "s_add_u32 s4, s4, %d" % LNS, "v_add_u32 v%d, s4, v12" % c]
    o += ["ds_write_b128 v%d, v[16:19]" % c, "ds_write_b128 v%d, v[20:23] offset:%d" % (c, LNP)]
    o += tag_from("v29")
    o += ["v_xor_b32 v%d, 0x80008000, v%d" % (MB, MB), "v_and_b32 v%d, 0xffff, v%d" % (T, MB), "v_or_b32 v%d, v%d, v%d" % (T, T, S0),
          "v_lshrrev_b32 v%d, 16, v%d" % (T + 1, MB), "v_or_b32 v%d, v%d, v%d" % (T + 1, T + 1, S1),
          "v_cmp_eq_u32 vcc, 0, v1", "v_lshlrev_b32 v%d, 3, v1" % (T + 2), "v_cndmask_b32 v%d, v%d, v%d, vcc" % (T, T + 1, T), "v_mov_b32 v%d, %s" % (T + 1, TAG),
          "s_lshl_b32 s4, %s, 6" % G, "s_lshl_b32 s5, %s, 4" % W, "s_add_u32 s4, s4, s5", "s_add_u32 s4, s4, %d" % WS_ST]
    o.append(("s_mov_b64 exec, 3", "buffer_store_dwordx2 %s, v%d, %s, s4 offen sc1" % (vr(T, 2), T + 2, sWS), "s_mov_b64 exec, -1"))
    vm.op("st")
    return o

def kgen_ops():
    o = []
    for i in range(5): o.append("v_lshlrev_b32 v%d, 16, v%d" % (24 + i, 24 + i))
    o += ["v_mul_f32 v28, %s, v28" % LOG2E, "v_mul_f32 v24, %s, v24" % LOG2E, "v_exp_f32 v28, v28", "v_exp_f32 v24, v24",
          "v_cvt_pk_bf16_f32 v24, v24, v28", "v_and_b32 v28, 0xffff0000, v24", "v_lshlrev_b32 v24, 16, v24",
          "v_mul_f32 v24, v24, v28", "v_mul_f32 v25, v25, v28",
          "v_mul_f32 v24, %s, v24" % hx(f2u(-1.4426950408889634)), "v_mul_f32 v25, %s, v25" % INV2PI, "v_add_f32 v28, v28, v28"]
    EA = 64
    o += ["v_mul_f32 v%d, v26, v28" % EA, "v_mul_f32 v%d, v27, v28" % (EA + 1)]
    Z1, Z8, Z256, Z32 = 30, 32, 34, 36
    zs = ((Z8, 8.0), (Z1, 1.0), (Z32, 32.0), (Z256, 256.0))
    for k, (z, p) in enumerate(zs):
        t = 116 + 4 * k
        o += ["v_mul_f32 v%d, %s, v24" % (t, hx(f2u(p))), "v_mul_f32 v%d, %s, v25" % (t + 1, hx(f2u(p)))]
    for k, (z, p) in enumerate(zs):
        t = 116 + 4 * k
        o += ["v_rndne_f32 v%d, v%d" % (t + 2, t + 1), "v_exp_f32 v%d, v%d" % (t, t)]
    for k, (z, p) in enumerate(zs):
        t = 116 + 4 * k
        o += ["v_sub_f32 v%d, v%d, v%d" % (t + 1, t + 1, t + 2)]
    for k, (z, p) in enumerate(zs):
        t = 116 + 4 * k
        o += ["v_cos_f32 v%d, v%d" % (z, t + 1), "v_sin_f32 v%d, v%d" % (z + 1, t + 1)]
    for k, (z, p) in enumerate(zs):
        t = 116 + 4 * k
        o += ["v_pk_mul_f32 %s, %s, %s op_sel_hi:[1,0]" % (vr(z, 2), vr(z, 2), vr(t, 2))]
    def wr(row, src, neg):
        t = 132 + ((row - 21) % 4 if not neg else (4 if row in (0, 1, 2, 3, 4, 5, 6, 7, 13, 15) else 5))
        return ["v_cvt_pk_bf16_f32 v%d, v%d, %sv%d" % (t, src, "-" if neg else "", src + 1), "ds_write_addtid_b32 v%d offset:%d" % (t, 4096 + row * 272)]
    plan = [(i, i - 1, Z1) for i in range(1, 8)] + [(13, 10, Z256), (15, 13, Z256)]
    plan2 = [(8, 0, Z256), (12, 8, Z256), (14, 12, Z256), (9, 2, Z256), (16, 14, Z256), (10, 4, Z256), (17, 16, Z256), (11, 6, Z256), (18, 17, Z256), (19, 18, Z256), (20, 19, Z256)]
    ca = [wr(0, EA, True)] + [cmul(EA + 2 * d, EA + 2 * s_, z, 54) + wr(d, EA + 2 * d, True) for d, s_, z in plan]
    cb = [cmul(EA + 2 * d, EA + 2 * s_, z, 56) + wr(d, EA + 2 * d, True) for d, s_, z in plan2]
    C = [38, 40, 42, 44]
    ch = [[], [], [], []]
    ch[0] = [["v_mov_b32 v140, 0x00003f80", "ds_write_addtid_b32 v140 offset:%d" % (4096 + 21 * 272)] + wr(25, Z32, False)]
    ch[1] = [wr(22, Z8, False)]
    ch[2] = [cmul(C[2], Z8, Z8, 50) + wr(23, C[2], False)]
    ch[3] = [[], cmul(C[3], C[2], Z8, 52) + wr(24, C[3], False)]
    for b in range(8, 32, 4): ch[0].append(cmul(C[0], Z32 if b == 8 else C[0], Z32, 46) + wr(21 + b, C[0], False))
    for b in range(5, 32, 4): ch[1].append(cmul(C[1], Z8 if b == 5 else C[1], Z32, 48) + wr(21 + b, C[1], False))
    ch[2].append([])
    for b in range(6, 32, 4): ch[2].append(cmul(C[2], C[2], Z32, 50) + wr(21 + b, C[2], False))
    for b in range(7, 32, 4): ch[3].append(cmul(C[3], C[3], Z32, 52) + wr(21 + b, C[3], False))
    chains = [ca, cb] + ch
    pend = []
    for i in range(max(len(c) for c in chains)):
        grp = [c[i] for c in chains if i < len(c) and c[i]]
        va, ds = [], []
        for k in range(max(len(x) for x in grp)):
            for x in grp:
                if k < len(x): (ds if x[k].startswith("ds_") else va).append(x[k])
        ncv = len([x for x in va if not x.startswith("v_pk")])
        npk = len(va) - ncv
        if npk >= len(pend) and pend: o += interleave(va[:npk], pend) + va[npk:]
        else: o += pend + va
        pend = ds
    o += pend
    return o

VX0, VX1, VW = 2, 3, 4
KD_ = "s86"
def stage_dma(st, vm):
    slot = RB + slot_of(st) * SLOT
    o = ["s_lshl_b32 s78, %s, 7" % KD_, "s_add_u32 s78, s78, s84", "s_mul_i32 s79, %s, %d" % (KD_, 64 * 2752), "s_add_u32 s79, s79, s85",
         "s_add_u32 %s, %s, 1" % (KD_, KD_), "s_and_b32 %s, %s, 7" % (KD_, KD_)]
    for i in range(4):
        g = ["s_add_u32 s78, s78, 7168"] if i else ["s_add_u32 m0, s80, %d" % slot]
        g.append("buffer_load_dwordx4 v%d, %s, s78 offen offset:%d lds" % (VX0 + (i & 1), sX, 1024 * i)); vm.op("st%d" % st)
        o.append(tuple(g))
    for m, srd in enumerate((sWG, sWU)):
        for i in range(3):
            g = [] if i else ["s_add_u32 m0, s81, %d" % (slot + WOFF + m * WMAT)]
            g.append("buffer_load_dwordx4 v%d, %s, s79 offen offset:%d lds" % (VW + i, srd, 1024 * i)); vm.op("st%d" % st)
            o.append(tuple(g))
    return o

def dma_setup_x():
    e("v_lshrrev_b32 v210, 3, v1", "v_and_b32 v211, 0x30, v1", "v_and_b32 v212, 0x70, v12", "v_xor_b32 v211, v211, v212",
      "v_lshl_add_u32 v%d, v210, 10, v211" % VX0, "v_xor_b32 v%d, 64, v%d" % (VX1, VX0))
    e("s_lshl_b32 s80, %s, 12" % W, "s_lshl2_add_u32 s84, %s, %s" % (MT, W), "s_lshl_b32 s84, s84, 15")

def dma_setup_w():
    e("v_mul_u32_u24 v210, 5462, v1", "s_movk_i32 s74, 2560")
    for i in range(3):
        if i: e("v_add_u32 v210, %d, v210" % (64 * 5462))
        e("v_lshrrev_b32 v211, 16, v210", "v_mad_u32_u24 v%d, v211, s74, v12" % (VW + i))
    e("s_mul_i32 s81, %s, 3072" % W, "s_mul_i32 s85, s87, 192", "s_mul_i32 s74, %s, %d" % (W, 16 * 2752), "s_add_u32 s85, s85, s74")

def a_p0():
    vm = VM()
    e("v_and_b32 v30, 31, v1", "v_lshrrev_b32 v31, 5, v1")
    e("v_bfe_u32 v32, v1, 1, 3")
    e("s_lshl_b32 s74, %s, 13" % WM, "s_add_u32 s74, s74, %d" % RB, "v_lshl_add_u32 v33, v30, 7, s74")
    for s in range(4):
        e("v_add_u32 v34, %d, v31" % (2 * s), "v_xor_b32 v34, v34, v32", "v_lshl_add_u32 v%d, v34, 4, v33" % (XA + s),
          "v_add_u32 v%d, %d, v%d" % (XA2 + s, 2 * SLOT, XA + s))
    e("v_bfe_u32 v34, v1, 4, 1", "v_mul_u32_u24 v34, %d, v34" % WMAT)
    e("v_bfe_u32 v35, v1, 2, 2", "v_lshl_add_u32 v35, v31, 3, v35", "v_mul_u32_u24 v35, 192, v35")
    e("v_and_b32 v36, 3, v1", "v_lshlrev_b32 v36, 3, v36", "v_add3_u32 v34, v34, v35, v36")
    e("s_mul_i32 s74, %s, 96" % WN, "s_add_u32 s74, s74, %d" % (RB + WOFF), "v_add_u32 v%d, s74, v34" % WA, "v_add_u32 v%d, %d, v%d" % (WA2, 2 * SLOT, WA))
    for i in range(4): e("v_mov_b32 v%d, 0x3f803f80" % (ONES + i))
    e("s_mul_i32 s74, %s, %d" % (W, E_W), "s_add_u32 s74, s74, %d" % E_BASE, "s_sub_u32 m0, s74, 4096")
    e("v_mul_u32_u24 v14, 272, v30", "v_lshl_add_u32 v14, v31, 4, v14", "v_add_u32 v14, s74, v14")
    e("s_mul_i32 s75, %s, 3072" % W, "s_add_u32 s75, s75, %d" % T_BASE)
    TA = 58
    e("v_lshlrev_b32 v%d, 5, v30" % TA, "v_lshl_add_u32 v%d, v31, 4, v%d" % (TA, TA), "v_add_u32 v%d, s75, v%d" % (TA, TA))
    e("v_cmp_eq_u32 vcc, 0, v31")
    e("v_lshlrev_b32 v34, 4, v30", "v_add_u32 v34, 1024, v34", "v_lshlrev_b32 v35, 3, v30", "v_add_u32 v35, 1536, v35")
    e("v_add_u32 v36, 8, v34", "v_add_u32 v37, 256, v35")
    e("v_cndmask_b32 v34, v35, v34, vcc", "v_cndmask_b32 v35, v37, v36, vcc")
    e("v_add_u32 v%d, s75, v34" % (TA + 1), "v_add_u32 v%d, s75, v35" % (TA + 2))
    e("v_lshlrev_b32 v34, 2, v30", "v_lshl_add_u32 v34, v31, 9, v34", "v_add_u32 v%d, s75, v34" % (TA + 3))
    e("s_lshl_b32 s84, %s, 1" % MT, "s_add_u32 s84, s84, %s" % WM, "s_mul_i32 s84, s84, 172", "s_mul_i32 s85, %s, 6" % FT, "s_mul_i32 s78, %s, 3" % WN,
      "s_add_u32 s85, s85, s78", "s_add_u32 s84, s84, s85", "s_lshl_b32 s84, s84, 10", "s_add_u32 s84, s84, %d" % WS_H)
    e("s_and_b32 s86, %s, 7" % MT, "s_lshr_b32 s86, s86, %d" % (NCLS.bit_length() - 1), "s_add_u32 s75, s86, %s" % KS, "s_and_b32 s75, s75, 7", "s_lshl_b32 s75, s75, 9")
    e("s_lshr_b32 s74, %s, 3" % MT, "s_lshl_b32 s74, s74, 4", "s_add_u32 s74, s74, %s" % FT, "s_lshl_b32 s74, s74, 1", "s_add_u32 s74, s74, %s" % WN,
      "s_lshl_b32 s80, s74, 12", "s_add_u32 s80, s80, %d" % WS_CS, "s_add_u32 s79, s80, s75")
    e("s_cmp_eq_u32 %s, 0" % WM, "s_cselect_b32 s86, s86, 15", "s_cselect_b32 s79, s79, 0x7ff00000")
    e("s_lshl_b32 s81, %s, 10" % MT, "s_lshl_b32 s75, %s, 9" % WM, "s_add_u32 s81, s81, s75", "s_add_u32 s81, s81, %d" % WS_ST)
    e("s_waitcnt vmcnt(6) lgkmcnt(0)")
    e("s_lshl_b32 s74, %s, 4" % WM, "s_lshr_b32 s14, s14, s74", "v_mov_b32 v28, s14")
    e(stamp("lnld"))
    e(kgen_ops())
    e(stamp("kg_chain"))
    e("s_waitcnt lgkmcnt(0)")
    for s in range(8):
        e("ds_read_b128 %s, v14 offset:%d" % (vr(64 + 8 * s, 4), 32 * s), "ds_read_b128 %s, v14 offset:%d" % (vr(68 + 8 * s, 4), 21 * 272 + 32 * s))
    e("v_and_b32 v48, 0x1ff, v12", "v_lshrrev_b32 v49, 5, v1", "v_lshl_add_u32 v49, v49, 11, v48")
    for s in range(8):
        e("s_waitcnt lgkmcnt(%d)" % (14 - 2 * s))
        e("v_mfma_f32_32x32x16_bf16 v[32:47], %s, %s, %s" % (vr(64 + 8 * s, 4), vr(68 + 8 * s, 4), "0" if s == 0 else "v[32:47]"))
    e("ds_write_b128 v%d, v[32:35]" % TA, "ds_write_b64 v%d, v[36:37]" % (TA + 1), "ds_write_b64 v%d, v[38:39]" % (TA + 2))
    for i in range(4): e("ds_write_b32 v%d, v%d offset:%d" % (TA + 3, 40 + i, 2048 + 128 * i))
    e(stamp("kgen"))
    e("s_waitcnt vmcnt(0)")
    e(tag_from("v29"))
    e(stamp("land0"))
    return vm

def g1_reads(stage, s, buf):
    slot = slot_of(stage)
    o = []
    for b in range(2):
        if slot < 2: o.append("ds_read_b128 %s, v%d offset:%d" % (vr(buf + 4 * b, 4), XA + s, slot * SLOT + 4096 * b))
        else: o.append("ds_read_b128 %s, v%d offset:%d" % (vr(buf + 4 * b, 4), XA2 + s, 4096 * b))
    for a in range(3):
        for q in range(2):
            off = (16 * s + 4 * q) * 192 + 32 * a
            if slot < 2: o.append("ds_read_b64_tr_b16 %s, v%d offset:%d" % (vr(buf + 8 + 4 * a + 2 * q, 2), WA, slot * SLOT + off))
            else: o.append("ds_read_b64_tr_b16 %s, v%d offset:%d" % (vr(buf + 8 + 4 * a + 2 * q, 2), WA2, off))
    return [o[0], o[2], o[3], o[1], o[4], o[5], o[6], o[7]]

def g1_mfmas(buf, first):
    o = []
    for a in range(3):
        for b in range(2):
            acc = ACC + 16 * (2 * a + b)
            o.append("v_mfma_f32_32x32x16_bf16 %s, %s, %s, %s" % (vr(acc, 16), vr(buf + 8 + 4 * a, 4), vr(buf + 4 * b, 4), "0" if first else vr(acc, 16)))
    return o

def g1_ones(buf, st, s):
    sk = newlab("no1")
    o = ["s_cmp_lg_u32 s86, %d" % st, "s_cbranch_scc1 " + sk]
    for a in range(3):
        acc = ONEACC + 16 * a
        o.append("v_mfma_f32_32x32x16_bf16 %s, %s, %s, %s" % (vr(acc, 16), vr(ONES, 4), vr(buf + 8 + 4 * a, 4), "0" if s == 0 else vr(acc, 16)))
    return o + [sk + ":"]

def wd_dma(t0, k0, cnt, vm, lab, vo):
    o = []
    for k in range(k0, k0 + cnt):
        o.append(("s_add_u32 m0, s76, %d" % (wd_loc(t0) + k * 4096), "s_add_u32 s78, s77, %d" % (t0 * 16384 + k * 32768),
                  "buffer_load_dwordx4 v%d, %s, s78 offen lds" % (vo, sWD)))
        vm.op(lab)
    return o

def wd_setup():
    return ["s_lshl_b32 s76, %s, 10" % W, "s_lshl_b32 s77, s76, 3", "s_lshl_b32 s78, %s, 7" % J2, "s_add_u32 s77, s77, s78"]

def wd_voff(v, t):
    return ["v_lshrrev_b32 v%d, 3, v1" % t, "v_bfe_u32 v%d, v1, 4, 1" % (t + 1), "v_lshlrev_b32 v%d, 2, v%d" % (t + 1, t + 1),
            "v_and_b32 v%d, 7, v1" % v, "v_xor_b32 v%d, v%d, v%d" % (v, v, t + 1), "v_lshlrev_b32 v%d, 4, v%d" % (v, v),
            "v_lshl_add_u32 v%d, v%d, 10, v%d" % (v, t, v)]

def wd_loc(t):
    if t < 60: return RB + t * 2048
    if t < 80: return RB + (t - 60) * 2048
    return W2B + (t - 80) * 2048

def final_xload(vm, dst, t):
    o = ["v_lshrrev_b32 v%d, 3, v0" % t, "v_and_b32 v%d, 7, v0" % (t + 1), "v_lshlrev_b32 v%d, 4, v%d" % (t + 1, t + 1),
         "v_lshl_add_u32 v%d, v%d, 10, v%d" % (t, t, t + 1),
         "s_lshl_b32 s74, %s, 16" % I2, "s_lshl_b32 s75, %s, 7" % J2, "s_add_u32 s74, s74, s75", "v_add_u32 v%d, s74, v%d" % (t, t),
         "global_load_dwordx4 %s, v%d, s[16:17]" % (vr(dst, 4), t)]
    vm.op("xf")
    return o

XF, XFA = 244, 248

SLOW = []
def a_main(vm):
    bufs = (FR0, FR1)
    prev = None
    n = 0
    gl = []
    CA, CB, KC = 160, 172, 36
    prep = ["s_mov_b32 s74, 0x07060302"]
    for a in range(3): prep += ["v_add_f32 v%d, v%d, v%d" % (20 + a, 20 + a, 24 + a), "v_add_f32 v%d, v%d, v%d" % (28 + a, 28 + a, 32 + a)]
    for a in range(3): prep += ["v_add_f32 v%d, v%d, v%d" % (20 + a, 20 + a, 28 + a)]
    for a in range(3):
        prep += ["v_and_b32 v24, 0xffff0000, v%d" % (20 + a), "v_sub_f32 v24, v%d, v24" % (20 + a), "v_and_b32 v25, 0xffff0000, v24", "v_sub_f32 v25, v24, v25",
                 "v_perm_b32 v%d, v24, v%d, s74" % (CA + 4 * a, 20 + a), "v_lshrrev_b32 v%d, 16, v25" % (CA + 4 * a + 1)]
    for b in range(2):
        sv = 16 + 2 * b
        prep += ["v_and_b32 v%d, 0xffff, v%d" % (CB + 4 * b + 1, sv), "v_lshl_or_b32 v%d, v%d, 16, v%d" % (CB + 4 * b, sv, CB + 4 * b + 1),
                 "v_and_b32 v%d, 0xffff0000, v%d" % (sv, sv), "v_rcp_f32 v%d, v%d" % (sv + 1, sv)]
    for b in range(2):
        sv = 16 + 2 * b
        prep += ["v_mul_f32 v%d, v%d, v%d" % (KC + 4 * b + 2, sv, sv), "v_mul_f32 v%d, %s, v%d" % (KC + 4 * b, hx(f2u(GK1)), sv + 1),
                 "v_mul_f32 v%d, v%d, v%d" % (KC + 4 * b + 1, sv + 1, sv + 1), "v_mul_f32 v%d, v%d, v%d" % (KC + 4 * b + 1, KC + 4 * b + 1, sv + 1),
                 "v_mul_f32 v%d, %s, v%d" % (KC + 4 * b + 1, hx(f2u(GK2)), KC + 4 * b + 1)]
    WDV, WB = 13, 50
    g2a = wd_voff(WDV, 14) + \
        ["v_bfe_u32 v14, v1, 2, 2", "v_lshrrev_b32 v15, 5, v1", "v_lshl_add_u32 v15, v15, 2, v14", "v_lshrrev_b32 v14, 1, v14", "v_lshlrev_b32 v14, 2, v14",
         "v_bfe_u32 v62, v1, 4, 1", "v_lshlrev_b32 v62, 1, v62", "v_bfe_u32 v63, v1, 1, 1", "v_add_u32 v62, v62, v63", "v_xor_b32 v62, v62, v14",
         "v_lshlrev_b32 v62, 4, v62", "v_lshl_add_u32 v62, v15, 7, v62", "v_and_b32 v63, 1, v1", "v_lshl_add_u32 v62, v63, 3, v62",
         "s_lshl_b32 s74, %s, 11" % WN, "v_add_u32 v%d, s74, v62" % WB, "v_xor_b32 v%d, 64, v%d" % (WB + 1, WB)]
    for k in (1, 2):
        g2a += ["v_add_u32 v%d, %d, v%d" % (WB + 2 * k, 65536 * k, WB), "v_add_u32 v%d, %d, v%d" % (WB + 2 * k + 1, 65536 * k, WB + 1)]
    corr = []
    for a in range(3):
        for b in range(2):
            acc = ACC + 16 * (2 * a + b)
            corr.append("v_mfma_f32_32x32x16_bf16 %s, %s, %s, %s" % (vr(acc, 16), vr(CA + 4 * a, 4), vr(CB + 4 * b, 4), vr(acc, 16)))
    gl = ["buffer_load_dwordx2 v[16:17], v48, %s, s81 offen sc1" % sWS, "buffer_load_dwordx2 v[18:19], v48, %s, s81 offen offset:256 sc1" % sWS]
    gl += ["buffer_load_dwordx4 %s, v49, %s, s80 offen offset:%d sc1" % (vr(20 + 4 * p, 4), sWS, 512 * p) for p in range(4)]
    pones = []
    for st in range(8):
        e("s_barrier")
        e(stamp("st%d" % st))
        for s in range(4):
            rd = g1_reads(st, s, bufs[n & 1])
            extra = []
            if st == NS and s == 2:
                extra = ["v_mov_b32 v44, v%d" % ONEACC, "v_mov_b32 v45, v%d" % (ONEACC + 16), "v_mov_b32 v46, v%d" % (ONEACC + 32), "v_mov_b32 v47, %s" % TAG,
                         "buffer_store_dwordx4 v[44:47], v48, %s, s79 offen sc1" % sWS]
                vm.op("cs")
            if st == 3: extra = g2a[len(g2a) * s // 4: len(g2a) * (s + 1) // 4]
            if st == 5 and s == 0:
                extra = ["v_mov_b32 v%d, 0" % r for r in (CA + 2, CA + 3, CA + 6, CA + 7, CA + 10, CA + 11, CB + 2, CB + 3, CB + 6, CB + 7)] + ["v_lshrrev_b32 v48, 1, v48"]
            if st == 6 and s == 0: extra = gl[:3]
            if st == 6 and s == 1: extra = gl[3:]
            if st == 7 and s == 1:
                e(vm.all(), check_retry(gl, [17, 19, 23, 27, 31, 35], 44))
                extra = prep[:18]
            if st == 7 and s == 2: extra = prep[18:36]
            if st == 7 and s == 3: prev = prev + corr; extra = prep[36:]
            if prev is None: e(rd)
            elif len(extra) > 12: e(interleave(prev[:2], rd, per=4), interleave(prev[2:], extra), pones)
            else: e(interleave(prev[:3], rd, per=3), interleave(prev[3:], extra), pones)
            e("s_waitcnt lgkmcnt(0)")
            prev = g1_mfmas(bufs[n & 1], st == 0 and s == 0)
            pones = g1_ones(bufs[n & 1], st, s) if st < NS else []
            n += 1
    e(interleave(prev, lds_signal(C_A1, 44)))
    e(stamp("loopend"))
    e("s_setprio 3")
    for a in range(3):
        skip = newlab("skiph")
        e("s_cmp_ge_u32 s85, %d" % (86 - a), "s_cbranch_scc1 " + skip)
        seq = []
        for b in range(2):
            acc = ACC + 16 * (2 * a + b)
            k = vr(KC + 4 * b, 2); s2 = vr(KC + 4 * b + 2, 2)
            Q = 180 + 16 * b; P = 188 + 16 * b; O = 212 + 4 * ((2 * a + b) % 4)
            o = []
            for j in range(4): o.append("v_pk_mul_f32 %s, %s, %s" % (vr(Q + 2 * j, 2), vr(acc + 2 * j, 2), vr(acc + 2 * j, 2)))
            for j in range(4): o.append("v_pk_fma_f32 %s, %s, %s, %s op_sel:[0,1,0] op_sel_hi:[1,1,0]" % (vr(Q + 2 * j, 2), vr(Q + 2 * j, 2), k, k))
            for j in range(4): o.append("v_pk_mul_f32 %s, %s, %s" % (vr(Q + 2 * j, 2), vr(Q + 2 * j, 2), vr(acc + 2 * j, 2)))
            for j in range(8): o.append("v_exp_f32 v%d, v%d" % (Q + j, Q + j))
            for j in range(4): o.append("v_pk_mul_f32 %s, %s, %s" % (vr(P + 2 * j, 2), vr(acc + 2 * j, 2), vr(acc + 8 + 2 * j, 2)))
            for j in range(4): o.append("v_pk_fma_f32 %s, %s, %s, %s op_sel:[0,0,0] op_sel_hi:[1,0,0]" % (vr(Q + 2 * j, 2), vr(Q + 2 * j, 2), s2, s2))
            for j in range(8): o.append("v_rcp_f32 v%d, v%d" % (Q + j, Q + j))
            for j in range(4): o.append("v_pk_mul_f32 %s, %s, %s" % (vr(P + 2 * j, 2), vr(P + 2 * j, 2), vr(Q + 2 * j, 2)))
            for j in range(4): o.append("v_cvt_pk_bf16_f32 v%d, v%d, v%d" % (O + j, P + 2 * j, P + 2 * j + 1))
            o.append(("s_add_u32 s78, s84, %d" % (b * 86 * 1024), "buffer_store_dwordx4 %s, v12, %s, s78 offen offset:%d sc1" % (vr(O, 4), sWS, a * 1024)))
            seq.append(o)
        e(merge(seq[0], seq[1]))
        e(skip + ":")
    vm.op("h")
    e(stamp("gelu"))
    e(lds_signal(C_G, 14), wd_setup())
    def wd_reads(jj, dst):
        o = []
        for dt in range(2):
            for q in range(2):
                a = wd_loc(2 * jj) + 1024 * q
                o.append("ds_read_b64_tr_b16 %s, v%d offset:%d" % (vr(dst + 4 * dt + 2 * q, 2), WB + 2 * (a >> 16) + dt, a & 0xffff))
        return o
    PRE = 96
    e(lds_wait(C_B1, 4, 14))
    e(stamp("b1ok"))
    for jj in range(10): e(wd_reads(jj, PRE + 8 * jj))
    A2 = 64; HB = 176; NH = 16; WF = (PRE, PRE + 8)
    e("s_lshl_b32 s74, %s, 1" % I2, "s_add_u32 s74, s74, %s" % WM, "s_mul_i32 s74, s74, 86", "s_add_u32 s74, s74, %s" % WN, "s_lshl_b32 s83, s74, 10",
      "s_add_u32 s83, s83, %d" % WS_H)
    e("v_and_b32 v28, 31, v1", "v_mul_u32_u24 v28, 272, v28", "v_lshrrev_b32 v29, 5, v1", "v_lshl_add_u32 v28, v29, 4, v28")
    e("s_mul_i32 s74, %s, %d" % (WN, 64 * 272), "s_mul_i32 s75, %s, %d" % (WM, 32 * 272), "s_add_u32 s74, s74, s75", "s_add_u32 s74, s74, %d" % PB, "v_add_u32 v28, s74, v28")
    e("s_lshl_b32 s81, %s, 1" % MT, "s_add_u32 s81, s81, %s" % WM, "s_lshl_b32 s81, s81, 5", "s_lshl_b32 s75, %s, 1" % FT, "s_add_u32 s81, s81, s75",
      "s_add_u32 s81, s81, %s" % WN, "s_lshl_b32 s81, s81, 7", "s_add_u32 s81, s81, %d" % WS_F4, "v_mov_b32 v30, %s" % TAG)
    e("v_min_u32 v31, 28, v1", "v_lshlrev_b32 v31, 7, v31", "s_lshl_b32 s82, %s, 12" % I2, "s_add_u32 s82, s82, %d" % WS_F4)
    e("s_waitcnt lgkmcnt(0)")
    e(lds_signal(C_A2, 14), lds_wait(C_A2, 4, 14))
    d2a = wd_dma(60, 0, 10, VM(), "x", WDV)
    N2 = 5
    e(d2a[:N2])
    for i in range(N2): vm.op("2a")
    e(vm.wait("h"))
    e("s_mov_b64 exec, 1", "buffer_store_dword v30, off, %s, s81 sc1" % sWS, "s_mov_b64 exec, -1"); vm.op("f4")
    e(stamp("hack"))
    e("s_setprio 0")
    e(d2a[N2:])
    e(final_xload(vm, XF, XFA))
    pl = ["buffer_load_dword v15, v31, %s, s82 offen sc1" % sWS]
    e(pl, vm.all())
    e(lds_signal(C_A3, 20))
    e(check_retry(pl, [15], 16))
    e(stamp("hpoll"))
    def hload(jj):
        vm.op("h%d" % jj)
        o = []
        if jj % 2 == 0 and jj > 0: o.append("s_add_u32 s83, s83, 4096")
        o.append("buffer_load_dwordx4 %s, v12, %s, s83 offen offset:%d sc1" % (vr(HB + 4 * (jj % NH), 4), sWS, 2048 * (jj & 1)))
        return o
    PD = 12
    for jj in range(PD): e(hload(jj))
    e(lds_wait(C_B2, 4, 20), lds_wait(C_A3, 4, 20))
    for jj in range(43):
        if jj == 18: e(lds_signal(C_P, 20))
        if jj == 39: e(lds_wait(C_B3, 4, 20), stamp("b3ok"))
        if jj == 31: e(lds_signal(C_A4, 20))
        wf = PRE + 8 * jj if jj < 10 else WF[jj & 1]
        e(vm.wait("h%d" % jj).replace("s_waitcnt", "s_waitcnt lgkmcnt(0)") if jj >= 10 else vm.wait("h%d" % jj))
        if jj == 1: e(stamp("h0"))
        if jj == 36: e(stamp("h36"))
        hb_ = vr(HB + 4 * (jj % NH), 4)
        e("v_mfma_f32_32x32x16_bf16 %s, %s, %s, %s" % (vr(A2, 16), vr(wf, 4), hb_, "0" if jj == 0 else vr(A2, 16)))
        if jj + 1 < 43 and jj + 1 >= 10: e(wd_reads(jj + 1, WF[(jj + 1) & 1]))
        if jj + PD < 43: e(hload(jj + PD))
        e("v_mfma_f32_32x32x16_bf16 %s, %s, %s, %s" % (vr(A2 + 16, 16), vr(wf + 4, 4), hb_, "0" if jj == 0 else vr(A2 + 16, 16)))
    e(stamp("g2end"))
    e(lds_wait(C_A4, 4, 20))
    for dt in range(2):
        for jj in range(4): e("ds_write_b128 v28, %s offset:%d" % (vr(A2 + 16 * dt + 4 * jj, 4), 128 * dt + 32 * jj))
    e("s_waitcnt lgkmcnt(0)")
    e("s_branch L_final")
    e(SLOW)

def b_path():
    vm = VM()
    vm.op("ln")
    for i in range(5): vm.op("st0")
    WDV, VK, VU = 7, 8, 9
    e(wd_voff(WDV, 210))
    e("v_lshlrev_b32 v210, 2, v1", "v_add_u32 v210, %d, v210" % CNT_BASE, "v_mov_b32 v211, 0", "ds_write_b32 v210, v211")
    e("v_and_b32 v210, 1, v1", "v_mul_u32_u24 v210, %d, v210" % R_CP, "v_bfe_u32 v212, v1, 1, 3", "v_sub_u32 v212, 7, v212", "v_lshl_add_u32 v210, v212, 6, v210",
      "v_lshrrev_b32 v212, 4, v1", "v_lshl_add_u32 v210, v212, 4, v210", "s_mul_i32 s74, %s, %d" % (WM, 2 * R_CP), "s_add_u32 s74, s74, %d" % R_BASE, "s_lshl_b32 s75, %s, 8" % WN, "s_add_u32 s74, s74, s75", "v_add_u32 v%d, s74, v210" % VK)
    e("v_bfe_u32 v210, v1, 2, 2", "v_add_u32 v210, v210, v212", "v_lshlrev_b32 v210, 4, v210", "v_and_b32 v213, 3, v1", "v_lshl_add_u32 v210, v213, 2, v210",
      "v_and_b32 v213, 1, v1", "v_mul_u32_u24 v213, %d, v213" % (U_CP - 4), "v_sub_u32 v210, v210, v213",
      "s_mul_i32 s74, %s, %d" % (WM, 2 * U_CP), "s_add_u32 s74, s74, %d" % (U_BASE + U_CP), "s_add_u32 s74, s74, s75", "v_add_u32 v%d, s74, v210" % VU)
    LNA = 10
    e("v_bfe_u32 v210, v1, 2, 2", "v_mul_u32_u24 v210, %d, v210" % LNP, "v_lshrrev_b32 v211, 4, v1", "v_lshl_add_u32 v210, v211, 5, v210",
      "v_and_b32 v211, 3, v1", "v_lshl_add_u32 v210, v211, 3, v210", "s_lshl_b32 s74, %s, 8" % W, "s_add_u32 s74, s74, %d" % LNS, "v_add_u32 v%d, s74, v210" % LNA)
    T8, T16, TM, RD, RC, RB = 84, 85, 86, 87, 88, 89
    e("s_mul_i32 s74, %s, 6144" % WM, "s_add_u32 s74, s74, %d" % T_BASE)
    e("v_lshl_add_u32 v%d, v1, 3, s74" % T8, "v_add_u32 v%d, s74, v12" % T16, "v_add_u32 v%d, -4, v%d" % (TM, T16))
    e("s_mul_i32 s74, %s, %d" % (W, R_CP), "s_add_u32 s74, s74, %d" % R_BASE, "v_sub_u32 v213, 63, v1")
    e("v_lshl_add_u32 v%d, v213, 5, s74" % RD, "v_lshl_add_u32 v%d, v213, 4, s74" % RC, "v_lshl_add_u32 v%d, v213, 3, s74" % RB)
    e("s_cmp_eq_u32 %s, 1" % WN, "s_cselect_b64 s[72:73], -1, 0")
    e(vm.wait("ln").replace("s_waitcnt", "s_waitcnt lgkmcnt(0)"), stamp("lnld"))
    e("s_lshl_b32 s74, %s, 4" % WM, "s_lshr_b32 s14, s14, s74", "v_mov_b32 v28, s14")
    d1 = stage_dma(1, VM())
    ln = flat(ln_ops(VM()))
    e(merge(ln[:-1], [tuple(d1[:6])] + d1[6:13]))
    for i in range(7): vm.op("st1")
    e(ln[-1]); vm.op("stats")
    e(stamp("lndone"))
    e(vm.wait("st0").replace("s_waitcnt", "s_waitcnt lgkmcnt(0)"))
    e(stamp("st0land"))
    def endit(st, lg=False):
        w = vm.wait("st%d" % st)
        if lg: w = w.replace("s_waitcnt", "s_waitcnt lgkmcnt(0)")
        e(stamp("iss%d" % (st + 1)), w, stamp("land%d" % st), "s_barrier")
    if "--prioB" in sys.argv: e("s_setprio 1")
    e("s_barrier")
    for rnd in range(2):
        for q in range(2): e("ds_read_b64_tr_b16 %s, v%d offset:%d" % (vr(20 + 4 * rnd + 2 * q, 2), LNA, 4 * q * LNP + 128 * rnd))
    e(d1[13:])
    for i in range(3): vm.op("st1")
    e(stage_dma(2, vm))
    e("s_lshl_b32 s74, %s, 13" % G, "s_lshl_b32 s75, %s, 11" % W, "s_add_u32 s74, s74, s75", "s_add_u32 s74, s74, %d" % WS_XT)
    e("s_waitcnt lgkmcnt(0)")
    for rnd in range(2):
        e("buffer_store_dwordx4 %s, v12, %s, s74 offen offset:%d sc1" % (vr(20 + 4 * rnd, 4), sWS, 1024 * rnd)); vm.op("xt")
    endit(1)
    rd = []
    for t in range(2):
        b = 32 + 16 * t; o = 3072 * t
        rd += ["ds_read_b64 %s, v%d offset:%d" % (vr(b, 2), T8, o + 2048), "ds_read_b32 v%d, v%d offset:%d" % (b + 2, T8, o + 2056),
               "ds_read_b32 v%d, v%d offset:%d" % (b + 3, T8, o + 1020),
               "ds_read_b64 %s, v%d offset:%d" % (vr(b + 4, 2), T8, o + 1536), "ds_read_b32 v%d, v%d offset:%d" % (b + 6, T8, o + 1544),
               "ds_read_b32 v%d, v%d offset:%d" % (b + 7, TM, o),
               "ds_read_b64 %s, v%d offset:%d" % (vr(b + 8, 2), T8, o + 1024), "ds_read_b32 v%d, v%d offset:%d" % (b + 10, T8, o + 1032),
               "ds_read_b128 %s, v%d offset:%d" % (vr(b + 12, 4), T16, o)]
    e(merge(stage_dma(3, vm), rd))
    endit(2, True)
    S = "s[72:73]"
    cv = lambda d, lo, hi: "v_cvt_pk_bf16_f32 v%d, v%d, v%d" % (d, lo, hi)
    x1 = ["v_cmp_eq_u32 vcc, 0, v1", "v_lshlrev_b32 v28, 16, v28"]
    x1 += ["v_add_f32 v%d, v%d, v%d" % (32 + k, 32 + k, 48 + k) for k in (0, 1, 2, 3, 4, 5, 6, 7, 8, 9, 10, 12, 13, 14, 15)]
    x1 += ["v_cndmask_b32 v28, 0, v28, vcc", "v_cndmask_b32 v35, v40, v35, vcc", "v_cndmask_b32 v39, v39, 0, vcc", "v_add_f32 v44, v44, v28"]
    x1 += ["v_cndmask_b32 v48, v33, v34, %s" % S, "v_cndmask_b32 v49, v32, v33, %s" % S,
           cv(64, 34, 34), cv(65, 34, 48), cv(66, 33, 33), cv(67, 33, 33), cv(68, 33, 33), cv(69, 49, 32), cv(70, 32, 32), cv(71, 32, 32)]
    e(merge(stage_dma(4, vm), x1))
    endit(3)
    x2 = ["v_cndmask_b32 v48, v37, v38, %s" % S, "v_cndmask_b32 v49, v36, v37, %s" % S, cv(72, 38, 48), cv(73, 37, 37), cv(74, 49, 36), cv(75, 36, 36),
          "v_cndmask_b32 v48, v41, v42, %s" % S, "v_cndmask_b32 v49, v40, v41, %s" % S, "v_cndmask_b32 v50, v35, v40, %s" % S, cv(76, 48, 49), cv(77, 40, 50),
          "v_cndmask_b32 v48, v46, v47, %s" % S, "v_cndmask_b32 v49, v45, v46, %s" % S, "v_cndmask_b32 v50, v44, v45, %s" % S, "v_cndmask_b32 v51, v39, v44, %s" % S,
          cv(78, 48, 49), cv(79, 50, 51), "v_mov_b32 v80, 0", "v_mov_b32 v81, 0",
          "ds_write_b128 v%d, v[64:67]" % RD, "ds_write_b128 v%d, v[68:71] offset:16" % RD, "ds_write_b128 v%d, v[72:75] offset:2048" % RC,
          "ds_write_b64 v%d, v[76:77] offset:3072" % RB, "ds_write_b64 v%d, v[78:79] offset:3584" % RB, "ds_write_b64 v%d, v[80:81] offset:4096" % RB]
    e("s_lshl_b32 s74, %s, 2" % G, "s_add_u32 s74, s74, %d" % WS_F3, "s_cmp_eq_u32 %s, 0" % W, "s_cselect_b32 s74, s74, 0x7ffffff0", "v_mov_b32 v16, %s" % TAG)
    e("s_mov_b64 exec, 1", "buffer_store_dword v16, off, %s, s74 sc1" % sWS, "s_mov_b64 exec, -1"); vm.op("f3s")
    e(merge(stage_dma(5, vm), x2[:19]))
    endit(4)
    UG, UL = 90, 91
    x3 = ["v_lshrrev_b32 v16, 1, v1", "v_and_b32 v17, 1, v1", "v_lshlrev_b32 v%d, 13, v16" % UG, "v_lshl_add_u32 v%d, v17, 4, v%d" % (UG, UG),
          "v_mul_u32_u24 v17, %d, v17" % (2 * U_CP), "v_lshl_add_u32 v17, v16, 4, v17", "s_lshl_b32 s74, %s, 10" % W, "s_add_u32 s74, s74, %d" % U_BASE, "v_add_u32 v%d, s74, v17" % UL,
          "s_mul_i32 s74, %s, %d" % (W, U_CP), "s_add_u32 s74, s74, %d" % U_BASE, "s_sub_u32 s75, 15, %s" % WN, "v_min_u32 v92, s75, v1", "v_lshl_add_u32 v92, v92, 2, s74",
          "ds_write_b32 v92, v80"]
    x3 += ["v_mov_b32 v%d, 0" % (32 + i) for i in range(32)]
    e(merge(stage_dma(6, vm), x3[:14]))
    endit(5)
    e(merge(stage_dma(7, vm), x3[15:]))
    endit(6, True)
    e("s_mov_b32 s82, %d" % WS_F3)
    pl = ["buffer_load_dwordx4 v[20:23], v12, %s, s82 offen sc1" % sWS]
    e(pl); vm.op("f3")
    e(wd_setup(), wd_dma(0, 0, 4, vm, "1a", WDV))
    endit(7)
    e(stamp("b7"))
    e(vm.wait("f3"))
    e(check_retry(pl, [20, 21, 22, 23], 24))
    e(stamp("f3ok"))
    e("s_lshl_b32 s74, %s, 19" % W, "s_lshl_b32 s75, %s, 5" % CP, "s_add_u32 s74, s74, s75", "s_add_u32 s74, s74, %d" % WS_XT, "s_add_u32 s75, s74, 0x40000")
    e("buffer_load_dwordx4 v[20:23], v%d, %s, s74 offen sc1" % (UG, sWS)); vm.op("u")
    e("buffer_load_dwordx4 v[24:27], v%d, %s, s75 offen sc1" % (UG, sWS)); vm.op("u")
    e("s_or_b32 s74, s2, %s" % W, "s_cmp_eq_u32 s74, 0", "s_cselect_b32 s74, 0, 0x7ffffff0", "v_mov_b32 v16, %s" % TAG)
    e("s_mov_b64 exec, 1", "buffer_store_dword v16, off, %s, s74 sc1" % sWS, "s_mov_b64 exec, -1"); vm.op("eps")
    e(x2[19:], x3[14])
    e(wd_dma(0, 4, 6, vm, "1a", WDV))
    e(vm.wait("u"))
    for k in range(2):
        b = 20 + 4 * k
        e("ds_write_b128 v%d, %s offset:%d" % (UL, vr(b, 4), 64 + 512 * k))
        e("ds_write_b32 v%d, v%d offset:%d" % (UL, b, U_CP + 60 + 512 * k), "ds_write_b32 v%d, v%d offset:%d" % (UL, b + 1, U_CP + 64 + 512 * k),
          "ds_write_b32 v%d, v%d offset:%d" % (UL, b + 2, U_CP + 68 + 512 * k), "ds_write_b32 v%d, v%d offset:%d" % (UL, b + 3, U_CP + 72 + 512 * k))
    e("s_waitcnt lgkmcnt(0)")
    e(lds_signal(C_U, 16))
    e(stamp("uwr"))
    e(wd_dma(0, 10, 10, vm, "1b", WDV))
    e(vm.wait("1a"), lds_signal(C_B1, 16))
    e(lds_wait(C_A1, 4, 16))
    e("s_setprio 2")
    e(wd_dma(40, 0, 10, vm, "1c", WDV))
    e(stamp("iss1c"))
    e(lds_wait(C_U, 4, 16))
    CA = 32; FB = (64, 128)
    def reads(rho, buf):
        o = []
        for i in range(8):
            o.append("ds_read_b128 %s, v%d offset:%d" % (vr(buf + 4 * i, 4), VK, 512 * (7 - i) + 64 * rho))
            o.append("ds_read_b64 %s, v%d offset:%d" % (vr(buf + 32 + 4 * i, 2), VU, 512 * i + 64 * rho))
            o.append("ds_read_b64 %s, v%d offset:%d" % (vr(buf + 34 + 4 * i, 2), VU, 512 * i + 64 * rho + 8))
        return o
    e(reads(0, FB[0]))
    e(lds_wait(C_G, 4, 16))
    e(stamp("cvgo"))
    e("s_mov_b32 s79, 0", "L_cv:")
    for rho in range(2):
        buf = FB[rho]
        pairs = sorted([(sg, t) for t in range(8) for sg in range(t + 1)])
        mf = ["v_mfma_f32_16x16x32_bf16 %s, %s, %s, %s" % (vr(CA + 4 * t, 4), vr(buf + 4 * (t - sg), 4), vr(buf + 32 + 4 * sg, 4), vr(CA + 4 * t, 4)) for sg, t in pairs]
        e("s_waitcnt lgkmcnt(0)")
        fill = reads(rho + 1, FB[1 - rho])
        if rho == 1: fill += ["v_add_u32 v%d, 128, v%d" % (VK, VK), "v_add_u32 v%d, 128, v%d" % (VU, VU)]
        e(interleave(mf, fill, per=1))
    e(vm.all(), lds_signal(C_B2, 16))
    e("s_add_u32 s79, s79, 1", "s_cmp_lt_u32 s79, 2", "s_cbranch_scc1 L_cv")
    e(stamp("conv"))
    e("s_waitcnt lgkmcnt(0)", lds_signal(C_CV, 18))
    e("s_lshl_b32 s74, %s, 12" % W, "s_add_u32 s74, s74, %d" % R_BASE, "v_add_u32 v24, s74, v12", "v_xor_b32 v25, 4096, v12", "s_xor_b32 s75, %s, 1" % W,
      "s_lshl_b32 s75, s75, 12", "s_add_u32 s75, s75, %d" % R_BASE, "v_add_u32 v25, s75, v12")
    e(lds_wait(C_CV, 4, 18))
    lo, dn = newlab("rlo"), newlab("rdn")
    e("s_cmp_eq_u32 %s, 0" % WN, "s_cbranch_scc1 " + lo)
    for k in range(4): e("ds_write_b128 v24, %s offset:%d" % (vr(CA + 4 * k, 4), 1024 * k))
    e("s_waitcnt lgkmcnt(0)")
    for k in range(16): e("v_mov_b32 v%d, v%d" % (CA + k, CA + 16 + k))
    e("s_branch " + dn, lo + ":")
    for k in range(4): e("ds_write_b128 v24, %s offset:%d" % (vr(CA + 16 + 4 * k, 4), 1024 * k))
    e(dn + ":")
    e("s_waitcnt lgkmcnt(0)", lds_signal(C_X, 18))
    e(lds_wait(C_X, 4, 18))
    for k in range(4): e("ds_read_b128 %s, v25 offset:%d" % (vr(64 + 4 * k, 4), 1024 * k))
    e("v_lshrrev_b32 v16, 4, v1", "v_lshlrev_b32 v16, 17, v16", "v_and_b32 v17, 15, v1", "v_lshl_add_u32 v16, v17, 4, v16")
    e("s_lshl_b32 s74, %s, 1" % CP, "s_add_u32 s74, s74, %s" % WM, "s_lshl_b32 s74, s74, 8", "s_lshl_b32 s75, %s, 21" % WN, "s_add_u32 s74, s74, s75", "s_add_u32 s74, s74, %d" % WS_Z)
    for k in range(4): e("v_mov_b32 v%d, %s" % (50 + 4 * k, TAG), "v_mov_b32 v%d, %s" % (51 + 4 * k, TAG))
    e("s_waitcnt lgkmcnt(0)")
    for k in range(8): e("v_pk_add_f32 %s, %s, %s" % (vr(CA + 2 * k, 2), vr(CA + 2 * k, 2), vr(64 + 2 * k, 2)))
    for k in range(4):
        e(cv(48 + 4 * k, CA + 4 * k, CA + 4 * k + 1), cv(49 + 4 * k, CA + 4 * k + 2, CA + 4 * k + 3))
        if k: e("s_add_u32 s74, s74, 0x80000")
        e("buffer_store_dwordx4 %s, v16, %s, s74 offen sc1" % (vr(48 + 4 * k, 4), sWS)); vm.op("z")
    e(stamp("zst"))
    e(wd_setup(), wd_dma(80, 0, 3, vm, "2b", WDV))
    e(final_xload(vm, XF, XFA))
    e(vm.all(), lds_signal(C_B3, 16))
    e(lds_wait(C_P, 4, 16))
    e("s_lshl_b32 s74, %s, 17" % I2, "s_lshl_b32 s75, %s, 14" % J2, "s_add_u32 s74, s74, s75", "s_lshl_b32 s75, %s, 12" % W, "s_add_u32 s74, s74, s75",
      "s_add_u32 s82, s74, %d" % WS_Z)
    pl = ["buffer_load_dwordx4 %s, v12, %s, s82 offen offset:%d sc1" % (vr(64 + 4 * q, 4), sWS, 1024 * q) for q in range(4)]
    e(pl)
    e("s_lshl_b32 s75, %s, 11" % W, "v_lshrrev_b32 v16, 4, v1", "v_lshlrev_b32 v16, 7, v16", "v_and_b32 v17, 15, v1", "v_lshl_add_u32 v16, v17, 2, v16", "v_add_u32 v16, s75, v16",
      "v_add_u32 v16, %d, v16" % Z_LDS, "v_add_u32 v17, 1024, v16")
    e(vm.all())
    e(check_retry(pl, [66, 70, 74, 78], 18))
    e(stamp("zpoll"))
    for q in range(4): e("ds_write2_b32 v%d, v%d, v%d offset0:%d offset1:%d" % (16 + (q >> 1), 64 + 4 * q, 65 + 4 * q, 128 * (q & 1), 128 * (q & 1) + 16))
    e("v_bfe_u32 v14, v1, 2, 2", "v_lshlrev_b32 v14, 7, v14", "v_lshrrev_b32 v15, 4, v1", "v_lshl_add_u32 v14, v15, 5, v14", "v_and_b32 v15, 3, v1", "v_lshl_add_u32 v14, v15, 3, v14",
      "s_add_u32 s75, s75, %d" % Z_LDS, "v_add_u32 v14, s75, v14")
    e("v_mul_u32_u24 v15, 272, v1", "s_lshl_b32 s75, %s, 6" % W, "s_add_u32 s75, s75, %d" % P2, "v_add_u32 v15, s75, v15")
    e("s_waitcnt lgkmcnt(0)")
    for q in range(4): e("ds_read_b64_tr_b16 %s, v14 offset:%d" % (vr(20 + 2 * q, 2), 512 * q))
    e(lds_wait(C_B3, 4, 40))
    for k in range(8): e("v_lshlrev_b32 v%d, 16, v%d" % (32 + 2 * k, 20 + k), "v_and_b32 v%d, 0xffff0000, v%d" % (33 + 2 * k, 20 + k))
    for q in range(4): e("ds_write_b128 v15, %s offset:%d" % (vr(32 + 4 * q, 4), 16 * q))
    e("s_waitcnt lgkmcnt(0)")

def final():
    e("L_final:")
    e("v_lshrrev_b32 v14, 3, v0", "v_mul_u32_u24 v14, 272, v14", "v_and_b32 v15, 7, v0", "v_lshl_add_u32 v14, v15, 5, v14", "v_add_u32 v15, %d, v14" % P2, "v_add_u32 v14, %d, v14" % PB)
    for j in range(4): e("v_lshlrev_b32 v%d, 16, v%d" % (32 + 2 * j, XF + j), "v_and_b32 v%d, 0xffff0000, v%d" % (33 + 2 * j, XF + j))
    e("s_barrier")
    e(stamp("fin"))
    e("ds_read_b128 v[16:19], v14", "ds_read_b128 v[20:23], v14 offset:16",
      "ds_read_b128 v[24:27], v14 offset:%d" % (64 * 272), "ds_read_b128 v[28:31], v14 offset:%d" % (64 * 272 + 16),
      "ds_read_b128 v[40:43], v15", "ds_read_b128 v[44:47], v15 offset:16")
    e("s_waitcnt lgkmcnt(2)")
    for j in range(4): e("v_pk_add_f32 %s, %s, %s" % (vr(16 + 2 * j, 2), vr(16 + 2 * j, 2), vr(24 + 2 * j, 2)))
    e("s_waitcnt lgkmcnt(0)")
    for j in range(4): e("v_pk_add_f32 %s, %s, %s" % (vr(32 + 2 * j, 2), vr(32 + 2 * j, 2), vr(40 + 2 * j, 2)))
    for j in range(4): e("v_pk_add_f32 %s, %s, %s" % (vr(16 + 2 * j, 2), vr(16 + 2 * j, 2), vr(32 + 2 * j, 2)))
    for j in range(4): e("v_cvt_pk_bf16_f32 v%d, v%d, v%d" % (24 + j, 16 + 2 * j, 17 + 2 * j))
    e("global_store_dwordx4 v%d, v[24:27], s[38:39]" % XFA)
    if DEBUG:
        e("s_waitcnt vmcnt(0)")
        e(stamp("end"))
        e("s_memrealtime s[96:97]", "s_waitcnt lgkmcnt(0)", "v_writelane_b32 v255, s96, 63", "v_writelane_b32 v255, s98, 62")
        e("s_lshl_b32 s74, s2, 11", "s_add_u32 s74, s74, %d" % WS_DBG, "v_lshlrev_b32 v14, 2, v0")
        e("buffer_store_dword v255, v14, %s, s74 offen" % sWS)
        if "--dbgout" in sys.argv:
            e("s_not_b32 s98, s98", "v_mov_b32 v20, s98", "v_mov_b32 v21, s96", "v_mov_b32 v22, 0")
            e("s_cmp_lg_u32 %s, 0" % WAVE, "s_cbranch_scc1 L_end")
            e("s_mov_b64 exec, 1")
            e("global_atomic_umax v22, v20, s[40:41]", "global_atomic_umax v22, v21, s[40:41] offset:4")
            e("s_mov_b64 exec, -1")
            e("s_cmp_lg_u32 s2, 40", "s_cbranch_scc1 L_end")
            sel = ["lnld", "kgen", "st0", "st2", "st6", "st7", "loopend", "gelu", "hack", "hpoll", "b9", "b10"]
            e("v_readlane_b32 s74, v255, 0")
            for n, nm in enumerate(sel + ["fin", "end"]):
                k = {"fin": 60, "end": 61}.get(nm) or STAMPS["A"].index(nm) + 1
                e("v_readlane_b32 s75, v255, %d" % k, "s_sub_u32 s75, s75, s74", "v_mov_b32 v20, s75", "s_mov_b64 exec, 1",
                  "global_store_dword v22, v20, s[40:41] offset:%d" % (8 + 4 * n), "s_mov_b64 exec, -1")
    if "--double" in sys.argv:
        e("s_waitcnt vmcnt(0)", "s_memrealtime s[96:97]", "s_waitcnt lgkmcnt(0)", "s_sub_u32 s74, s96, s98", "s_min_u32 s74, s74, 20000",
          "L_spin:", "s_memrealtime s[92:93]", "s_waitcnt lgkmcnt(0)", "s_sub_u32 s75, s92, s96", "s_cmp_lt_u32 s75, s74", "s_cbranch_scc1 L_spin")
    e("L_end:", "s_endpgm")

entry()
prologue()
ROLE[0] = "A"
vm = a_p0()
a_main(vm)
ROLE[0] = "B"
e("L_B:")
b_path()
ROLE[0] = "AB"
final()
body, npad = pad_hazards(L)

hdr = open("cdna_kernels/%s.s.ref" % NAME).read().split("; Override launch")[0]
out = hdr + "; @launch grid=(256,1,1) block=(512,1,1) lds=163840\n"
out += '.amdgcn_target "amdgcn-amd-amdhsa--gfx950"\n.text\n.globl %s_kernel\n.p2align 8\n.type %s_kernel,@function\n%s_kernel:\n' % (NAME, NAME, NAME)
out += "\n".join(body) + "\n"
out += '''.section .rodata,"a"
.p2align 6
.amdhsa_kernel %s_kernel
  .amdhsa_next_free_vgpr 256
  .amdhsa_next_free_sgpr 102
  .amdhsa_accum_offset 256
  .amdhsa_group_segment_fixed_size 0
  .amdhsa_kernarg_size 112
  .amdhsa_user_sgpr_count 2
  .amdhsa_user_sgpr_kernarg_segment_ptr 1
  .amdhsa_system_sgpr_workgroup_id_x 1
.end_amdhsa_kernel
''' % NAME
path = [a for a in sys.argv[1:] if not a.startswith("--")]
path = path[0] if path else "cdna_kernels/%s.s" % NAME
open(path, "w").write(out)
print("wrote", path, "lines", len(body), "nops inserted", npad)
if DEBUG:
    import json
    json.dump(STAMPS, open(path[:-2] + ".json", "w"))
```

```python
import sys, struct, math
from asmlib import *

NAME = "parallel_sum__ssm_conv_s4d__geglu_ffn__prompt"
DEBUG = "--stamps" in sys.argv
NCLS = int(([a[6:] for a in sys.argv if a.startswith("--cls=")] + ["8"])[0])
NS = 8 // NCLS

def f2u(x): return struct.unpack("<I", struct.pack("<f", x))[0]
def hx(x): return "0x%08x" % (x & 0xffffffff)
LOG2E = hx(f2u(1.4426950408889634))
INV2PI = hx(f2u(0.15915494309189535))
GK1 = -2.0 * math.sqrt(2.0 / math.pi) * 1.4426950408889634
GK2 = GK1 * 0.044715

WS_EPOCH = 0
WS_F3 = 0x1000
WS_ST = 0x2000
WS_CS = 0x8000
WS_F4 = 0x50000
WS_F5 = 0x70000
WS_DBG = 0x80000
WS_XT = 0x100000
WS_Z = 0x300000
WS_H = 0x700000
WS_SIZE = 0x1000000
SLOT = 41024
XOFF, WOFF, WMAT = 0, 16384, 12320
RB = 40768
R_CP = 4640
U_CP = 4224
U_BASE = 0
R_BASE = RB - 4 * R_CP
T_BASE = 16
LNS = T_BASE + 4 * 3072
LNP = 1088
CNT_BASE = LNS + 8 * LNP
C_X, C_B1, C_A2, C_U, C_CV, C_G, C_B2, C_A3, C_P, C_A1, C_B3, C_A4 = [CNT_BASE + 16 * i for i in range(12)]
E_W = 53 * 272
E_BASE = RB + SLOT - 4 * E_W
assert E_BASE >= R_BASE and CNT_BASE + 256 <= R_BASE and 4 * U_CP <= CNT_BASE and RB + 3 * SLOT == 163840
W2B, Z_LDS, P2, PB = 0, 12288, R_BASE, RB + 40960
def slot_of(st): return (st + 1) % 3
SPIN = 20000

sX, sWG, sWU, sWD, sWS = "s[44:47]", "s[48:51]", "s[52:55]", "s[56:59]", "s[60:63]"
XCD, IDX, MT, FT, WAVE, TAG, W, G = "s64", "s65", "s66", "s67", "s68", "s69", "s70", "s71"
KS, I2, J2, CP, CNT = "s90", "s91", "s92", "s93", "s94"
WM, WN = "s88", "s89"
W4 = "s100"

L = []
def e(*xs):
    for x in xs:
        if isinstance(x, (list, tuple)): e(*x)
        else: L.append(x)

def vr(a, n): return "v[%d:%d]" % (a, a + n - 1)

class VM:
    def __init__(self): self.q = []
    def op(self, lab): self.q.append(lab)
    def wait(self, lab):
        idx = max(i for i, x in enumerate(self.q) if x == lab)
        n = len(self.q) - 1 - idx
        self.q = self.q[idx + 1:]
        assert n <= 63
        return "s_waitcnt vmcnt(%d)" % n
    def all(self):
        self.q = []
        return "s_waitcnt vmcnt(0)"

STAMPS = {"A": [], "B": []}
ROLE = ["AB"]
PROBE = ([a[8:].split(",") for a in sys.argv if a.startswith("--probe=")] + [None])[0]
def stamp(name):
    if PROBE:
        if ROLE[0] == "B" or name not in PROBE: return []
        return ["s_memrealtime s[96:97]", "s_waitcnt lgkmcnt(0)", "s_mov_b32 s%d, s96" % (98 if name == PROBE[0] else 99)]
    if not DEBUG: return []
    if ROLE[0] == "AB":
        k = {"start": 0, "fin": 60, "end": 61}[name]
    else:
        lst = STAMPS[ROLE[0]]
        if name not in lst: lst.append(name)
        k = lst.index(name) + 1
        assert k < 60
    o = ["s_memtime s[96:97]", "s_waitcnt lgkmcnt(0)", "v_writelane_b32 v255, s96, %d" % k]
    if "--rt" in sys.argv: o = ["s_memrealtime s[96:97]"] + o[1:]
    return o

def tag_from(v):
    return ["v_readfirstlane_b32 %s, %s" % (TAG, v), "s_mul_i32 %s, %s, 0x9E3779B1" % (TAG, TAG),
            "s_add_u32 %s, %s, 0x7F4A7C15" % (TAG, TAG)]

lab_n = [0]
def newlab(p):
    lab_n[0] += 1
    return "L_%s_%d" % (p, lab_n[0])

def check_retry(loads, tagregs, tmp):
    top, done = newlab("chk"), newlab("ok")
    o = ["s_mov_b32 %s, %d" % (CNT, SPIN), top + ":"]
    o.append("v_xor_b32 v%d, %s, v%d" % (tmp, TAG, tagregs[0]))
    for r in tagregs[1:]:
        o.append("v_xor_b32 v%d, %s, v%d" % (tmp + 1, TAG, r))
        o.append("v_or_b32 v%d, v%d, v%d" % (tmp, tmp, tmp + 1))
    o.append("v_cmp_ne_u32 vcc, 0, v%d" % tmp)
    o.append("s_nop 1")
    o.append("s_cbranch_vccz " + done)
    o.append("s_sub_u32 %s, %s, 1" % (CNT, CNT))
    o.append("s_cbranch_scc1 " + done)
    o.append("s_sleep 1")
    o += loads
    o.append("s_waitcnt vmcnt(0)")
    o.append("s_branch " + top)
    o.append(done + ":")
    return o

def lds_signal(addr, t):
    return ["v_mov_b32 v%d, %s" % (t, W4), "v_mov_b32 v%d, 1" % (t + 1), "ds_write_b32 v%d, v%d offset:%d" % (t, t + 1, addr)]

def lds_wait(addr, target, t):
    top, done = newlab("lw"), newlab("lwd")
    q = t + 2
    return ["v_mov_b32 v%d, 0" % t, "s_mov_b32 %s, 0x400000" % CNT, top + ":", "ds_read_b128 %s, v%d offset:%d" % (vr(q, 4), t, addr), "s_waitcnt lgkmcnt(0)",
            "v_and_b32 v%d, v%d, v%d" % (q, q, q + 1), "v_and_b32 v%d, v%d, v%d" % (q + 2, q + 2, q + 3), "v_and_b32 v%d, v%d, v%d" % (q, q, q + 2),
            "v_readfirstlane_b32 s95, v%d" % q, "s_cmp_lg_u32 s95, 0", "s_cbranch_scc1 " + done,
            "s_sleep 1", "s_sub_u32 %s, %s, 1" % (CNT, CNT), "s_cbranch_scc0 " + top, done + ":"]

def flat(xs):
    o = []
    for x in xs:
        if isinstance(x, list): o += flat(x)
        else: o.append(x)
    return o

def merge(a, b):
    a, b = flat(a), flat(b)
    o = []; i = j = 0
    while i < len(a) or j < len(b):
        if j >= len(b) or (i < len(a) and i * len(b) <= j * len(a)): o.append(a[i]); i += 1
        else: o.append(b[j]); j += 1
    return o

def entry():
    e("s_load_dwordx16 s[16:31], s[0:1], 0", "s_load_dwordx8 s[32:39], s[0:1], 64", "s_load_dwordx4 s[40:43], s[0:1], 96")
    e("s_cmp_ge_u32 s2, 256", "s_cbranch_scc1 L_end")
    e("s_getpc_b64 s[76:77]", "L_pc:", "s_lshr_b32 %s, s2, 3" % IDX, "v_and_b32 v2, 0x1c0, v0", "s_lshl_b32 s74, %s, 10" % IDX, "v_lshl_add_u32 v2, v2, 1, s74",
      "v_min_u32 v2, L_end-L_pc, v2", "global_load_dword v252, v2, s[76:77]")
    e("v_readfirstlane_b32 %s, v0" % WAVE)
    if DEBUG or "--double" in sys.argv or PROBE:
        e("v_mov_b32 v255, 0", "s_memrealtime s[98:99]")

def ids_early():
    e("v_and_b32 v1, 63, v0", "s_and_b32 %s, s2, 7" % XCD)
    e("s_and_b32 s74, s2, 1", "s_and_b32 s75, %s, 7" % IDX, "s_lshl3_add_u32 %s, s74, s75" % MT)
    e("s_lshr_b32 s74, %s, 1" % XCD, "s_lshr_b32 s75, s2, 6", "s_lshl2_add_u32 %s, s74, s75" % FT)
    e("s_bfe_u32 %s, %s, 0x20006" % (W, WAVE), "v_lshlrev_b32 v12, 4, v1")
    e("s_lshl_b32 s74, %s, 5" % XCD, "s_add_u32 %s, s74, %s" % (CP, IDX), "s_lshl_b32 s15, %s, 2" % CP, "v_mov_b32 v15, 0")
    if NCLS == 8: e("s_lshl1_add_u32 s74, %s, %s" % (FT, MT), "s_and_b32 %s, s74, 7" % KS)
    else: e("s_add_u32 s74, %s, %s" % (FT, MT), "s_and_b32 s74, s74, %d" % (NCLS - 1), "s_mul_i32 %s, s74, %d" % (KS, NS))
    e("s_cmp_eq_u32 %s, 15" % FT)
    e("s_cselect_b32 s87, %s, %s" % (MT, FT), "s_cselect_b32 s86, 0, %s" % KS, "s_cselect_b32 s46, 0, 0x200000")
    e("s_mov_b32 s47, 0x20000")

def ids_late():
    e("s_lshr_b32 %s, %s, 6" % (WAVE, WAVE))
    e("s_mov_b32 s59, s47", "s_mov_b32 s63, s47", "s_mov_b32 s58, 1409024", "s_mov_b32 s62, %d" % WS_SIZE)
    e("s_mov_b32 s60, s42", "s_mov_b32 s61, s43", "s_mov_b32 s56, s36", "s_mov_b32 s57, s37")
    e("s_and_b32 s75, %s, 3" % IDX, "s_lshl2_add_u32 %s, %s, s75" % (I2, XCD), "s_lshr_b32 %s, %s, 2" % (J2, IDX))
    e("s_lshr_b32 %s, %s, 1" % (WM, W), "s_and_b32 %s, %s, 1" % (WN, W), "s_lshl_b32 %s, %s, 2" % (W4, W))

def prologue():
    ids_early()
    d0 = stage_dma(0, VM())
    slot = RB + slot_of(0) * SLOT
    e("s_lshl2_add_u32 s74, %s, %s" % (CP, W), "s_lshl_b32 s74, s74, 7", "v_lshl_add_u32 v14, v1, 1, s74")
    e("s_lshl4_add_u32 %s, %s, %s" % (G, MT, FT), "s_lshl2_add_u32 s74, %s, %s" % (G, W), "s_lshl_b32 s74, s74, 11", "v_add_u32 v13, s74, v12")
    dma_setup_x()
    dma_setup_w()
    e(d0[:6])
    e("s_mov_b32 s51, s47", "s_mov_b32 s55, s47", "s_mov_b32 s11, s47", "s_mov_b32 s50, 1409024")
    e("s_cmp_ge_u32 %s, 256" % WAVE)
    e("s_waitcnt lgkmcnt(0)")
    e(stamp("start"))
    e("s_cbranch_scc1 L_B0")
    for i in range(4): e("global_load_ushort v%d, v14, s[%d:%d]" % (24 + i, 18 + 2 * i, 19 + 2 * i))
    e("s_load_dword s14, s[26:27], s15")
    e("s_branch L_j0", "L_B0:")
    e("global_load_dwordx4 v[16:19], v13, s[16:17]", "global_load_dwordx4 v[20:23], v13, s[16:17] offset:1024")
    e("s_load_dword s14, s[28:29], s15")
    e("L_j0:")
    e("global_load_dword v29, v15, s[42:43] sc1")
    e("s_cselect_b32 s74, 2048, 0", "s_cselect_b32 s75, %d, 0" % WMAT, "s_mov_b32 s44, s16", "s_mov_b32 s45, s17")
    e("s_add_u32 s76, s80, s74", "s_lshl3_add_u32 s78, s74, s78", "s_add_u32 m0, s76, %d" % slot, "s_add_u32 s77, s81, s75")
    e("buffer_load_dwordx4 v%d, %s, s78 offen lds" % (VX0, sX), "s_add_u32 s78, s78, 7168", "buffer_load_dwordx4 v%d, %s, s78 offen offset:1024 lds" % (VX1, sX))
    e("s_add_u32 s74, s36, %d" % (256 * 2752), "s_addc_u32 s75, s37, 0", "s_cmp_eq_u32 %s, 15" % FT)
    e("s_cselect_b64 s[48:49], s[36:37], s[32:33]", "s_cselect_b64 s[52:53], s[74:75], s[34:35]", "s_cselect_b32 s54, %d, s50" % (256 * 2752))
    e("s_add_u32 m0, s77, %d" % (slot + WOFF))
    e("s_cmp_ge_u32 %s, 256" % WAVE, "s_cselect_b64 s[8:9], s[52:53], s[48:49]", "s_cselect_b32 s10, s54, s50")
    for i in range(3): e("buffer_load_dwordx4 v%d, s[8:11], s79 offen offset:%d lds" % (VW + i, 1024 * i))
    ids_late()
    e("s_cmp_ge_u32 %s, 4" % WAVE, "s_cbranch_scc1 L_B")

XA, XA2, WA, WA2 = 2, 6, 10, 11
ACC, ONEACC, FR0, FR1, ONES = 64, 160, 208, 228, 248

def cmul(dst, a, w, t):
    return ["v_pk_mul_f32 %s, %s, %s op_sel:[0,0] op_sel_hi:[0,1]" % (vr(t, 2), vr(a, 2), vr(w, 2)),
            "v_pk_fma_f32 %s, %s, %s, %s op_sel:[1,1,0] op_sel_hi:[1,0,1] neg_lo:[1,0,0]" % (vr(dst, 2), vr(a, 2), vr(w, 2), vr(t, 2))]

def wave_sums(regs, sregs):
    o = []
    for m in ("row_shr:1", "row_shr:2", "row_shr:4", "row_shr:8"):
        for r in regs: o.append("v_add_f32_dpp v%d, v%d, v%d %s row_mask:0xf bank_mask:0xf" % (r, r, r, m))
    for r in regs: o.append("v_add_f32_dpp v%d, v%d, v%d row_bcast:15 row_mask:0xa bank_mask:0xf" % (r, r, r))
    for r in regs: o.append("v_add_f32_dpp v%d, v%d, v%d row_bcast:31 row_mask:0xc bank_mask:0xf" % (r, r, r))
    o += ["v_readlane_b32 %s, v%d, 63" % (sr, r) for r, sr in zip(regs, sregs)]
    return o

def ln_ops(vm):
    o = []
    F, D, T = 160, 176, 192
    for r in range(2):
        for j in range(4):
            o += ["v_lshlrev_b32 v%d, 16, v%d" % (F + 8 * r + 2 * j, 16 + 4 * r + j), "v_and_b32 v%d, 0xffff0000, v%d" % (F + 8 * r + 2 * j + 1, 16 + 4 * r + j)]
    o += ["v_readfirstlane_b32 s4, v%d" % F, "v_readfirstlane_b32 s6, v%d" % (F + 8)]
    for j in range(4):
        for r in range(2):
            o.append("v_pk_add_f32 %s, %s, s[%d:%d] op_sel_hi:[1,0] neg_lo:[0,1] neg_hi:[0,1]" % (vr(D + 8 * r + 2 * j, 2), vr(F + 8 * r + 2 * j, 2), 4 + 2 * r, 5 + 2 * r))
    for r in range(2):
        d = D + 8 * r; t = T + 6 * r
        o += ["v_pk_add_f32 %s, %s, %s" % (vr(t, 2), vr(d, 2), vr(d + 2, 2)), "v_pk_add_f32 %s, %s, %s" % (vr(t + 2, 2), vr(d + 4, 2), vr(d + 6, 2)),
              "v_pk_mul_f32 %s, %s, %s" % (vr(t + 4, 2), vr(d, 2), vr(d, 2))]
    for j in range(1, 4):
        for r in range(2):
            d = D + 8 * r; t = T + 6 * r
            o.append("v_pk_fma_f32 %s, %s, %s, %s" % (vr(t + 4, 2), vr(d + 2 * j, 2), vr(d + 2 * j, 2), vr(t + 4, 2)))
            if j == 1: o.append("v_pk_add_f32 %s, %s, %s" % (vr(t, 2), vr(t, 2), vr(t + 2, 2)))
    for r in range(2):
        t = T + 6 * r
        o += ["v_add_f32 v%d, v%d, v%d" % (t, t, t + 1), "v_add_f32 v%d, v%d, v%d" % (t + 4, t + 4, t + 5)]
    o += wave_sums([T, T + 6, T + 4, T + 10], ["s8", "s9", "s10", "s11"])
    c = 204
    o += ["v_mov_b32 v%d, 0x3b000000" % c]
    o += ["v_mul_f32 v%d, s8, v%d" % (T, c), "v_mul_f32 v%d, s9, v%d" % (T + 1, c), "v_mul_f32 v%d, s10, v%d" % (T + 2, c), "v_mul_f32 v%d, s11, v%d" % (T + 3, c)]
    o += ["v_fma_f32 v%d, -v%d, v%d, v%d" % (T + 2, T, T, T + 2), "v_fma_f32 v%d, -v%d, v%d, v%d" % (T + 3, T + 1, T + 1, T + 3)]
    o += ["v_add_f32 v%d, s4, v%d" % (T, T), "v_add_f32 v%d, s6, v%d" % (T + 1, T + 1)]
    o += ["v_max_f32 v%d, 0, v%d" % (T + 2, T + 2), "v_max_f32 v%d, 0, v%d" % (T + 3, T + 3)]
    MB, M0, S0, S1, RI = T + 4, T + 6, T + 10, T + 11, D
    o += ["v_cvt_pk_bf16_f32 v%d, v%d, v%d" % (MB, T, T + 1), "v_cvt_pk_bf16_f32 v%d, v%d, v%d" % (T + 2, T + 2, T + 3)]
    o += ["v_lshlrev_b32 v%d, 16, v%d" % (M0, MB), "v_and_b32 v%d, 0xffff0000, v%d" % (M0 + 2, MB)]
    o += ["v_lshlrev_b32 v%d, 16, v%d" % (S0, T + 2), "v_and_b32 v%d, 0xffff0000, v%d" % (S1, T + 2)]
    o += ["v_add_f32 v%d, %s, v%d" % (S0, hx(f2u(1e-5)), S0), "v_add_f32 v%d, %s, v%d" % (S1, hx(f2u(1e-5)), S1)]
    sub = [["v_pk_add_f32 %s, %s, %s op_sel_hi:[1,0] neg_lo:[0,1] neg_hi:[0,1]" % (vr(F + 8 * r + 2 * j, 2), vr(F + 8 * r + 2 * j, 2), vr(M0 + 2 * r, 2)) for j in range(4)] for r in range(2)]
    o += ["v_cvt_pk_bf16_f32 v%d, v%d, v%d" % (T + 2, S0, S1)] + sub[0][:2]
    o += ["v_lshlrev_b32 v%d, 16, v%d" % (S0, T + 2), "v_and_b32 v%d, 0xffff0000, v%d" % (S1, T + 2)] + sub[0][2:]
    o += ["v_sqrt_f32 v%d, v%d" % (S0, S0), "v_sqrt_f32 v%d, v%d" % (S1, S1)] + sub[1][:2]
    o += ["v_cvt_pk_bf16_f32 v%d, v%d, v%d" % (T + 2, S0, S1)] + sub[1][2:]
    o += ["v_lshlrev_b32 v%d, 16, v%d" % (S0, T + 2), "v_and_b32 v%d, 0xffff0000, v%d" % (S1, T + 2)]
    o += ["v_rcp_f32 v%d, v%d" % (RI, S0), "v_rcp_f32 v%d, v%d" % (RI + 2, S1)]
    for r in range(2):
        for j in range(4): o.append("v_pk_mul_f32 %s, %s, %s op_sel_hi:[1,0]" % (vr(F + 8 * r + 2 * j, 2), vr(F + 8 * r + 2 * j, 2), vr(RI + 2 * r, 2)))
    for r in range(2):
        for j in range(4): o.append("v_cvt_pk_bf16_f32 v%d, v%d, v%d" % (16 + 4 * r + j, F + 8 * r + 2 * j, F + 8 * r + 2 * j + 1))
    o += ["s_mul_i32 s4, %s, %d" % (W, 2 * LNP), "s_add_u32 s4, s4, %d" % LNS, "v_add_u32 v%d, s4, v12" % c]
    o += ["ds_write_b128 v%d, v[16:19]" % c, "ds_write_b128 v%d, v[20:23] offset:%d" % (c, LNP)]
    o += tag_from("v29")
    o += ["v_xor_b32 v%d, 0x80008000, v%d" % (MB, MB), "v_and_b32 v%d, 0xffff, v%d" % (T, MB), "v_or_b32 v%d, v%d, v%d" % (T, T, S0),
          "v_lshrrev_b32 v%d, 16, v%d" % (T + 1, MB), "v_or_b32 v%d, v%d, v%d" % (T + 1, T + 1, S1),
          "v_cmp_eq_u32 vcc, 0, v1", "v_lshlrev_b32 v%d, 3, v1" % (T + 2), "v_cndmask_b32 v%d, v%d, v%d, vcc" % (T, T + 1, T), "v_mov_b32 v%d, %s" % (T + 1, TAG),
          "s_lshl_b32 s4, %s, 6" % G, "s_lshl_b32 s5, %s, 4" % W, "s_add_u32 s4, s4, s5", "s_add_u32 s4, s4, %d" % WS_ST]
    o.append(("s_mov_b64 exec, 3", "buffer_store_dwordx2 %s, v%d, %s, s4 offen sc1" % (vr(T, 2), T + 2, sWS), "s_mov_b64 exec, -1"))
    vm.op("st")
    return o

def kgen_ops():
    o = []
    for i in range(5): o.append("v_lshlrev_b32 v%d, 16, v%d" % (24 + i, 24 + i))
    o += ["v_mul_f32 v28, %s, v28" % LOG2E, "v_mul_f32 v24, %s, v24" % LOG2E, "v_exp_f32 v28, v28", "v_exp_f32 v24, v24",
          "v_cvt_pk_bf16_f32 v24, v24, v28", "v_and_b32 v28, 0xffff0000, v24", "v_lshlrev_b32 v24, 16, v24",
          "v_mul_f32 v24, v24, v28", "v_mul_f32 v25, v25, v28",
          "v_mul_f32 v24, %s, v24" % hx(f2u(-1.4426950408889634)), "v_mul_f32 v25, %s, v25" % INV2PI, "v_add_f32 v28, v28, v28"]
    EA = 64
    o += ["v_mul_f32 v%d, v26, v28" % EA, "v_mul_f32 v%d, v27, v28" % (EA + 1)]
    Z1, Z8, Z256, Z32 = 30, 32, 34, 36
    zs = ((Z8, 8.0), (Z1, 1.0), (Z32, 32.0), (Z256, 256.0))
    for k, (z, p) in enumerate(zs):
        t = 116 + 4 * k
        o += ["v_mul_f32 v%d, %s, v24" % (t, hx(f2u(p))), "v_mul_f32 v%d, %s, v25" % (t + 1, hx(f2u(p)))]
    for k, (z, p) in enumerate(zs):
        t = 116 + 4 * k
        o += ["v_rndne_f32 v%d, v%d" % (t + 2, t + 1), "v_exp_f32 v%d, v%d" % (t, t)]
    for k, (z, p) in enumerate(zs):
        t = 116 + 4 * k
        o += ["v_sub_f32 v%d, v%d, v%d" % (t + 1, t + 1, t + 2)]
    for k, (z, p) in enumerate(zs):
        t = 116 + 4 * k
        o += ["v_cos_f32 v%d, v%d" % (z, t + 1), "v_sin_f32 v%d, v%d" % (z + 1, t + 1)]
    for k, (z, p) in enumerate(zs):
        t = 116 + 4 * k
        o += ["v_pk_mul_f32 %s, %s, %s op_sel_hi:[1,0]" % (vr(z, 2), vr(z, 2), vr(t, 2))]
    def wr(row, src, neg):
        t = 132 + ((row - 21) % 4 if not neg else (4 if row in (0, 1, 2, 3, 4, 5, 6, 7, 13, 15) else 5))
        return ["v_cvt_pk_bf16_f32 v%d, v%d, %sv%d" % (t, src, "-" if neg else "", src + 1), "ds_write_addtid_b32 v%d offset:%d" % (t, 4096 + row * 272)]
    plan = [(i, i - 1, Z1) for i in range(1, 8)] + [(13, 10, Z256), (15, 13, Z256)]
    plan2 = [(8, 0, Z256), (12, 8, Z256), (14, 12, Z256), (9, 2, Z256), (16, 14, Z256), (10, 4, Z256), (17, 16, Z256), (11, 6, Z256), (18, 17, Z256), (19, 18, Z256), (20, 19, Z256)]
    ca = [wr(0, EA, True)] + [cmul(EA + 2 * d, EA + 2 * s_, z, 54) + wr(d, EA + 2 * d, True) for d, s_, z in plan]
    cb = [cmul(EA + 2 * d, EA + 2 * s_, z, 56) + wr(d, EA + 2 * d, True) for d, s_, z in plan2]
    C = [38, 40, 42, 44]
    ch = [[], [], [], []]
    ch[0] = [["v_mov_b32 v140, 0x00003f80", "ds_write_addtid_b32 v140 offset:%d" % (4096 + 21 * 272)] + wr(25, Z32, False)]
    ch[1] = [wr(22, Z8, False)]
    ch[2] = [cmul(C[2], Z8, Z8, 50) + wr(23, C[2], False)]
    ch[3] = [[], cmul(C[3], C[2], Z8, 52) + wr(24, C[3], False)]
    for b in range(8, 32, 4): ch[0].append(cmul(C[0], Z32 if b == 8 else C[0], Z32, 46) + wr(21 + b, C[0], False))
    for b in range(5, 32, 4): ch[1].append(cmul(C[1], Z8 if b == 5 else C[1], Z32, 48) + wr(21 + b, C[1], False))
    ch[2].append([])
    for b in range(6, 32, 4): ch[2].append(cmul(C[2], C[2], Z32, 50) + wr(21 + b, C[2], False))
    for b in range(7, 32, 4): ch[3].append(cmul(C[3], C[3], Z32, 52) + wr(21 + b, C[3], False))
    chains = [ca, cb] + ch
    pend = []
    for i in range(max(len(c) for c in chains)):
        grp = [c[i] for c in chains if i < len(c) and c[i]]
        va, ds = [], []
        for k in range(max(len(x) for x in grp)):
            for x in grp:
                if k < len(x): (ds if x[k].startswith("ds_") else va).append(x[k])
        ncv = len([x for x in va if not x.startswith("v_pk")])
        npk = len(va) - ncv
        if npk >= len(pend) and pend: o += interleave(va[:npk], pend) + va[npk:]
        else: o += pend + va
        pend = ds
    o += pend
    return o

VX0, VX1, VW = 2, 3, 4
KD_ = "s86"
def stage_dma(st, vm):
    slot = RB + slot_of(st) * SLOT
    o = ["s_lshl_b32 s78, %s, 7" % KD_, "s_add_u32 s78, s78, s84", "s_mul_i32 s79, %s, %d" % (KD_, 64 * 2752), "s_add_u32 s79, s79, s85",
         "s_add_u32 %s, %s, 1" % (KD_, KD_), "s_and_b32 %s, %s, 7" % (KD_, KD_)]
    for i in range(4):
        g = ["s_add_u32 s78, s78, 7168"] if i else ["s_add_u32 m0, s80, %d" % slot]
        g.append("buffer_load_dwordx4 v%d, %s, s78 offen offset:%d lds" % (VX0 + (i & 1), sX, 1024 * i)); vm.op("st%d" % st)
        o.append(tuple(g))
    for m, srd in enumerate((sWG, sWU)):
        for i in range(3):
            g = [] if i else ["s_add_u32 m0, s81, %d" % (slot + WOFF + m * WMAT)]
            g.append("buffer_load_dwordx4 v%d, %s, s79 offen offset:%d lds" % (VW + i, srd, 1024 * i)); vm.op("st%d" % st)
            o.append(tuple(g))
    return o

def dma_setup_x():
    e("v_lshrrev_b32 v210, 3, v1", "v_and_b32 v211, 0x30, v1", "v_and_b32 v212, 0x70, v12", "v_xor_b32 v211, v211, v212",
      "v_lshl_add_u32 v%d, v210, 10, v211" % VX0, "v_xor_b32 v%d, 64, v%d" % (VX1, VX0))
    e("s_lshl_b32 s80, %s, 12" % W, "s_lshl2_add_u32 s84, %s, %s" % (MT, W), "s_lshl_b32 s84, s84, 15")

def dma_setup_w():
    e("v_mul_u32_u24 v210, 5462, v1", "s_movk_i32 s74, 2560")
    for i in range(3):
        if i: e("v_add_u32 v210, %d, v210" % (64 * 5462))
        e("v_lshrrev_b32 v211, 16, v210", "v_mad_u32_u24 v%d, v211, s74, v12" % (VW + i))
    e("s_mul_i32 s81, %s, 3072" % W, "s_mul_i32 s85, s87, 192", "s_mul_i32 s74, %s, %d" % (W, 16 * 2752), "s_add_u32 s85, s85, s74")

def a_p0():
    vm = VM()
    e("v_and_b32 v30, 31, v1", "v_lshrrev_b32 v31, 5, v1")
    e("v_bfe_u32 v32, v1, 1, 3")
    e("s_lshl_b32 s74, %s, 13" % WM, "s_add_u32 s74, s74, %d" % RB, "v_lshl_add_u32 v33, v30, 7, s74")
    for s in range(4):
        e("v_add_u32 v34, %d, v31" % (2 * s), "v_xor_b32 v34, v34, v32", "v_lshl_add_u32 v%d, v34, 4, v33" % (XA + s),
          "v_add_u32 v%d, %d, v%d" % (XA2 + s, 2 * SLOT, XA + s))
    e("v_bfe_u32 v34, v1, 4, 1", "v_mul_u32_u24 v34, %d, v34" % WMAT)
    e("v_bfe_u32 v35, v1, 2, 2", "v_lshl_add_u32 v35, v31, 3, v35", "v_mul_u32_u24 v35, 192, v35")
    e("v_and_b32 v36, 3, v1", "v_lshlrev_b32 v36, 3, v36", "v_add3_u32 v34, v34, v35, v36")
    e("s_mul_i32 s74, %s, 96" % WN, "s_add_u32 s74, s74, %d" % (RB + WOFF), "v_add_u32 v%d, s74, v34" % WA, "v_add_u32 v%d, %d, v%d" % (WA2, 2 * SLOT, WA))
    for i in range(4): e("v_mov_b32 v%d, 0x3f803f80" % (ONES + i))
    e("s_mul_i32 s74, %s, %d" % (W, E_W), "s_add_u32 s74, s74, %d" % E_BASE, "s_sub_u32 m0, s74, 4096")
    e("v_mul_u32_u24 v14, 272, v30", "v_lshl_add_u32 v14, v31, 4, v14", "v_add_u32 v14, s74, v14")
    e("s_mul_i32 s75, %s, 3072" % W, "s_add_u32 s75, s75, %d" % T_BASE)
    TA = 58
    e("v_lshlrev_b32 v%d, 5, v30" % TA, "v_lshl_add_u32 v%d, v31, 4, v%d" % (TA, TA), "v_add_u32 v%d, s75, v%d" % (TA, TA))
    e("v_cmp_eq_u32 vcc, 0, v31")
    e("v_lshlrev_b32 v34, 4, v30", "v_add_u32 v34, 1024, v34", "v_lshlrev_b32 v35, 3, v30", "v_add_u32 v35, 1536, v35")
    e("v_add_u32 v36, 8, v34", "v_add_u32 v37, 256, v35")
    e("v_cndmask_b32 v34, v35, v34, vcc", "v_cndmask_b32 v35, v37, v36, vcc")
    e("v_add_u32 v%d, s75, v34" % (TA + 1), "v_add_u32 v%d, s75, v35" % (TA + 2))
    e("v_lshlrev_b32 v34, 2, v30", "v_lshl_add_u32 v34, v31, 9, v34", "v_add_u32 v%d, s75, v34" % (TA + 3))
    e("s_lshl_b32 s84, %s, 1" % MT, "s_add_u32 s84, s84, %s" % WM, "s_mul_i32 s84, s84, 172", "s_mul_i32 s85, %s, 6" % FT, "s_mul_i32 s78, %s, 3" % WN,
      "s_add_u32 s85, s85, s78", "s_add_u32 s84, s84, s85", "s_lshl_b32 s84, s84, 10", "s_add_u32 s84, s84, %d" % WS_H)
    e("s_and_b32 s86, %s, 7" % MT, "s_lshr_b32 s86, s86, %d" % (NCLS.bit_length() - 1), "s_add_u32 s75, s86, %s" % KS, "s_and_b32 s75, s75, 7", "s_lshl_b32 s75, s75, 9")
    e("s_lshr_b32 s74, %s, 3" % MT, "s_lshl_b32 s74, s74, 4", "s_add_u32 s74, s74, %s" % FT, "s_lshl_b32 s74, s74, 1", "s_add_u32 s74, s74, %s" % WN,
      "s_lshl_b32 s80, s74, 12", "s_add_u32 s80, s80, %d" % WS_CS, "s_add_u32 s79, s80, s75")
    e("s_cmp_eq_u32 %s, 0" % WM, "s_cselect_b32 s86, s86, 15", "s_cselect_b32 s79, s79, 0x7ff00000")
    e("s_lshl_b32 s81, %s, 10" % MT, "s_lshl_b32 s75, %s, 9" % WM, "s_add_u32 s81, s81, s75", "s_add_u32 s81, s81, %d" % WS_ST)
    e("s_waitcnt vmcnt(6) lgkmcnt(0)")
    e("s_lshl_b32 s74, %s, 4" % WM, "s_lshr_b32 s14, s14, s74", "v_mov_b32 v28, s14")
    e(stamp("lnld"))
    e(kgen_ops())
    e(stamp("kg_chain"))
    e("s_waitcnt lgkmcnt(0)")
    for s in range(8):
        e("ds_read_b128 %s, v14 offset:%d" % (vr(64 + 8 * s, 4), 32 * s), "ds_read_b128 %s, v14 offset:%d" % (vr(68 + 8 * s, 4), 21 * 272 + 32 * s))
    e("v_and_b32 v48, 0x1ff, v12", "v_lshrrev_b32 v49, 5, v1", "v_lshl_add_u32 v49, v49, 11, v48")
    for s in range(8):
        e("s_waitcnt lgkmcnt(%d)" % (14 - 2 * s))
        e("v_mfma_f32_32x32x16_bf16 v[32:47], %s, %s, %s" % (vr(64 + 8 * s, 4), vr(68 + 8 * s, 4), "0" if s == 0 else "v[32:47]"))
    e("ds_write_b128 v%d, v[32:35]" % TA, "ds_write_b64 v%d, v[36:37]" % (TA + 1), "ds_write_b64 v%d, v[38:39]" % (TA + 2))
    for i in range(4): e("ds_write_b32 v%d, v%d offset:%d" % (TA + 3, 40 + i, 2048 + 128 * i))
    e(stamp("kgen"))
    e("s_waitcnt vmcnt(0)")
    e(tag_from("v29"))
    e(stamp("land0"))
    return vm

def g1_reads(stage, s, buf):
    slot = slot_of(stage)
    o = []
    for b in range(2):
        if slot < 2: o.append("ds_read_b128 %s, v%d offset:%d" % (vr(buf + 4 * b, 4), XA + s, slot * SLOT + 4096 * b))
        else: o.append("ds_read_b128 %s, v%d offset:%d" % (vr(buf + 4 * b, 4), XA2 + s, 4096 * b))
    for a in range(3):
        for q in range(2):
            off = (16 * s + 4 * q) * 192 + 32 * a
            if slot < 2: o.append("ds_read_b64_tr_b16 %s, v%d offset:%d" % (vr(buf + 8 + 4 * a + 2 * q, 2), WA, slot * SLOT + off))
            else: o.append("ds_read_b64_tr_b16 %s, v%d offset:%d" % (vr(buf + 8 + 4 * a + 2 * q, 2), WA2, off))
    return [o[0], o[2], o[3], o[1], o[4], o[5], o[6], o[7]]

def g1_mfmas(buf, first):
    o = []
    for a in range(3):
        for b in range(2):
            acc = ACC + 16 * (2 * a + b)
            o.append("v_mfma_f32_32x32x16_bf16 %s, %s, %s, %s" % (vr(acc, 16), vr(buf + 8 + 4 * a, 4), vr(buf + 4 * b, 4), "0" if first else vr(acc, 16)))
    return o

def g1_ones(buf, st, s):
    sk = newlab("no1")
    o = ["s_cmp_lg_u32 s86, %d" % st, "s_cbranch_scc1 " + sk]
    for a in range(3):
        acc = ONEACC + 16 * a
        o.append("v_mfma_f32_32x32x16_bf16 %s, %s, %s, %s" % (vr(acc, 16), vr(ONES, 4), vr(buf + 8 + 4 * a, 4), "0" if s == 0 else vr(acc, 16)))
    return o + [sk + ":"]

def wd_dma(t0, k0, cnt, vm, lab, vo):
    o = []
    for k in range(k0, k0 + cnt):
        o.append(("s_add_u32 m0, s76, %d" % (wd_loc(t0) + k * 4096), "s_add_u32 s78, s77, %d" % (t0 * 16384 + k * 32768),
                  "buffer_load_dwordx4 v%d, %s, s78 offen lds" % (vo, sWD)))
        vm.op(lab)
    return o

def wd_setup():
    return ["s_lshl_b32 s76, %s, 10" % W, "s_lshl_b32 s77, s76, 3", "s_lshl_b32 s78, %s, 7" % J2, "s_add_u32 s77, s77, s78"]

def wd_voff(v, t):
    return ["v_lshrrev_b32 v%d, 3, v1" % t, "v_bfe_u32 v%d, v1, 4, 1" % (t + 1), "v_lshlrev_b32 v%d, 2, v%d" % (t + 1, t + 1),
            "v_and_b32 v%d, 7, v1" % v, "v_xor_b32 v%d, v%d, v%d" % (v, v, t + 1), "v_lshlrev_b32 v%d, 4, v%d" % (v, v),
            "v_lshl_add_u32 v%d, v%d, 10, v%d" % (v, t, v)]

def wd_loc(t):
    if t < 60: return RB + t * 2048
    if t < 80: return RB + (t - 60) * 2048
    return W2B + (t - 80) * 2048

def final_xload(vm, dst, t):
    o = ["v_lshrrev_b32 v%d, 3, v0" % t, "v_and_b32 v%d, 7, v0" % (t + 1), "v_lshlrev_b32 v%d, 4, v%d" % (t + 1, t + 1),
         "v_lshl_add_u32 v%d, v%d, 10, v%d" % (t, t, t + 1),
         "s_lshl_b32 s74, %s, 16" % I2, "s_lshl_b32 s75, %s, 7" % J2, "s_add_u32 s74, s74, s75", "v_add_u32 v%d, s74, v%d" % (t, t),
         "global_load_dwordx4 %s, v%d, s[16:17]" % (vr(dst, 4), t)]
    vm.op("xf")
    return o

XF, XFA = 244, 248

SLOW = []
def a_main(vm):
    bufs = (FR0, FR1)
    prev = None
    n = 0
    gl = []
    CA, CB, KC = 160, 172, 36
    prep = ["s_mov_b32 s74, 0x07060302"]
    for a in range(3): prep += ["v_add_f32 v%d, v%d, v%d" % (20 + a, 20 + a, 24 + a), "v_add_f32 v%d, v%d, v%d" % (28 + a, 28 + a, 32 + a)]
    for a in range(3): prep += ["v_add_f32 v%d, v%d, v%d" % (20 + a, 20 + a, 28 + a)]
    for a in range(3):
        prep += ["v_and_b32 v24, 0xffff0000, v%d" % (20 + a), "v_sub_f32 v24, v%d, v24" % (20 + a), "v_and_b32 v25, 0xffff0000, v24", "v_sub_f32 v25, v24, v25",
                 "v_perm_b32 v%d, v24, v%d, s74" % (CA + 4 * a, 20 + a), "v_lshrrev_b32 v%d, 16, v25" % (CA + 4 * a + 1)]
    for b in range(2):
        sv = 16 + 2 * b
        prep += ["v_and_b32 v%d, 0xffff, v%d" % (CB + 4 * b + 1, sv), "v_lshl_or_b32 v%d, v%d, 16, v%d" % (CB + 4 * b, sv, CB + 4 * b + 1),
                 "v_and_b32 v%d, 0xffff0000, v%d" % (sv, sv), "v_rcp_f32 v%d, v%d" % (sv + 1, sv)]
    for b in range(2):
        sv = 16 + 2 * b
        prep += ["v_mul_f32 v%d, v%d, v%d" % (KC + 4 * b + 2, sv, sv), "v_mul_f32 v%d, %s, v%d" % (KC + 4 * b, hx(f2u(GK1)), sv + 1),
                 "v_mul_f32 v%d, v%d, v%d" % (KC + 4 * b + 1, sv + 1, sv + 1), "v_mul_f32 v%d, v%d, v%d" % (KC + 4 * b + 1, KC + 4 * b + 1, sv + 1),
                 "v_mul_f32 v%d, %s, v%d" % (KC + 4 * b + 1, hx(f2u(GK2)), KC + 4 * b + 1)]
    WDV, WB = 13, 50
    g2a = wd_voff(WDV, 14) + \
        ["v_bfe_u32 v14, v1, 2, 2", "v_lshrrev_b32 v15, 5, v1", "v_lshl_add_u32 v15, v15, 2, v14", "v_lshrrev_b32 v14, 1, v14", "v_lshlrev_b32 v14, 2, v14",
         "v_bfe_u32 v62, v1, 4, 1", "v_lshlrev_b32 v62, 1, v62", "v_bfe_u32 v63, v1, 1, 1", "v_add_u32 v62, v62, v63", "v_xor_b32 v62, v62, v14",
         "v_lshlrev_b32 v62, 4, v62", "v_lshl_add_u32 v62, v15, 7, v62", "v_and_b32 v63, 1, v1", "v_lshl_add_u32 v62, v63, 3, v62",
         "s_lshl_b32 s74, %s, 11" % WN, "v_add_u32 v%d, s74, v62" % WB, "v_xor_b32 v%d, 64, v%d" % (WB + 1, WB)]
    for k in (1, 2):
        g2a += ["v_add_u32 v%d, %d, v%d" % (WB + 2 * k, 65536 * k, WB), "v_add_u32 v%d, %d, v%d" % (WB + 2 * k + 1, 65536 * k, WB + 1)]
    corr = []
    for a in range(3):
        for b in range(2):
            acc = ACC + 16 * (2 * a + b)
            corr.append("v_mfma_f32_32x32x16_bf16 %s, %s, %s, %s" % (vr(acc, 16), vr(CA + 4 * a, 4), vr(CB + 4 * b, 4), vr(acc, 16)))
    gl = ["buffer_load_dwordx2 v[16:17], v48, %s, s81 offen sc1" % sWS, "buffer_load_dwordx2 v[18:19], v48, %s, s81 offen offset:256 sc1" % sWS]
    gl += ["buffer_load_dwordx4 %s, v49, %s, s80 offen offset:%d sc1" % (vr(20 + 4 * p, 4), sWS, 512 * p) for p in range(4)]
    pones = []
    for st in range(8):
        e("s_barrier")
        e(stamp("st%d" % st))
        for s in range(4):
            rd = g1_reads(st, s, bufs[n & 1])
            extra = []
            if st == NS and s == 2:
                extra = ["v_mov_b32 v44, v%d" % ONEACC, "v_mov_b32 v45, v%d" % (ONEACC + 16), "v_mov_b32 v46, v%d" % (ONEACC + 32), "v_mov_b32 v47, %s" % TAG,
                         "buffer_store_dwordx4 v[44:47], v48, %s, s79 offen sc1" % sWS]
                vm.op("cs")
            if st == 3: extra = g2a[len(g2a) * s // 4: len(g2a) * (s + 1) // 4]
            if st == 5 and s == 0:
                extra = ["v_mov_b32 v%d, 0" % r for r in (CA + 2, CA + 3, CA + 6, CA + 7, CA + 10, CA + 11, CB + 2, CB + 3, CB + 6, CB + 7)] + ["v_lshrrev_b32 v48, 1, v48"]
            if st == 6 and s == 0: extra = gl[:3]
            if st == 6 and s == 1: extra = gl[3:]
            if st == 7 and s == 1:
                e(vm.all(), check_retry(gl, [17, 19, 23, 27, 31, 35], 44))
                extra = prep[:18]
            if st == 7 and s == 2: extra = prep[18:36]
            if st == 7 and s == 3: prev = prev + corr; extra = prep[36:]
            if prev is None: e(rd)
            elif len(extra) > 12: e(interleave(prev[:2], rd, per=4), interleave(prev[2:], extra), pones)
            else: e(interleave(prev[:3], rd, per=3), interleave(prev[3:], extra), pones)
            e("s_waitcnt lgkmcnt(0)")
            prev = g1_mfmas(bufs[n & 1], st == 0 and s == 0)
            pones = g1_ones(bufs[n & 1], st, s) if st < NS else []
            n += 1
    e(interleave(prev, lds_signal(C_A1, 44)))
    e(stamp("loopend"))
    e("s_setprio 3")
    for a in range(3):
        skip = newlab("skiph")
        e("s_cmp_ge_u32 s85, %d" % (86 - a), "s_cbranch_scc1 " + skip)
        seq = []
        for b in range(2):
            acc = ACC + 16 * (2 * a + b)
            k = vr(KC + 4 * b, 2); s2 = vr(KC + 4 * b + 2, 2)
            Q = 180 + 16 * b; P = 188 + 16 * b; O = 212 + 4 * ((2 * a + b) % 4)
            o = []
            for j in range(4): o.append("v_pk_mul_f32 %s, %s, %s" % (vr(Q + 2 * j, 2), vr(acc + 2 * j, 2), vr(acc + 2 * j, 2)))
            for j in range(4): o.append("v_pk_fma_f32 %s, %s, %s, %s op_sel:[0,1,0] op_sel_hi:[1,1,0]" % (vr(Q + 2 * j, 2), vr(Q + 2 * j, 2), k, k))
            for j in range(4): o.append("v_pk_mul_f32 %s, %s, %s" % (vr(Q + 2 * j, 2), vr(Q + 2 * j, 2), vr(acc + 2 * j, 2)))
            for j in range(8): o.append("v_exp_f32 v%d, v%d" % (Q + j, Q + j))
            for j in range(4): o.append("v_pk_mul_f32 %s, %s, %s" % (vr(P + 2 * j, 2), vr(acc + 2 * j, 2), vr(acc + 8 + 2 * j, 2)))
            for j in range(4): o.append("v_pk_fma_f32 %s, %s, %s, %s op_sel:[0,0,0] op_sel_hi:[1,0,0]" % (vr(Q + 2 * j, 2), vr(Q + 2 * j, 2), s2, s2))
            for j in range(8): o.append("v_rcp_f32 v%d, v%d" % (Q + j, Q + j))
            for j in range(4): o.append("v_pk_mul_f32 %s, %s, %s" % (vr(P + 2 * j, 2), vr(P + 2 * j, 2), vr(Q + 2 * j, 2)))
            for j in range(4): o.append("v_cvt_pk_bf16_f32 v%d, v%d, v%d" % (O + j, P + 2 * j, P + 2 * j + 1))
            o.append(("s_add_u32 s78, s84, %d" % (b * 86 * 1024), "buffer_store_dwordx4 %s, v12, %s, s78 offen offset:%d sc1" % (vr(O, 4), sWS, a * 1024)))
            seq.append(o)
        e(merge(seq[0], seq[1]))
        e(skip + ":")
    vm.op("h")
    e(stamp("gelu"))
    e(lds_signal(C_G, 14), wd_setup())
    def wd_reads(jj, dst):
        o = []
        for dt in range(2):
            for q in range(2):
                a = wd_loc(2 * jj) + 1024 * q
                o.append("ds_read_b64_tr_b16 %s, v%d offset:%d" % (vr(dst + 4 * dt + 2 * q, 2), WB + 2 * (a >> 16) + dt, a & 0xffff))
        return o
    PRE = 96
    e(lds_wait(C_B1, 4, 14))
    e(stamp("b1ok"))
    for jj in range(10): e(wd_reads(jj, PRE + 8 * jj))
    A2 = 64; HB = 176; NH = 16; WF = (PRE, PRE + 8)
    e("s_lshl_b32 s74, %s, 1" % I2, "s_add_u32 s74, s74, %s" % WM, "s_mul_i32 s74, s74, 86", "s_add_u32 s74, s74, %s" % WN, "s_lshl_b32 s83, s74, 10",
      "s_add_u32 s83, s83, %d" % WS_H)
    e("v_and_b32 v28, 31, v1", "v_mul_u32_u24 v28, 272, v28", "v_lshrrev_b32 v29, 5, v1", "v_lshl_add_u32 v28, v29, 4, v28")
    e("s_mul_i32 s74, %s, %d" % (WN, 64 * 272), "s_mul_i32 s75, %s, %d" % (WM, 32 * 272), "s_add_u32 s74, s74, s75", "s_add_u32 s74, s74, %d" % PB, "v_add_u32 v28, s74, v28")
    e("s_lshl_b32 s81, %s, 1" % MT, "s_add_u32 s81, s81, %s" % WM, "s_lshl_b32 s81, s81, 5", "s_lshl_b32 s75, %s, 1" % FT, "s_add_u32 s81, s81, s75",
      "s_add_u32 s81, s81, %s" % WN, "s_lshl_b32 s81, s81, 7", "s_add_u32 s81, s81, %d" % WS_F4, "v_mov_b32 v30, %s" % TAG)
    e("v_min_u32 v31, 28, v1", "v_lshlrev_b32 v31, 7, v31", "s_lshl_b32 s82, %s, 12" % I2, "s_add_u32 s82, s82, %d" % WS_F4)
    e("s_waitcnt lgkmcnt(0)")
    e(lds_signal(C_A2, 14), lds_wait(C_A2, 4, 14))
    d2a = wd_dma(60, 0, 10, VM(), "x", WDV)
    N2 = 5
    e(d2a[:N2])
    for i in range(N2): vm.op("2a")
    e(vm.wait("h"))
    e("s_mov_b64 exec, 1", "buffer_store_dword v30, off, %s, s81 sc1" % sWS, "s_mov_b64 exec, -1"); vm.op("f4")
    e(stamp("hack"))
    e("s_setprio 0")
    e(d2a[N2:])
    e(final_xload(vm, XF, XFA))
    pl = ["buffer_load_dword v15, v31, %s, s82 offen sc1" % sWS]
    e(pl, vm.all())
    e(lds_signal(C_A3, 20))
    e(check_retry(pl, [15], 16))
    e(stamp("hpoll"))
    def hload(jj):
        vm.op("h%d" % jj)
        o = []
        if jj % 2 == 0 and jj > 0: o.append("s_add_u32 s83, s83, 4096")
        o.append("buffer_load_dwordx4 %s, v12, %s, s83 offen offset:%d sc1" % (vr(HB + 4 * (jj % NH), 4), sWS, 2048 * (jj & 1)))
        return o
    PD = 12
    for jj in range(PD): e(hload(jj))
    e(lds_wait(C_B2, 4, 20), lds_wait(C_A3, 4, 20))
    for jj in range(43):
        if jj == 18: e(lds_signal(C_P, 20))
        if jj == 39: e(lds_wait(C_B3, 4, 20), stamp("b3ok"))
        if jj == 31: e(lds_signal(C_A4, 20))
        wf = PRE + 8 * jj if jj < 10 else WF[jj & 1]
        e(vm.wait("h%d" % jj).replace("s_waitcnt", "s_waitcnt lgkmcnt(0)") if jj >= 10 else vm.wait("h%d" % jj))
        if jj == 1: e(stamp("h0"))
        if jj == 36: e(stamp("h36"))
        hb_ = vr(HB + 4 * (jj % NH), 4)
        e("v_mfma_f32_32x32x16_bf16 %s, %s, %s, %s" % (vr(A2, 16), vr(wf, 4), hb_, "0" if jj == 0 else vr(A2, 16)))
        if jj + 1 < 43 and jj + 1 >= 10: e(wd_reads(jj + 1, WF[(jj + 1) & 1]))
        if jj + PD < 43: e(hload(jj + PD))
        e("v_mfma_f32_32x32x16_bf16 %s, %s, %s, %s" % (vr(A2 + 16, 16), vr(wf + 4, 4), hb_, "0" if jj == 0 else vr(A2 + 16, 16)))
    e(stamp("g2end"))
    e(lds_wait(C_A4, 4, 20))
    for dt in range(2):
        for jj in range(4): e("ds_write_b128 v28, %s offset:%d" % (vr(A2 + 16 * dt + 4 * jj, 4), 128 * dt + 32 * jj))
    e("s_waitcnt lgkmcnt(0)")
    e("s_branch L_final")
    e(SLOW)

def b_path():
    vm = VM()
    vm.op("ln")
    for i in range(5): vm.op("st0")
    WDV, VK, VU = 7, 8, 9
    e(wd_voff(WDV, 210))
    e("v_lshlrev_b32 v210, 2, v1", "v_add_u32 v210, %d, v210" % CNT_BASE, "v_mov_b32 v211, 0", "ds_write_b32 v210, v211")
    e("v_and_b32 v210, 1, v1", "v_mul_u32_u24 v210, %d, v210" % R_CP, "v_bfe_u32 v212, v1, 1, 3", "v_sub_u32 v212, 7, v212", "v_lshl_add_u32 v210, v212, 6, v210",
      "v_lshrrev_b32 v212, 4, v1", "v_lshl_add_u32 v210, v212, 4, v210", "s_mul_i32 s74, %s, %d" % (WM, 2 * R_CP), "s_add_u32 s74, s74, %d" % R_BASE, "s_lshl_b32 s75, %s, 8" % WN, "s_add_u32 s74, s74, s75", "v_add_u32 v%d, s74, v210" % VK)
    e("v_bfe_u32 v210, v1, 2, 2", "v_add_u32 v210, v210, v212", "v_lshlrev_b32 v210, 4, v210", "v_and_b32 v213, 3, v1", "v_lshl_add_u32 v210, v213, 2, v210",
      "v_and_b32 v213, 1, v1", "v_mul_u32_u24 v213, %d, v213" % (U_CP - 4), "v_sub_u32 v210, v210, v213",
      "s_mul_i32 s74, %s, %d" % (WM, 2 * U_CP), "s_add_u32 s74, s74, %d" % (U_BASE + U_CP), "s_add_u32 s74, s74, s75", "v_add_u32 v%d, s74, v210" % VU)
    LNA = 10
    e("v_bfe_u32 v210, v1, 2, 2", "v_mul_u32_u24 v210, %d, v210" % LNP, "v_lshrrev_b32 v211, 4, v1", "v_lshl_add_u32 v210, v211, 5, v210",
      "v_and_b32 v211, 3, v1", "v_lshl_add_u32 v210, v211, 3, v210", "s_lshl_b32 s74, %s, 8" % W, "s_add_u32 s74, s74, %d" % LNS, "v_add_u32 v%d, s74, v210" % LNA)
    T8, T16, TM, RD, RC, RB = 84, 85, 86, 87, 88, 89
    e("s_mul_i32 s74, %s, 6144" % WM, "s_add_u32 s74, s74, %d" % T_BASE)
    e("v_lshl_add_u32 v%d, v1, 3, s74" % T8, "v_add_u32 v%d, s74, v12" % T16, "v_add_u32 v%d, -4, v%d" % (TM, T16))
    e("s_mul_i32 s74, %s, %d" % (W, R_CP), "s_add_u32 s74, s74, %d" % R_BASE, "v_sub_u32 v213, 63, v1")
    e("v_lshl_add_u32 v%d, v213, 5, s74" % RD, "v_lshl_add_u32 v%d, v213, 4, s74" % RC, "v_lshl_add_u32 v%d, v213, 3, s74" % RB)
    e("s_cmp_eq_u32 %s, 1" % WN, "s_cselect_b64 s[72:73], -1, 0")
    e(vm.wait("ln").replace("s_waitcnt", "s_waitcnt lgkmcnt(0)"), stamp("lnld"))
    e("s_lshl_b32 s74, %s, 4" % WM, "s_lshr_b32 s14, s14, s74", "v_mov_b32 v28, s14")
    d1 = stage_dma(1, VM())
    ln = flat(ln_ops(VM()))
    e(merge(ln[:-1], [tuple(d1[:6])] + d1[6:13]))
    for i in range(7): vm.op("st1")
    e(ln[-1]); vm.op("stats")
    e(stamp("lndone"))
    e(vm.wait("st0").replace("s_waitcnt", "s_waitcnt lgkmcnt(0)"))
    e(stamp("st0land"))
    def endit(st, lg=False):
        w = vm.wait("st%d" % st)
        if lg: w = w.replace("s_waitcnt", "s_waitcnt lgkmcnt(0)")
        e(stamp("iss%d" % (st + 1)), w, stamp("land%d" % st), "s_barrier")
    if "--prioB" in sys.argv: e("s_setprio 1")
    e("s_barrier")
    for rnd in range(2):
        for q in range(2): e("ds_read_b64_tr_b16 %s, v%d offset:%d" % (vr(20 + 4 * rnd + 2 * q, 2), LNA, 4 * q * LNP + 128 * rnd))
    e(d1[13:])
    for i in range(3): vm.op("st1")
    e(stage_dma(2, vm))
    e("s_lshl_b32 s74, %s, 13" % G, "s_lshl_b32 s75, %s, 11" % W, "s_add_u32 s74, s74, s75", "s_add_u32 s74, s74, %d" % WS_XT)
    e("s_waitcnt lgkmcnt(0)")
    for rnd in range(2):
        e("buffer_store_dwordx4 %s, v12, %s, s74 offen offset:%d sc1" % (vr(20 + 4 * rnd, 4), sWS, 1024 * rnd)); vm.op("xt")
    endit(1)
    rd = []
    for t in range(2):
        b = 32 + 16 * t; o = 3072 * t
        rd += ["ds_read_b64 %s, v%d offset:%d" % (vr(b, 2), T8, o + 2048), "ds_read_b32 v%d, v%d offset:%d" % (b + 2, T8, o + 2056),
               "ds_read_b32 v%d, v%d offset:%d" % (b + 3, T8, o + 1020),
               "ds_read_b64 %s, v%d offset:%d" % (vr(b + 4, 2), T8, o + 1536), "ds_read_b32 v%d, v%d offset:%d" % (b + 6, T8, o + 1544),
               "ds_read_b32 v%d, v%d offset:%d" % (b + 7, TM, o),
               "ds_read_b64 %s, v%d offset:%d" % (vr(b + 8, 2), T8, o + 1024), "ds_read_b32 v%d, v%d offset:%d" % (b + 10, T8, o + 1032),
               "ds_read_b128 %s, v%d offset:%d" % (vr(b + 12, 4), T16, o)]
    e(merge(stage_dma(3, vm), rd))
    endit(2, True)
    S = "s[72:73]"
    cv = lambda d, lo, hi: "v_cvt_pk_bf16_f32 v%d, v%d, v%d" % (d, lo, hi)
    x1 = ["v_cmp_eq_u32 vcc, 0, v1", "v_lshlrev_b32 v28, 16, v28"]
    x1 += ["v_add_f32 v%d, v%d, v%d" % (32 + k, 32 + k, 48 + k) for k in (0, 1, 2, 3, 4, 5, 6, 7, 8, 9, 10, 12, 13, 14, 15)]
    x1 += ["v_cndmask_b32 v28, 0, v28, vcc", "v_cndmask_b32 v35, v40, v35, vcc", "v_cndmask_b32 v39, v39, 0, vcc", "v_add_f32 v44, v44, v28"]
    x1 += ["v_cndmask_b32 v48, v33, v34, %s" % S, "v_cndmask_b32 v49, v32, v33, %s" % S,
           cv(64, 34, 34), cv(65, 34, 48), cv(66, 33, 33), cv(67, 33, 33), cv(68, 33, 33), cv(69, 49, 32), cv(70, 32, 32), cv(71, 32, 32)]
    e(merge(stage_dma(4, vm), x1))
    endit(3)
    x2 = ["v_cndmask_b32 v48, v37, v38, %s" % S, "v_cndmask_b32 v49, v36, v37, %s" % S, cv(72, 38, 48), cv(73, 37, 37), cv(74, 49, 36), cv(75, 36, 36),
          "v_cndmask_b32 v48, v41, v42, %s" % S, "v_cndmask_b32 v49, v40, v41, %s" % S, "v_cndmask_b32 v50, v35, v40, %s" % S, cv(76, 48, 49), cv(77, 40, 50),
          "v_cndmask_b32 v48, v46, v47, %s" % S, "v_cndmask_b32 v49, v45, v46, %s" % S, "v_cndmask_b32 v50, v44, v45, %s" % S, "v_cndmask_b32 v51, v39, v44, %s" % S,
          cv(78, 48, 49), cv(79, 50, 51), "v_mov_b32 v80, 0", "v_mov_b32 v81, 0",
          "ds_write_b128 v%d, v[64:67]" % RD, "ds_write_b128 v%d, v[68:71] offset:16" % RD, "ds_write_b128 v%d, v[72:75] offset:2048" % RC,
          "ds_write_b64 v%d, v[76:77] offset:3072" % RB, "ds_write_b64 v%d, v[78:79] offset:3584" % RB, "ds_write_b64 v%d, v[80:81] offset:4096" % RB]
    e("s_lshl_b32 s74, %s, 2" % G, "s_add_u32 s74, s74, %d" % WS_F3, "s_cmp_eq_u32 %s, 0" % W, "s_cselect_b32 s74, s74, 0x7ffffff0", "v_mov_b32 v16, %s" % TAG)
    e("s_mov_b64 exec, 1", "buffer_store_dword v16, off, %s, s74 sc1" % sWS, "s_mov_b64 exec, -1"); vm.op("f3s")
    e(merge(stage_dma(5, vm), x2[:19]))
    endit(4)
    UG, UL = 90, 91
    x3 = ["v_lshrrev_b32 v16, 1, v1", "v_and_b32 v17, 1, v1", "v_lshlrev_b32 v%d, 13, v16" % UG, "v_lshl_add_u32 v%d, v17, 4, v%d" % (UG, UG),
          "v_mul_u32_u24 v17, %d, v17" % (2 * U_CP), "v_lshl_add_u32 v17, v16, 4, v17", "s_lshl_b32 s74, %s, 10" % W, "s_add_u32 s74, s74, %d" % U_BASE, "v_add_u32 v%d, s74, v17" % UL,
          "s_mul_i32 s74, %s, %d" % (W, U_CP), "s_add_u32 s74, s74, %d" % U_BASE, "s_sub_u32 s75, 15, %s" % WN, "v_min_u32 v92, s75, v1", "v_lshl_add_u32 v92, v92, 2, s74",
          "ds_write_b32 v92, v80"]
    x3 += ["v_mov_b32 v%d, 0" % (32 + i) for i in range(32)]
    e(merge(stage_dma(6, vm), x3[:14]))
    endit(5)
    e(merge(stage_dma(7, vm), x3[15:]))
    endit(6, True)
    e("s_mov_b32 s82, %d" % WS_F3)
    pl = ["buffer_load_dwordx4 v[20:23], v12, %s, s82 offen sc1" % sWS]
    e(pl); vm.op("f3")
    e(wd_setup(), wd_dma(0, 0, 4, vm, "1a", WDV))
    endit(7)
    e(stamp("b7"))
    e(vm.wait("f3"))
    e(check_retry(pl, [20, 21, 22, 23], 24))
    e(stamp("f3ok"))
    e("s_lshl_b32 s74, %s, 19" % W, "s_lshl_b32 s75, %s, 5" % CP, "s_add_u32 s74, s74, s75", "s_add_u32 s74, s74, %d" % WS_XT, "s_add_u32 s75, s74, 0x40000")
    e("buffer_load_dwordx4 v[20:23], v%d, %s, s74 offen sc1" % (UG, sWS)); vm.op("u")
    e("buffer_load_dwordx4 v[24:27], v%d, %s, s75 offen sc1" % (UG, sWS)); vm.op("u")
    e("s_or_b32 s74, s2, %s" % W, "s_cmp_eq_u32 s74, 0", "s_cselect_b32 s74, 0, 0x7ffffff0", "v_mov_b32 v16, %s" % TAG)
    e("s_mov_b64 exec, 1", "buffer_store_dword v16, off, %s, s74 sc1" % sWS, "s_mov_b64 exec, -1"); vm.op("eps")
    e(x2[19:], x3[14])
    e(wd_dma(0, 4, 6, vm, "1a", WDV))
    e(vm.wait("u"))
    for k in range(2):
        b = 20 + 4 * k
        e("ds_write_b128 v%d, %s offset:%d" % (UL, vr(b, 4), 64 + 512 * k))
        e("ds_write_b32 v%d, v%d offset:%d" % (UL, b, U_CP + 60 + 512 * k), "ds_write_b32 v%d, v%d offset:%d" % (UL, b + 1, U_CP + 64 + 512 * k),
          "ds_write_b32 v%d, v%d offset:%d" % (UL, b + 2, U_CP + 68 + 512 * k), "ds_write_b32 v%d, v%d offset:%d" % (UL, b + 3, U_CP + 72 + 512 * k))
    e("s_waitcnt lgkmcnt(0)")
    e(lds_signal(C_U, 16))
    e(stamp("uwr"))
    e(wd_dma(0, 10, 10, vm, "1b", WDV))
    e(vm.wait("1a"), lds_signal(C_B1, 16))
    e(lds_wait(C_A1, 4, 16))
    e("s_setprio 2")
    e(wd_dma(40, 0, 10, vm, "1c", WDV))
    e(stamp("iss1c"))
    e(lds_wait(C_U, 4, 16))
    CA = 32; FB = (64, 128)
    def reads(rho, buf):
        o = []
        for i in range(8):
            o.append("ds_read_b128 %s, v%d offset:%d" % (vr(buf + 4 * i, 4), VK, 512 * (7 - i) + 64 * rho))
            o.append("ds_read_b64 %s, v%d offset:%d" % (vr(buf + 32 + 4 * i, 2), VU, 512 * i + 64 * rho))
            o.append("ds_read_b64 %s, v%d offset:%d" % (vr(buf + 34 + 4 * i, 2), VU, 512 * i + 64 * rho + 8))
        return o
    e(reads(0, FB[0]))
    e(lds_wait(C_G, 4, 16))
    e(stamp("cvgo"))
    e("s_mov_b32 s79, 0", "L_cv:")
    for rho in range(2):
        buf = FB[rho]
        pairs = sorted([(sg, t) for t in range(8) for sg in range(t + 1)])
        mf = ["v_mfma_f32_16x16x32_bf16 %s, %s, %s, %s" % (vr(CA + 4 * t, 4), vr(buf + 4 * (t - sg), 4), vr(buf + 32 + 4 * sg, 4), vr(CA + 4 * t, 4)) for sg, t in pairs]
        e("s_waitcnt lgkmcnt(0)")
        fill = reads(rho + 1, FB[1 - rho])
        if rho == 1: fill += ["v_add_u32 v%d, 128, v%d" % (VK, VK), "v_add_u32 v%d, 128, v%d" % (VU, VU)]
        e(interleave(mf, fill, per=1))
    e(vm.all(), lds_signal(C_B2, 16))
    e("s_add_u32 s79, s79, 1", "s_cmp_lt_u32 s79, 2", "s_cbranch_scc1 L_cv")
    e(stamp("conv"))
    e("s_waitcnt lgkmcnt(0)", lds_signal(C_CV, 18))
    e("s_lshl_b32 s74, %s, 12" % W, "s_add_u32 s74, s74, %d" % R_BASE, "v_add_u32 v24, s74, v12", "v_xor_b32 v25, 4096, v12", "s_xor_b32 s75, %s, 1" % W,
      "s_lshl_b32 s75, s75, 12", "s_add_u32 s75, s75, %d" % R_BASE, "v_add_u32 v25, s75, v12")
    e(lds_wait(C_CV, 4, 18))
    lo, dn = newlab("rlo"), newlab("rdn")
    e("s_cmp_eq_u32 %s, 0" % WN, "s_cbranch_scc1 " + lo)
    for k in range(4): e("ds_write_b128 v24, %s offset:%d" % (vr(CA + 4 * k, 4), 1024 * k))
    e("s_waitcnt lgkmcnt(0)")
    for k in range(16): e("v_mov_b32 v%d, v%d" % (CA + k, CA + 16 + k))
    e("s_branch " + dn, lo + ":")
    for k in range(4): e("ds_write_b128 v24, %s offset:%d" % (vr(CA + 16 + 4 * k, 4), 1024 * k))
    e(dn + ":")
    e("s_waitcnt lgkmcnt(0)", lds_signal(C_X, 18))
    e(lds_wait(C_X, 4, 18))
    for k in range(4): e("ds_read_b128 %s, v25 offset:%d" % (vr(64 + 4 * k, 4), 1024 * k))
    e("v_lshrrev_b32 v16, 4, v1", "v_lshlrev_b32 v16, 17, v16", "v_and_b32 v17, 15, v1", "v_lshl_add_u32 v16, v17, 4, v16")
    e("s_lshl_b32 s74, %s, 1" % CP, "s_add_u32 s74, s74, %s" % WM, "s_lshl_b32 s74, s74, 8", "s_lshl_b32 s75, %s, 21" % WN, "s_add_u32 s74, s74, s75", "s_add_u32 s74, s74, %d" % WS_Z)
    for k in range(4): e("v_mov_b32 v%d, %s" % (50 + 4 * k, TAG), "v_mov_b32 v%d, %s" % (51 + 4 * k, TAG))
    e("s_waitcnt lgkmcnt(0)")
    for k in range(8): e("v_pk_add_f32 %s, %s, %s" % (vr(CA + 2 * k, 2), vr(CA + 2 * k, 2), vr(64 + 2 * k, 2)))
    for k in range(4):
        e(cv(48 + 4 * k, CA + 4 * k, CA + 4 * k + 1), cv(49 + 4 * k, CA + 4 * k + 2, CA + 4 * k + 3))
        if k: e("s_add_u32 s74, s74, 0x80000")
        e("buffer_store_dwordx4 %s, v16, %s, s74 offen sc1" % (vr(48 + 4 * k, 4), sWS)); vm.op("z")
    e(stamp("zst"))
    e(wd_setup(), wd_dma(80, 0, 3, vm, "2b", WDV))
    e(final_xload(vm, XF, XFA))
    e(vm.all(), lds_signal(C_B3, 16))
    e(lds_wait(C_P, 4, 16))
    e("s_lshl_b32 s74, %s, 17" % I2, "s_lshl_b32 s75, %s, 14" % J2, "s_add_u32 s74, s74, s75", "s_lshl_b32 s75, %s, 12" % W, "s_add_u32 s74, s74, s75",
      "s_add_u32 s82, s74, %d" % WS_Z)
    pl = ["buffer_load_dwordx4 %s, v12, %s, s82 offen offset:%d sc1" % (vr(64 + 4 * q, 4), sWS, 1024 * q) for q in range(4)]
    e(pl)
    e("s_lshl_b32 s75, %s, 11" % W, "v_lshrrev_b32 v16, 4, v1", "v_lshlrev_b32 v16, 7, v16", "v_and_b32 v17, 15, v1", "v_lshl_add_u32 v16, v17, 2, v16", "v_add_u32 v16, s75, v16",
      "v_add_u32 v16, %d, v16" % Z_LDS, "v_add_u32 v17, 1024, v16")
    e(vm.all())
    e(check_retry(pl, [66, 70, 74, 78], 18))
    e(stamp("zpoll"))
    for q in range(4): e("ds_write2_b32 v%d, v%d, v%d offset0:%d offset1:%d" % (16 + (q >> 1), 64 + 4 * q, 65 + 4 * q, 128 * (q & 1), 128 * (q & 1) + 16))
    e("v_bfe_u32 v14, v1, 2, 2", "v_lshlrev_b32 v14, 7, v14", "v_lshrrev_b32 v15, 4, v1", "v_lshl_add_u32 v14, v15, 5, v14", "v_and_b32 v15, 3, v1", "v_lshl_add_u32 v14, v15, 3, v14",
      "s_add_u32 s75, s75, %d" % Z_LDS, "v_add_u32 v14, s75, v14")
    e("v_mul_u32_u24 v15, 272, v1", "s_lshl_b32 s75, %s, 6" % W, "s_add_u32 s75, s75, %d" % P2, "v_add_u32 v15, s75, v15")
    e("s_waitcnt lgkmcnt(0)")
    for q in range(4): e("ds_read_b64_tr_b16 %s, v14 offset:%d" % (vr(20 + 2 * q, 2), 512 * q))
    e(lds_wait(C_B3, 4, 40))
    for k in range(8): e("v_lshlrev_b32 v%d, 16, v%d" % (32 + 2 * k, 20 + k), "v_and_b32 v%d, 0xffff0000, v%d" % (33 + 2 * k, 20 + k))
    for q in range(4): e("ds_write_b128 v15, %s offset:%d" % (vr(32 + 4 * q, 4), 16 * q))
    e("s_waitcnt lgkmcnt(0)")

def final():
    e("L_final:")
    e("v_lshrrev_b32 v14, 3, v0", "v_mul_u32_u24 v14, 272, v14", "v_and_b32 v15, 7, v0", "v_lshl_add_u32 v14, v15, 5, v14", "v_add_u32 v15, %d, v14" % P2, "v_add_u32 v14, %d, v14" % PB)
    for j in range(4): e("v_lshlrev_b32 v%d, 16, v%d" % (32 + 2 * j, XF + j), "v_and_b32 v%d, 0xffff0000, v%d" % (33 + 2 * j, XF + j))
    e("s_barrier")
    e(stamp("fin"))
    e("ds_read_b128 v[16:19], v14", "ds_read_b128 v[20:23], v14 offset:16",
      "ds_read_b128 v[24:27], v14 offset:%d" % (64 * 272), "ds_read_b128 v[28:31], v14 offset:%d" % (64 * 272 + 16),
      "ds_read_b128 v[40:43], v15", "ds_read_b128 v[44:47], v15 offset:16")
    e("s_waitcnt lgkmcnt(2)")
    for j in range(4): e("v_pk_add_f32 %s, %s, %s" % (vr(16 + 2 * j, 2), vr(16 + 2 * j, 2), vr(24 + 2 * j, 2)))
    e("s_waitcnt lgkmcnt(0)")
    for j in range(4): e("v_pk_add_f32 %s, %s, %s" % (vr(32 + 2 * j, 2), vr(32 + 2 * j, 2), vr(40 + 2 * j, 2)))
    for j in range(4): e("v_pk_add_f32 %s, %s, %s" % (vr(16 + 2 * j, 2), vr(16 + 2 * j, 2), vr(32 + 2 * j, 2)))
    for j in range(4): e("v_cvt_pk_bf16_f32 v%d, v%d, v%d" % (24 + j, 16 + 2 * j, 17 + 2 * j))
    e("global_store_dwordx4 v%d, v[24:27], s[38:39]" % XFA)
    if DEBUG:
        e("s_waitcnt vmcnt(0)")
        e(stamp("end"))
        e("s_memrealtime s[96:97]", "s_waitcnt lgkmcnt(0)", "v_writelane_b32 v255, s96, 63", "v_writelane_b32 v255, s98, 62")
        e("s_lshl_b32 s74, s2, 11", "s_add_u32 s74, s74, %d" % WS_DBG, "v_lshlrev_b32 v14, 2, v0")
        e("buffer_store_dword v255, v14, %s, s74 offen" % sWS)
        if "--dbgout" in sys.argv:
            e("s_not_b32 s98, s98", "v_mov_b32 v20, s98", "v_mov_b32 v21, s96", "v_mov_b32 v22, 0")
            e("s_cmp_lg_u32 %s, 0" % WAVE, "s_cbranch_scc1 L_end")
            e("s_mov_b64 exec, 1")
            e("global_atomic_umax v22, v20, s[40:41]", "global_atomic_umax v22, v21, s[40:41] offset:4")
            e("s_mov_b64 exec, -1")
            e("s_cmp_lg_u32 s2, 40", "s_cbranch_scc1 L_end")
            sel = ["lnld", "kgen", "st0", "st2", "st6", "st7", "loopend", "gelu", "hack", "hpoll", "b9", "b10"]
            e("v_readlane_b32 s74, v255, 0")
            for n, nm in enumerate(sel + ["fin", "end"]):
                k = {"fin": 60, "end": 61}.get(nm) or STAMPS["A"].index(nm) + 1
                e("v_readlane_b32 s75, v255, %d" % k, "s_sub_u32 s75, s75, s74", "v_mov_b32 v20, s75", "s_mov_b64 exec, 1",
                  "global_store_dword v22, v20, s[40:41] offset:%d" % (8 + 4 * n), "s_mov_b64 exec, -1")
    if "--double" in sys.argv:
        e("s_waitcnt vmcnt(0)", "s_memrealtime s[96:97]", "s_waitcnt lgkmcnt(0)", "s_sub_u32 s74, s96, s98", "s_min_u32 s74, s74, 20000",
          "L_spin:", "s_memrealtime s[92:93]", "s_waitcnt lgkmcnt(0)", "s_sub_u32 s75, s92, s96", "s_cmp_lt_u32 s75, s74", "s_cbranch_scc1 L_spin")
    if PROBE:
        e("s_waitcnt vmcnt(0)", stamp("end"), "s_cmp_ge_u32 %s, 4" % WAVE, "s_cbranch_scc1 L_end", "s_memrealtime s[96:97]", "s_waitcnt lgkmcnt(0)", "s_sub_u32 s74, s99, s98", "s_min_u32 s74, s74, 20000",
          "L_spin:", "s_memrealtime s[92:93]", "s_waitcnt lgkmcnt(0)", "s_sub_u32 s75, s92, s96", "s_cmp_lt_u32 s75, s74", "s_cbranch_scc1 L_spin")
    e("L_end:", "s_endpgm")

entry()
prologue()
ROLE[0] = "A"
vm = a_p0()
a_main(vm)
ROLE[0] = "B"
e("L_B:")
b_path()
ROLE[0] = "AB"
final()
body, npad = pad_hazards(L)

hdr = open("cdna_kernels/%s.s.ref" % NAME).read().split("; Override launch")[0]
out = hdr + "; @launch grid=(256,1,1) block=(512,1,1) lds=163840\n"
out += '.amdgcn_target "amdgcn-amd-amdhsa--gfx950"\n.text\n.globl %s_kernel\n.p2align 8\n.type %s_kernel,@function\n%s_kernel:\n' % (NAME, NAME, NAME)
out += "\n".join(body) + "\n"
out += '''.section .rodata,"a"
.p2align 6
.amdhsa_kernel %s_kernel
  .amdhsa_next_free_vgpr 256
  .amdhsa_next_free_sgpr 102
  .amdhsa_accum_offset 256
  .amdhsa_group_segment_fixed_size 0
  .amdhsa_kernarg_size 112
  .amdhsa_user_sgpr_count 2
  .amdhsa_user_sgpr_kernarg_segment_ptr 1
  .amdhsa_system_sgpr_workgroup_id_x 1
.end_amdhsa_kernel
''' % NAME
path = [a for a in sys.argv[1:] if not a.startswith("--")]
path = path[0] if path else "cdna_kernels/%s.s" % NAME
open(path, "w").write(out)
print("wrote", path, "lines", len(body), "nops inserted", npad)
if DEBUG:
    import json
    json.dump(STAMPS, open(path[:-2] + ".json", "w"))
```

```python
import sys, struct, math
from asmlib import *

NAME = "parallel_sum__ssm_conv_s4d__geglu_ffn__prompt"
DEBUG = "--stamps" in sys.argv
NCLS = int(([a[6:] for a in sys.argv if a.startswith("--cls=")] + ["8"])[0])
NS = 8 // NCLS

def f2u(x): return struct.unpack("<I", struct.pack("<f", x))[0]
def hx(x): return "0x%08x" % (x & 0xffffffff)
LOG2E = hx(f2u(1.4426950408889634))
INV2PI = hx(f2u(0.15915494309189535))
GK1 = -2.0 * math.sqrt(2.0 / math.pi) * 1.4426950408889634
GK2 = GK1 * 0.044715

WS_EPOCH = 0
WS_F3 = 0x1000
WS_ST = 0x2000
WS_CS = 0x8000
WS_F4 = 0x50000
WS_F5 = 0x70000
WS_DBG = 0x80000
WS_XT = 0x100000
WS_Z = 0x300000
WS_H = 0x700000
WS_SIZE = 0x1000000
SLOT = 41024
XOFF, WOFF, WMAT = 0, 16384, 12320
RB = 40768
R_CP = 4640
U_CP = 4224
U_BASE = 0
R_BASE = RB - 4 * R_CP
T_BASE = 16
LNS = T_BASE + 4 * 3072
LNP = 1088
CNT_BASE = LNS + 8 * LNP
C_X, C_B1, C_A2, C_U, C_CV, C_G, C_B2, C_A3, C_P, C_A1, C_B3, C_A4 = [CNT_BASE + 16 * i for i in range(12)]
E_W = 53 * 272
E_BASE = RB + SLOT - 4 * E_W
assert E_BASE >= R_BASE and CNT_BASE + 256 <= R_BASE and 4 * U_CP <= CNT_BASE and RB + 3 * SLOT == 163840
W2B, Z_LDS, P2, PB = 0, 12288, R_BASE, RB + 40960
def slot_of(st): return (st + 1) % 3
SPIN = 20000

sX, sWG, sWU, sWD, sWS = "s[44:47]", "s[48:51]", "s[52:55]", "s[56:59]", "s[60:63]"
XCD, IDX, MT, FT, WAVE, TAG, W, G = "s64", "s65", "s66", "s67", "s68", "s69", "s70", "s71"
KS, I2, J2, CP, CNT = "s90", "s91", "s92", "s93", "s94"
WM, WN = "s88", "s89"
W4 = "s100"

L = []
def e(*xs):
    for x in xs:
        if isinstance(x, (list, tuple)): e(*x)
        else: L.append(x)

def vr(a, n): return "v[%d:%d]" % (a, a + n - 1)

class VM:
    def __init__(self): self.q = []
    def op(self, lab): self.q.append(lab)
    def wait(self, lab):
        idx = max(i for i, x in enumerate(self.q) if x == lab)
        n = len(self.q) - 1 - idx
        self.q = self.q[idx + 1:]
        assert n <= 63
        return "s_waitcnt vmcnt(%d)" % n
    def all(self):
        self.q = []
        return "s_waitcnt vmcnt(0)"

STAMPS = {"A": [], "B": []}
ROLE = ["AB"]
PROBE = ([a[8:].split(",") for a in sys.argv if a.startswith("--probe=")] + [None])[0]
def stamp(name):
    if PROBE:
        if ROLE[0] == "B" or name not in PROBE: return []
        return ["s_memrealtime s[96:97]", "s_waitcnt lgkmcnt(0)", "s_mov_b32 s%d, s96" % (98 if name == PROBE[0] else 99)]
    if not DEBUG: return []
    if ROLE[0] == "AB":
        k = {"start": 0, "fin": 60, "end": 61}[name]
    else:
        lst = STAMPS[ROLE[0]]
        if name not in lst: lst.append(name)
        k = lst.index(name) + 1
        assert k < 60
    o = ["s_memtime s[96:97]", "s_waitcnt lgkmcnt(0)", "v_writelane_b32 v255, s96, %d" % k]
    if "--rt" in sys.argv: o = ["s_memrealtime s[96:97]"] + o[1:]
    return o

def tag_from(v):
    return ["v_readfirstlane_b32 %s, %s" % (TAG, v), "s_mul_i32 %s, %s, 0x9E3779B1" % (TAG, TAG),
            "s_add_u32 %s, %s, 0x7F4A7C15" % (TAG, TAG)]

lab_n = [0]
def newlab(p):
    lab_n[0] += 1
    return "L_%s_%d" % (p, lab_n[0])

def check_retry(loads, tagregs, tmp):
    top, done = newlab("chk"), newlab("ok")
    o = ["s_mov_b32 %s, %d" % (CNT, SPIN), top + ":"]
    o.append("v_xor_b32 v%d, %s, v%d" % (tmp, TAG, tagregs[0]))
    for r in tagregs[1:]:
        o.append("v_xor_b32 v%d, %s, v%d" % (tmp + 1, TAG, r))
        o.append("v_or_b32 v%d, v%d, v%d" % (tmp, tmp, tmp + 1))
    o.append("v_cmp_ne_u32 vcc, 0, v%d" % tmp)
    o.append("s_nop 1")
    o.append("s_cbranch_vccz " + done)
    o.append("s_sub_u32 %s, %s, 1" % (CNT, CNT))
    o.append("s_cbranch_scc1 " + done)
    o.append("s_sleep 1")
    o += loads
    o.append("s_waitcnt vmcnt(0)")
    o.append("s_branch " + top)
    o.append(done + ":")
    return o

def lds_signal(addr, t):
    return ["v_mov_b32 v%d, %s" % (t, W4), "v_mov_b32 v%d, 1" % (t + 1), "ds_write_b32 v%d, v%d offset:%d" % (t, t + 1, addr)]

def lds_wait(addr, target, t):
    top, done = newlab("lw"), newlab("lwd")
    q = t + 2
    return ["v_mov_b32 v%d, 0" % t, "s_mov_b32 %s, 0x400000" % CNT, top + ":", "ds_read_b128 %s, v%d offset:%d" % (vr(q, 4), t, addr), "s_waitcnt lgkmcnt(0)",
            "v_and_b32 v%d, v%d, v%d" % (q, q, q + 1), "v_and_b32 v%d, v%d, v%d" % (q + 2, q + 2, q + 3), "v_and_b32 v%d, v%d, v%d" % (q, q, q + 2),
            "v_readfirstlane_b32 s95, v%d" % q, "s_cmp_lg_u32 s95, 0", "s_cbranch_scc1 " + done,
            "s_sleep 1", "s_sub_u32 %s, %s, 1" % (CNT, CNT), "s_cbranch_scc0 " + top, done + ":"]

def flat(xs):
    o = []
    for x in xs:
        if isinstance(x, list): o += flat(x)
        else: o.append(x)
    return o

def merge(a, b):
    a, b = flat(a), flat(b)
    o = []; i = j = 0
    while i < len(a) or j < len(b):
        if j >= len(b) or (i < len(a) and i * len(b) <= j * len(a)): o.append(a[i]); i += 1
        else: o.append(b[j]); j += 1
    return o

def entry():
    e("s_load_dwordx16 s[16:31], s[0:1], 0", "s_load_dwordx8 s[32:39], s[0:1], 64", "s_load_dwordx4 s[40:43], s[0:1], 96")
    e("s_cmp_ge_u32 s2, 256", "s_cbranch_scc1 L_end")
    e("s_getpc_b64 s[76:77]", "L_pc:", "s_lshr_b32 %s, s2, 3" % IDX, "v_and_b32 v2, 0x1c0, v0", "s_lshl_b32 s74, %s, 10" % IDX, "v_lshl_add_u32 v2, v2, 1, s74",
      "v_min_u32 v2, L_end-L_pc, v2", "global_load_dword v252, v2, s[76:77]")
    e("v_readfirstlane_b32 %s, v0" % WAVE)
    if DEBUG or "--double" in sys.argv or PROBE:
        e("v_mov_b32 v255, 0", "s_memrealtime s[98:99]")

def ids_early():
    e("v_and_b32 v1, 63, v0", "s_and_b32 %s, s2, 7" % XCD)
    e("s_and_b32 s74, s2, 1", "s_and_b32 s75, %s, 7" % IDX, "s_lshl3_add_u32 %s, s74, s75" % MT)
    e("s_lshr_b32 s74, %s, 1" % XCD, "s_lshr_b32 s75, s2, 6", "s_lshl2_add_u32 %s, s74, s75" % FT)
    e("s_bfe_u32 %s, %s, 0x20006" % (W, WAVE), "v_lshlrev_b32 v12, 4, v1")
    e("s_lshl_b32 s74, %s, 5" % XCD, "s_add_u32 %s, s74, %s" % (CP, IDX), "s_lshl_b32 s15, %s, 2" % CP, "v_mov_b32 v15, 0")
    if NCLS == 8: e("s_lshl1_add_u32 s74, %s, %s" % (FT, MT), "s_and_b32 %s, s74, 7" % KS)
    else: e("s_add_u32 s74, %s, %s" % (FT, MT), "s_and_b32 s74, s74, %d" % (NCLS - 1), "s_mul_i32 %s, s74, %d" % (KS, NS))
    e("s_cmp_eq_u32 %s, 15" % FT)
    e("s_cselect_b32 s87, %s, %s" % (MT, FT), "s_cselect_b32 s86, 0, %s" % KS, "s_cselect_b32 s46, 0, 0x200000")
    e("s_mov_b32 s47, 0x20000")

def ids_late():
    e("s_lshr_b32 %s, %s, 6" % (WAVE, WAVE))
    e("s_mov_b32 s59, s47", "s_mov_b32 s63, s47", "s_mov_b32 s58, 1409024", "s_mov_b32 s62, %d" % WS_SIZE)
    e("s_mov_b32 s60, s42", "s_mov_b32 s61, s43", "s_mov_b32 s56, s36", "s_mov_b32 s57, s37")
    e("s_and_b32 s75, %s, 3" % IDX, "s_lshl2_add_u32 %s, %s, s75" % (I2, XCD), "s_lshr_b32 %s, %s, 2" % (J2, IDX))
    e("s_lshr_b32 %s, %s, 1" % (WM, W), "s_and_b32 %s, %s, 1" % (WN, W), "s_lshl_b32 %s, %s, 2" % (W4, W))

def prologue():
    ids_early()
    d0 = stage_dma(0, VM())
    slot = RB + slot_of(0) * SLOT
    e("s_lshl2_add_u32 s74, %s, %s" % (CP, W), "s_lshl_b32 s74, s74, 7", "v_lshl_add_u32 v14, v1, 1, s74")
    e("s_lshl4_add_u32 %s, %s, %s" % (G, MT, FT), "s_lshl2_add_u32 s74, %s, %s" % (G, W), "s_lshl_b32 s74, s74, 11", "v_add_u32 v13, s74, v12")
    dma_setup_x()
    dma_setup_w()
    e(d0[:6])
    e("s_mov_b32 s51, s47", "s_mov_b32 s55, s47", "s_mov_b32 s11, s47", "s_mov_b32 s50, 1409024")
    e("s_cmp_ge_u32 %s, 256" % WAVE)
    e("s_waitcnt lgkmcnt(0)")
    e(stamp("start"))
    e("s_cbranch_scc1 L_B0")
    for i in range(4): e("global_load_ushort v%d, v14, s[%d:%d]" % (24 + i, 18 + 2 * i, 19 + 2 * i))
    e("s_load_dword s14, s[26:27], s15")
    e("s_branch L_j0", "L_B0:")
    e("global_load_dwordx4 v[16:19], v13, s[16:17]", "global_load_dwordx4 v[20:23], v13, s[16:17] offset:1024")
    e("s_load_dword s14, s[28:29], s15")
    e("L_j0:")
    e("global_load_dword v29, v15, s[42:43] sc1")
    e("s_cselect_b32 s74, 2048, 0", "s_cselect_b32 s75, %d, 0" % WMAT, "s_mov_b32 s44, s16", "s_mov_b32 s45, s17")
    e("s_add_u32 s76, s80, s74", "s_lshl3_add_u32 s78, s74, s78", "s_add_u32 m0, s76, %d" % slot, "s_add_u32 s77, s81, s75")
    e("buffer_load_dwordx4 v%d, %s, s78 offen lds" % (VX0, sX), "s_add_u32 s78, s78, 7168", "buffer_load_dwordx4 v%d, %s, s78 offen offset:1024 lds" % (VX1, sX))
    e("s_add_u32 s74, s36, %d" % (256 * 2752), "s_addc_u32 s75, s37, 0", "s_cmp_eq_u32 %s, 15" % FT)
    e("s_cselect_b64 s[48:49], s[36:37], s[32:33]", "s_cselect_b64 s[52:53], s[74:75], s[34:35]", "s_cselect_b32 s54, %d, s50" % (256 * 2752))
    e("s_add_u32 m0, s77, %d" % (slot + WOFF))
    e("s_cmp_ge_u32 %s, 256" % WAVE, "s_cselect_b64 s[8:9], s[52:53], s[48:49]", "s_cselect_b32 s10, s54, s50")
    for i in range(3): e("buffer_load_dwordx4 v%d, s[8:11], s79 offen offset:%d lds" % (VW + i, 1024 * i))
    ids_late()
    e("s_cmp_ge_u32 %s, 4" % WAVE, "s_cbranch_scc1 L_B")
    if "--tlb" in sys.argv:
        e("v_and_b32 v210, 15, v1", "s_cmp_eq_u32 %s, 1" % W, "s_cselect_b64 s[74:75], s[38:39], s[42:43]", "s_cselect_b32 s76, 17, 20",
          "s_cmp_eq_u32 %s, 2" % W, "s_cselect_b64 s[74:75], s[36:37], s[74:75]", "s_cselect_b32 s76, 16, s76", "v_lshlrev_b32 v210, s76, v210",
          "global_load_dword v253, v210, s[74:75] sc1")

XA, XA2, WA, WA2 = 2, 6, 10, 11
ACC, ONEACC, FR0, FR1, ONES = 64, 160, 208, 228, 248

def cmul(dst, a, w, t):
    return ["v_pk_mul_f32 %s, %s, %s op_sel:[0,0] op_sel_hi:[0,1]" % (vr(t, 2), vr(a, 2), vr(w, 2)),
            "v_pk_fma_f32 %s, %s, %s, %s op_sel:[1,1,0] op_sel_hi:[1,0,1] neg_lo:[1,0,0]" % (vr(dst, 2), vr(a, 2), vr(w, 2), vr(t, 2))]

def wave_sums(regs, sregs):
    o = []
    for m in ("row_shr:1", "row_shr:2", "row_shr:4", "row_shr:8"):
        for r in regs: o.append("v_add_f32_dpp v%d, v%d, v%d %s row_mask:0xf bank_mask:0xf" % (r, r, r, m))
    for r in regs: o.append("v_add_f32_dpp v%d, v%d, v%d row_bcast:15 row_mask:0xa bank_mask:0xf" % (r, r, r))
    for r in regs: o.append("v_add_f32_dpp v%d, v%d, v%d row_bcast:31 row_mask:0xc bank_mask:0xf" % (r, r, r))
    o += ["v_readlane_b32 %s, v%d, 63" % (sr, r) for r, sr in zip(regs, sregs)]
    return o

def ln_ops(vm):
    o = []
    F, D, T = 160, 176, 192
    for r in range(2):
        for j in range(4):
            o += ["v_lshlrev_b32 v%d, 16, v%d" % (F + 8 * r + 2 * j, 16 + 4 * r + j), "v_and_b32 v%d, 0xffff0000, v%d" % (F + 8 * r + 2 * j + 1, 16 + 4 * r + j)]
    o += ["v_readfirstlane_b32 s4, v%d" % F, "v_readfirstlane_b32 s6, v%d" % (F + 8)]
    for j in range(4):
        for r in range(2):
            o.append("v_pk_add_f32 %s, %s, s[%d:%d] op_sel_hi:[1,0] neg_lo:[0,1] neg_hi:[0,1]" % (vr(D + 8 * r + 2 * j, 2), vr(F + 8 * r + 2 * j, 2), 4 + 2 * r, 5 + 2 * r))
    for r in range(2):
        d = D + 8 * r; t = T + 6 * r
        o += ["v_pk_add_f32 %s, %s, %s" % (vr(t, 2), vr(d, 2), vr(d + 2, 2)), "v_pk_add_f32 %s, %s, %s" % (vr(t + 2, 2), vr(d + 4, 2), vr(d + 6, 2)),
              "v_pk_mul_f32 %s, %s, %s" % (vr(t + 4, 2), vr(d, 2), vr(d, 2))]
    for j in range(1, 4):
        for r in range(2):
            d = D + 8 * r; t = T + 6 * r
            o.append("v_pk_fma_f32 %s, %s, %s, %s" % (vr(t + 4, 2), vr(d + 2 * j, 2), vr(d + 2 * j, 2), vr(t + 4, 2)))
            if j == 1: o.append("v_pk_add_f32 %s, %s, %s" % (vr(t, 2), vr(t, 2), vr(t + 2, 2)))
    for r in range(2):
        t = T + 6 * r
        o += ["v_add_f32 v%d, v%d, v%d" % (t, t, t + 1), "v_add_f32 v%d, v%d, v%d" % (t + 4, t + 4, t + 5)]
    o += wave_sums([T, T + 6, T + 4, T + 10], ["s8", "s9", "s10", "s11"])
    c = 204
    o += ["v_mov_b32 v%d, 0x3b000000" % c]
    o += ["v_mul_f32 v%d, s8, v%d" % (T, c), "v_mul_f32 v%d, s9, v%d" % (T + 1, c), "v_mul_f32 v%d, s10, v%d" % (T + 2, c), "v_mul_f32 v%d, s11, v%d" % (T + 3, c)]
    o += ["v_fma_f32 v%d, -v%d, v%d, v%d" % (T + 2, T, T, T + 2), "v_fma_f32 v%d, -v%d, v%d, v%d" % (T + 3, T + 1, T + 1, T + 3)]
    o += ["v_add_f32 v%d, s4, v%d" % (T, T), "v_add_f32 v%d, s6, v%d" % (T + 1, T + 1)]
    o += ["v_max_f32 v%d, 0, v%d" % (T + 2, T + 2), "v_max_f32 v%d, 0, v%d" % (T + 3, T + 3)]
    MB, M0, S0, S1, RI = T + 4, T + 6, T + 10, T + 11, D
    o += ["v_cvt_pk_bf16_f32 v%d, v%d, v%d" % (MB, T, T + 1), "v_cvt_pk_bf16_f32 v%d, v%d, v%d" % (T + 2, T + 2, T + 3)]
    o += ["v_lshlrev_b32 v%d, 16, v%d" % (M0, MB), "v_and_b32 v%d, 0xffff0000, v%d" % (M0 + 2, MB)]
    o += ["v_lshlrev_b32 v%d, 16, v%d" % (S0, T + 2), "v_and_b32 v%d, 0xffff0000, v%d" % (S1, T + 2)]
    o += ["v_add_f32 v%d, %s, v%d" % (S0, hx(f2u(1e-5)), S0), "v_add_f32 v%d, %s, v%d" % (S1, hx(f2u(1e-5)), S1)]
    sub = [["v_pk_add_f32 %s, %s, %s op_sel_hi:[1,0] neg_lo:[0,1] neg_hi:[0,1]" % (vr(F + 8 * r + 2 * j, 2), vr(F + 8 * r + 2 * j, 2), vr(M0 + 2 * r, 2)) for j in range(4)] for r in range(2)]
    o += ["v_cvt_pk_bf16_f32 v%d, v%d, v%d" % (T + 2, S0, S1)] + sub[0][:2]
    o += ["v_lshlrev_b32 v%d, 16, v%d" % (S0, T + 2), "v_and_b32 v%d, 0xffff0000, v%d" % (S1, T + 2)] + sub[0][2:]
    o += ["v_sqrt_f32 v%d, v%d" % (S0, S0), "v_sqrt_f32 v%d, v%d" % (S1, S1)] + sub[1][:2]
    o += ["v_cvt_pk_bf16_f32 v%d, v%d, v%d" % (T + 2, S0, S1)] + sub[1][2:]
    o += ["v_lshlrev_b32 v%d, 16, v%d" % (S0, T + 2), "v_and_b32 v%d, 0xffff0000, v%d" % (S1, T + 2)]
    o += ["v_rcp_f32 v%d, v%d" % (RI, S0), "v_rcp_f32 v%d, v%d" % (RI + 2, S1)]
    for r in range(2):
        for j in range(4): o.append("v_pk_mul_f32 %s, %s, %s op_sel_hi:[1,0]" % (vr(F + 8 * r + 2 * j, 2), vr(F + 8 * r + 2 * j, 2), vr(RI + 2 * r, 2)))
    for r in range(2):
        for j in range(4): o.append("v_cvt_pk_bf16_f32 v%d, v%d, v%d" % (16 + 4 * r + j, F + 8 * r + 2 * j, F + 8 * r + 2 * j + 1))
    o += ["s_mul_i32 s4, %s, %d" % (W, 2 * LNP), "s_add_u32 s4, s4, %d" % LNS, "v_add_u32 v%d, s4, v12" % c]
    o += ["ds_write_b128 v%d, v[16:19]" % c, "ds_write_b128 v%d, v[20:23] offset:%d" % (c, LNP)]
    o += tag_from("v29")
    o += ["v_xor_b32 v%d, 0x80008000, v%d" % (MB, MB), "v_and_b32 v%d, 0xffff, v%d" % (T, MB), "v_or_b32 v%d, v%d, v%d" % (T, T, S0),
          "v_lshrrev_b32 v%d, 16, v%d" % (T + 1, MB), "v_or_b32 v%d, v%d, v%d" % (T + 1, T + 1, S1),
          "v_cmp_eq_u32 vcc, 0, v1", "v_lshlrev_b32 v%d, 3, v1" % (T + 2), "v_cndmask_b32 v%d, v%d, v%d, vcc" % (T, T + 1, T), "v_mov_b32 v%d, %s" % (T + 1, TAG),
          "s_lshl_b32 s4, %s, 6" % G, "s_lshl_b32 s5, %s, 4" % W, "s_add_u32 s4, s4, s5", "s_add_u32 s4, s4, %d" % WS_ST]
    o.append(("s_mov_b64 exec, 3", "buffer_store_dwordx2 %s, v%d, %s, s4 offen sc1" % (vr(T, 2), T + 2, sWS), "s_mov_b64 exec, -1"))
    vm.op("st")
    return o

def kgen_ops():
    o = []
    for i in range(5): o.append("v_lshlrev_b32 v%d, 16, v%d" % (24 + i, 24 + i))
    o += ["v_mul_f32 v28, %s, v28" % LOG2E, "v_mul_f32 v24, %s, v24" % LOG2E, "v_exp_f32 v28, v28", "v_exp_f32 v24, v24",
          "v_cvt_pk_bf16_f32 v24, v24, v28", "v_and_b32 v28, 0xffff0000, v24", "v_lshlrev_b32 v24, 16, v24",
          "v_mul_f32 v24, v24, v28", "v_mul_f32 v25, v25, v28",
          "v_mul_f32 v24, %s, v24" % hx(f2u(-1.4426950408889634)), "v_mul_f32 v25, %s, v25" % INV2PI, "v_add_f32 v28, v28, v28"]
    EA = 64
    o += ["v_mul_f32 v%d, v26, v28" % EA, "v_mul_f32 v%d, v27, v28" % (EA + 1)]
    Z1, Z8, Z256, Z32 = 30, 32, 34, 36
    zs = ((Z8, 8.0), (Z1, 1.0), (Z32, 32.0), (Z256, 256.0))
    for k, (z, p) in enumerate(zs):
        t = 116 + 4 * k
        o += ["v_mul_f32 v%d, %s, v24" % (t, hx(f2u(p))), "v_mul_f32 v%d, %s, v25" % (t + 1, hx(f2u(p)))]
    for k, (z, p) in enumerate(zs):
        t = 116 + 4 * k
        o += ["v_rndne_f32 v%d, v%d" % (t + 2, t + 1), "v_exp_f32 v%d, v%d" % (t, t)]
    for k, (z, p) in enumerate(zs):
        t = 116 + 4 * k
        o += ["v_sub_f32 v%d, v%d, v%d" % (t + 1, t + 1, t + 2)]
    for k, (z, p) in enumerate(zs):
        t = 116 + 4 * k
        o += ["v_cos_f32 v%d, v%d" % (z, t + 1), "v_sin_f32 v%d, v%d" % (z + 1, t + 1)]
    for k, (z, p) in enumerate(zs):
        t = 116 + 4 * k
        o += ["v_pk_mul_f32 %s, %s, %s op_sel_hi:[1,0]" % (vr(z, 2), vr(z, 2), vr(t, 2))]
    def wr(row, src, neg):
        t = 132 + ((row - 21) % 4 if not neg else (4 if row in (0, 1, 2, 3, 4, 5, 6, 7, 13, 15) else 5))
        return ["v_cvt_pk_bf16_f32 v%d, v%d, %sv%d" % (t, src, "-" if neg else "", src + 1), "ds_write_addtid_b32 v%d offset:%d" % (t, 4096 + row * 272)]
    plan = [(i, i - 1, Z1) for i in range(1, 8)] + [(13, 10, Z256), (15, 13, Z256)]
    plan2 = [(8, 0, Z256), (12, 8, Z256), (14, 12, Z256), (9, 2, Z256), (16, 14, Z256), (10, 4, Z256), (17, 16, Z256), (11, 6, Z256), (18, 17, Z256), (19, 18, Z256), (20, 19, Z256)]
    ca = [wr(0, EA, True)] + [cmul(EA + 2 * d, EA + 2 * s_, z, 54) + wr(d, EA + 2 * d, True) for d, s_, z in plan]
    cb = [cmul(EA + 2 * d, EA + 2 * s_, z, 56) + wr(d, EA + 2 * d, True) for d, s_, z in plan2]
    C = [38, 40, 42, 44]
    ch = [[], [], [], []]
    ch[0] = [["v_mov_b32 v140, 0x00003f80", "ds_write_addtid_b32 v140 offset:%d" % (4096 + 21 * 272)] + wr(25, Z32, False)]
    ch[1] = [wr(22, Z8, False)]
    ch[2] = [cmul(C[2], Z8, Z8, 50) + wr(23, C[2], False)]
    ch[3] = [[], cmul(C[3], C[2], Z8, 52) + wr(24, C[3], False)]
    for b in range(8, 32, 4): ch[0].append(cmul(C[0], Z32 if b == 8 else C[0], Z32, 46) + wr(21 + b, C[0], False))
    for b in range(5, 32, 4): ch[1].append(cmul(C[1], Z8 if b == 5 else C[1], Z32, 48) + wr(21 + b, C[1], False))
    ch[2].append([])
    for b in range(6, 32, 4): ch[2].append(cmul(C[2], C[2], Z32, 50) + wr(21 + b, C[2], False))
    for b in range(7, 32, 4): ch[3].append(cmul(C[3], C[3], Z32, 52) + wr(21 + b, C[3], False))
    chains = [ca, cb] + ch
    pend = []
    for i in range(max(len(c) for c in chains)):
        grp = [c[i] for c in chains if i < len(c) and c[i]]
        va, ds = [], []
        for k in range(max(len(x) for x in grp)):
            for x in grp:
                if k < len(x): (ds if x[k].startswith("ds_") else va).append(x[k])
        ncv = len([x for x in va if not x.startswith("v_pk")])
        npk = len(va) - ncv
        if npk >= len(pend) and pend: o += interleave(va[:npk], pend) + va[npk:]
        else: o += pend + va
        pend = ds
    o += pend
    return o

VX0, VX1, VW = 2, 3, 4
KD_ = "s86"
def stage_dma(st, vm):
    slot = RB + slot_of(st) * SLOT
    o = ["s_lshl_b32 s78, %s, 7" % KD_, "s_add_u32 s78, s78, s84", "s_mul_i32 s79, %s, %d" % (KD_, 64 * 2752), "s_add_u32 s79, s79, s85",
         "s_add_u32 %s, %s, 1" % (KD_, KD_), "s_and_b32 %s, %s, 7" % (KD_, KD_)]
    for i in range(4):
        g = ["s_add_u32 s78, s78, 7168"] if i else ["s_add_u32 m0, s80, %d" % slot]
        g.append("buffer_load_dwordx4 v%d, %s, s78 offen offset:%d lds" % (VX0 + (i & 1), sX, 1024 * i)); vm.op("st%d" % st)
        o.append(tuple(g))
    for m, srd in enumerate((sWG, sWU)):
        for i in range(3):
            g = [] if i else ["s_add_u32 m0, s81, %d" % (slot + WOFF + m * WMAT)]
            g.append("buffer_load_dwordx4 v%d, %s, s79 offen offset:%d lds" % (VW + i, srd, 1024 * i)); vm.op("st%d" % st)
            o.append(tuple(g))
    return o

def dma_setup_x():
    e("v_lshrrev_b32 v210, 3, v1", "v_and_b32 v211, 0x30, v1", "v_and_b32 v212, 0x70, v12", "v_xor_b32 v211, v211, v212",
      "v_lshl_add_u32 v%d, v210, 10, v211" % VX0, "v_xor_b32 v%d, 64, v%d" % (VX1, VX0))
    e("s_lshl_b32 s80, %s, 12" % W, "s_lshl2_add_u32 s84, %s, %s" % (MT, W), "s_lshl_b32 s84, s84, 15")

def dma_setup_w():
    e("v_mul_u32_u24 v210, 5462, v1", "s_movk_i32 s74, 2560")
    for i in range(3):
        if i: e("v_add_u32 v210, %d, v210" % (64 * 5462))
        e("v_lshrrev_b32 v211, 16, v210", "v_mad_u32_u24 v%d, v211, s74, v12" % (VW + i))
    e("s_mul_i32 s81, %s, 3072" % W, "s_mul_i32 s85, s87, 192", "s_mul_i32 s74, %s, %d" % (W, 16 * 2752), "s_add_u32 s85, s85, s74")

def a_p0():
    vm = VM()
    e("v_and_b32 v30, 31, v1", "v_lshrrev_b32 v31, 5, v1")
    e("v_bfe_u32 v32, v1, 1, 3")
    e("s_lshl_b32 s74, %s, 13" % WM, "s_add_u32 s74, s74, %d" % RB, "v_lshl_add_u32 v33, v30, 7, s74")
    for s in range(4):
        e("v_add_u32 v34, %d, v31" % (2 * s), "v_xor_b32 v34, v34, v32", "v_lshl_add_u32 v%d, v34, 4, v33" % (XA + s),
          "v_add_u32 v%d, %d, v%d" % (XA2 + s, 2 * SLOT, XA + s))
    e("v_bfe_u32 v34, v1, 4, 1", "v_mul_u32_u24 v34, %d, v34" % WMAT)
    e("v_bfe_u32 v35, v1, 2, 2", "v_lshl_add_u32 v35, v31, 3, v35", "v_mul_u32_u24 v35, 192, v35")
    e("v_and_b32 v36, 3, v1", "v_lshlrev_b32 v36, 3, v36", "v_add3_u32 v34, v34, v35, v36")
    e("s_mul_i32 s74, %s, 96" % WN, "s_add_u32 s74, s74, %d" % (RB + WOFF), "v_add_u32 v%d, s74, v34" % WA, "v_add_u32 v%d, %d, v%d" % (WA2, 2 * SLOT, WA))
    for i in range(4): e("v_mov_b32 v%d, 0x3f803f80" % (ONES + i))
    e("s_mul_i32 s74, %s, %d" % (W, E_W), "s_add_u32 s74, s74, %d" % E_BASE, "s_sub_u32 m0, s74, 4096")
    e("v_mul_u32_u24 v14, 272, v30", "v_lshl_add_u32 v14, v31, 4, v14", "v_add_u32 v14, s74, v14")
    e("s_mul_i32 s75, %s, 3072" % W, "s_add_u32 s75, s75, %d" % T_BASE)
    TA = 58
    e("v_lshlrev_b32 v%d, 5, v30" % TA, "v_lshl_add_u32 v%d, v31, 4, v%d" % (TA, TA), "v_add_u32 v%d, s75, v%d" % (TA, TA))
    e("v_cmp_eq_u32 vcc, 0, v31")
    e("v_lshlrev_b32 v34, 4, v30", "v_add_u32 v34, 1024, v34", "v_lshlrev_b32 v35, 3, v30", "v_add_u32 v35, 1536, v35")
    e("v_add_u32 v36, 8, v34", "v_add_u32 v37, 256, v35")
    e("v_cndmask_b32 v34, v35, v34, vcc", "v_cndmask_b32 v35, v37, v36, vcc")
    e("v_add_u32 v%d, s75, v34" % (TA + 1), "v_add_u32 v%d, s75, v35" % (TA + 2))
    e("v_lshlrev_b32 v34, 2, v30", "v_lshl_add_u32 v34, v31, 9, v34", "v_add_u32 v%d, s75, v34" % (TA + 3))
    e("s_lshl_b32 s84, %s, 1" % MT, "s_add_u32 s84, s84, %s" % WM, "s_mul_i32 s84, s84, 172", "s_mul_i32 s85, %s, 6" % FT, "s_mul_i32 s78, %s, 3" % WN,
      "s_add_u32 s85, s85, s78", "s_add_u32 s84, s84, s85", "s_lshl_b32 s84, s84, 10", "s_add_u32 s84, s84, %d" % WS_H)
    e("s_and_b32 s86, %s, 7" % MT, "s_lshr_b32 s86, s86, %d" % (NCLS.bit_length() - 1), "s_add_u32 s75, s86, %s" % KS, "s_and_b32 s75, s75, 7", "s_lshl_b32 s75, s75, 9")
    e("s_lshr_b32 s74, %s, 3" % MT, "s_lshl_b32 s74, s74, 4", "s_add_u32 s74, s74, %s" % FT, "s_lshl_b32 s74, s74, 1", "s_add_u32 s74, s74, %s" % WN,
      "s_lshl_b32 s80, s74, 12", "s_add_u32 s80, s80, %d" % WS_CS, "s_add_u32 s79, s80, s75")
    e("s_cmp_eq_u32 %s, 0" % WM, "s_cselect_b32 s86, s86, 15", "s_cselect_b32 s79, s79, 0x7ff00000")
    e("s_lshl_b32 s81, %s, 10" % MT, "s_lshl_b32 s75, %s, 9" % WM, "s_add_u32 s81, s81, s75", "s_add_u32 s81, s81, %d" % WS_ST)
    e("s_waitcnt vmcnt(%d) lgkmcnt(0)" % (7 if "--tlb" in sys.argv else 6))
    e("s_lshl_b32 s74, %s, 4" % WM, "s_lshr_b32 s14, s14, s74", "v_mov_b32 v28, s14")
    e(stamp("lnld"))
    e(kgen_ops())
    e(stamp("kg_chain"))
    e("s_waitcnt lgkmcnt(0)")
    for s in range(8):
        e("ds_read_b128 %s, v14 offset:%d" % (vr(64 + 8 * s, 4), 32 * s), "ds_read_b128 %s, v14 offset:%d" % (vr(68 + 8 * s, 4), 21 * 272 + 32 * s))
    e("v_and_b32 v48, 0x1ff, v12", "v_lshrrev_b32 v49, 5, v1", "v_lshl_add_u32 v49, v49, 11, v48")
    for s in range(8):
        e("s_waitcnt lgkmcnt(%d)" % (14 - 2 * s))
        e("v_mfma_f32_32x32x16_bf16 v[32:47], %s, %s, %s" % (vr(64 + 8 * s, 4), vr(68 + 8 * s, 4), "0" if s == 0 else "v[32:47]"))
    e("ds_write_b128 v%d, v[32:35]" % TA, "ds_write_b64 v%d, v[36:37]" % (TA + 1), "ds_write_b64 v%d, v[38:39]" % (TA + 2))
    for i in range(4): e("ds_write_b32 v%d, v%d offset:%d" % (TA + 3, 40 + i, 2048 + 128 * i))
    e(stamp("kgen"))
    e("s_waitcnt vmcnt(0)")
    e(tag_from("v29"))
    e(stamp("land0"))
    return vm

def g1_reads(stage, s, buf):
    slot = slot_of(stage)
    o = []
    for b in range(2):
        if slot < 2: o.append("ds_read_b128 %s, v%d offset:%d" % (vr(buf + 4 * b, 4), XA + s, slot * SLOT + 4096 * b))
        else: o.append("ds_read_b128 %s, v%d offset:%d" % (vr(buf + 4 * b, 4), XA2 + s, 4096 * b))
    for a in range(3):
        for q in range(2):
            off = (16 * s + 4 * q) * 192 + 32 * a
            if slot < 2: o.append("ds_read_b64_tr_b16 %s, v%d offset:%d" % (vr(buf + 8 + 4 * a + 2 * q, 2), WA, slot * SLOT + off))
            else: o.append("ds_read_b64_tr_b16 %s, v%d offset:%d" % (vr(buf + 8 + 4 * a + 2 * q, 2), WA2, off))
    return [o[0], o[2], o[3], o[1], o[4], o[5], o[6], o[7]]

def g1_mfmas(buf, first):
    o = []
    for a in range(3):
        for b in range(2):
            acc = ACC + 16 * (2 * a + b)
            o.append("v_mfma_f32_32x32x16_bf16 %s, %s, %s, %s" % (vr(acc, 16), vr(buf + 8 + 4 * a, 4), vr(buf + 4 * b, 4), "0" if first else vr(acc, 16)))
    return o

def g1_ones(buf, st, s):
    sk = newlab("no1")
    o = ["s_cmp_lg_u32 s86, %d" % st, "s_cbranch_scc1 " + sk]
    for a in range(3):
        acc = ONEACC + 16 * a
        o.append("v_mfma_f32_32x32x16_bf16 %s, %s, %s, %s" % (vr(acc, 16), vr(ONES, 4), vr(buf + 8 + 4 * a, 4), "0" if s == 0 else vr(acc, 16)))
    return o + [sk + ":"]

def wd_dma(t0, k0, cnt, vm, lab, vo):
    o = []
    for k in range(k0, k0 + cnt):
        o.append(("s_add_u32 m0, s76, %d" % (wd_loc(t0) + k * 4096), "s_add_u32 s78, s77, %d" % (t0 * 16384 + k * 32768),
                  "buffer_load_dwordx4 v%d, %s, s78 offen lds" % (vo, sWD)))
        vm.op(lab)
    return o

def wd_setup():
    return ["s_lshl_b32 s76, %s, 10" % W, "s_lshl_b32 s77, s76, 3", "s_lshl_b32 s78, %s, 7" % J2, "s_add_u32 s77, s77, s78"]

def wd_voff(v, t):
    return ["v_lshrrev_b32 v%d, 3, v1" % t, "v_bfe_u32 v%d, v1, 4, 1" % (t + 1), "v_lshlrev_b32 v%d, 2, v%d" % (t + 1, t + 1),
            "v_and_b32 v%d, 7, v1" % v, "v_xor_b32 v%d, v%d, v%d" % (v, v, t + 1), "v_lshlrev_b32 v%d, 4, v%d" % (v, v),
            "v_lshl_add_u32 v%d, v%d, 10, v%d" % (v, t, v)]

def wd_loc(t):
    if t < 60: return RB + t * 2048
    if t < 80: return RB + (t - 60) * 2048
    return W2B + (t - 80) * 2048

def final_xload(vm, dst, t):
    o = ["v_lshrrev_b32 v%d, 3, v0" % t, "v_and_b32 v%d, 7, v0" % (t + 1), "v_lshlrev_b32 v%d, 4, v%d" % (t + 1, t + 1),
         "v_lshl_add_u32 v%d, v%d, 10, v%d" % (t, t, t + 1),
         "s_lshl_b32 s74, %s, 16" % I2, "s_lshl_b32 s75, %s, 7" % J2, "s_add_u32 s74, s74, s75", "v_add_u32 v%d, s74, v%d" % (t, t),
         "global_load_dwordx4 %s, v%d, s[16:17]" % (vr(dst, 4), t)]
    vm.op("xf")
    return o

XF, XFA = 244, 248

SLOW = []
def a_main(vm):
    bufs = (FR0, FR1)
    prev = None
    n = 0
    gl = []
    CA, CB, KC = 160, 172, 36
    prep = ["s_mov_b32 s74, 0x07060302"]
    for a in range(3): prep += ["v_add_f32 v%d, v%d, v%d" % (20 + a, 20 + a, 24 + a), "v_add_f32 v%d, v%d, v%d" % (28 + a, 28 + a, 32 + a)]
    for a in range(3): prep += ["v_add_f32 v%d, v%d, v%d" % (20 + a, 20 + a, 28 + a)]
    for a in range(3):
        prep += ["v_and_b32 v24, 0xffff0000, v%d" % (20 + a), "v_sub_f32 v24, v%d, v24" % (20 + a), "v_and_b32 v25, 0xffff0000, v24", "v_sub_f32 v25, v24, v25",
                 "v_perm_b32 v%d, v24, v%d, s74" % (CA + 4 * a, 20 + a), "v_lshrrev_b32 v%d, 16, v25" % (CA + 4 * a + 1)]
    for b in range(2):
        sv = 16 + 2 * b
        prep += ["v_and_b32 v%d, 0xffff, v%d" % (CB + 4 * b + 1, sv), "v_lshl_or_b32 v%d, v%d, 16, v%d" % (CB + 4 * b, sv, CB + 4 * b + 1),
                 "v_and_b32 v%d, 0xffff0000, v%d" % (sv, sv), "v_rcp_f32 v%d, v%d" % (sv + 1, sv)]
    for b in range(2):
        sv = 16 + 2 * b
        prep += ["v_mul_f32 v%d, v%d, v%d" % (KC + 4 * b + 2, sv, sv), "v_mul_f32 v%d, %s, v%d" % (KC + 4 * b, hx(f2u(GK1)), sv + 1),
                 "v_mul_f32 v%d, v%d, v%d" % (KC + 4 * b + 1, sv + 1, sv + 1), "v_mul_f32 v%d, v%d, v%d" % (KC + 4 * b + 1, KC + 4 * b + 1, sv + 1),
                 "v_mul_f32 v%d, %s, v%d" % (KC + 4 * b + 1, hx(f2u(GK2)), KC + 4 * b + 1)]
    WDV, WB = 13, 50
    g2a = wd_voff(WDV, 14) + \
        ["v_bfe_u32 v14, v1, 2, 2", "v_lshrrev_b32 v15, 5, v1", "v_lshl_add_u32 v15, v15, 2, v14", "v_lshrrev_b32 v14, 1, v14", "v_lshlrev_b32 v14, 2, v14",
         "v_bfe_u32 v62, v1, 4, 1", "v_lshlrev_b32 v62, 1, v62", "v_bfe_u32 v63, v1, 1, 1", "v_add_u32 v62, v62, v63", "v_xor_b32 v62, v62, v14",
         "v_lshlrev_b32 v62, 4, v62", "v_lshl_add_u32 v62, v15, 7, v62", "v_and_b32 v63, 1, v1", "v_lshl_add_u32 v62, v63, 3, v62",
         "s_lshl_b32 s74, %s, 11" % WN, "v_add_u32 v%d, s74, v62" % WB, "v_xor_b32 v%d, 64, v%d" % (WB + 1, WB)]
    for k in (1, 2):
        g2a += ["v_add_u32 v%d, %d, v%d" % (WB + 2 * k, 65536 * k, WB), "v_add_u32 v%d, %d, v%d" % (WB + 2 * k + 1, 65536 * k, WB + 1)]
    corr = []
    for a in range(3):
        for b in range(2):
            acc = ACC + 16 * (2 * a + b)
            corr.append("v_mfma_f32_32x32x16_bf16 %s, %s, %s, %s" % (vr(acc, 16), vr(CA + 4 * a, 4), vr(CB + 4 * b, 4), vr(acc, 16)))
    gl = ["buffer_load_dwordx2 v[16:17], v48, %s, s81 offen sc1" % sWS, "buffer_load_dwordx2 v[18:19], v48, %s, s81 offen offset:256 sc1" % sWS]
    gl += ["buffer_load_dwordx4 %s, v49, %s, s80 offen offset:%d sc1" % (vr(20 + 4 * p, 4), sWS, 512 * p) for p in range(4)]
    pones = []
    for st in range(8):
        e("s_barrier")
        e(stamp("st%d" % st))
        for s in range(4):
            rd = g1_reads(st, s, bufs[n & 1])
            extra = []
            if st == NS and s == 2:
                extra = ["v_mov_b32 v44, v%d" % ONEACC, "v_mov_b32 v45, v%d" % (ONEACC + 16), "v_mov_b32 v46, v%d" % (ONEACC + 32), "v_mov_b32 v47, %s" % TAG,
                         "buffer_store_dwordx4 v[44:47], v48, %s, s79 offen sc1" % sWS]
                vm.op("cs")
            if st == 3: extra = g2a[len(g2a) * s // 4: len(g2a) * (s + 1) // 4]
            if st == 5 and s == 0:
                extra = ["v_mov_b32 v%d, 0" % r for r in (CA + 2, CA + 3, CA + 6, CA + 7, CA + 10, CA + 11, CB + 2, CB + 3, CB + 6, CB + 7)] + ["v_lshrrev_b32 v48, 1, v48"]
            if st == 6 and s == 0: extra = gl[:3]
            if st == 6 and s == 1: extra = gl[3:]
            if st == 7 and s == 1:
                e(vm.all(), check_retry(gl, [17, 19, 23, 27, 31, 35], 44))
                extra = prep[:18]
            if st == 7 and s == 2: extra = prep[18:36]
            if st == 7 and s == 3: prev = prev + corr; extra = prep[36:]
            if prev is None: e(rd)
            elif len(extra) > 12: e(interleave(prev[:2], rd, per=4), interleave(prev[2:], extra), pones)
            else: e(interleave(prev[:3], rd, per=3), interleave(prev[3:], extra), pones)
            e("s_waitcnt lgkmcnt(0)")
            prev = g1_mfmas(bufs[n & 1], st == 0 and s == 0)
            pones = g1_ones(bufs[n & 1], st, s) if st < NS else []
            n += 1
    e(interleave(prev, lds_signal(C_A1, 44)))
    e(stamp("loopend"))
    e("s_setprio 3")
    for a in range(3):
        skip = newlab("skiph")
        e("s_cmp_ge_u32 s85, %d" % (86 - a), "s_cbranch_scc1 " + skip)
        seq = []
        for b in range(2):
            acc = ACC + 16 * (2 * a + b)
            k = vr(KC + 4 * b, 2); s2 = vr(KC + 4 * b + 2, 2)
            Q = 180 + 16 * b; P = 188 + 16 * b; O = 212 + 4 * ((2 * a + b) % 4)
            o = []
            for j in range(4): o.append("v_pk_mul_f32 %s, %s, %s" % (vr(Q + 2 * j, 2), vr(acc + 2 * j, 2), vr(acc + 2 * j, 2)))
            for j in range(4): o.append("v_pk_fma_f32 %s, %s, %s, %s op_sel:[0,1,0] op_sel_hi:[1,1,0]" % (vr(Q + 2 * j, 2), vr(Q + 2 * j, 2), k, k))
            for j in range(4): o.append("v_pk_mul_f32 %s, %s, %s" % (vr(Q + 2 * j, 2), vr(Q + 2 * j, 2), vr(acc + 2 * j, 2)))
            for j in range(8): o.append("v_exp_f32 v%d, v%d" % (Q + j, Q + j))
            for j in range(4): o.append("v_pk_mul_f32 %s, %s, %s" % (vr(P + 2 * j, 2), vr(acc + 2 * j, 2), vr(acc + 8 + 2 * j, 2)))
            for j in range(4): o.append("v_pk_fma_f32 %s, %s, %s, %s op_sel:[0,0,0] op_sel_hi:[1,0,0]" % (vr(Q + 2 * j, 2), vr(Q + 2 * j, 2), s2, s2))
            for j in range(8): o.append("v_rcp_f32 v%d, v%d" % (Q + j, Q + j))
            for j in range(4): o.append("v_pk_mul_f32 %s, %s, %s" % (vr(P + 2 * j, 2), vr(P + 2 * j, 2), vr(Q + 2 * j, 2)))
            for j in range(4): o.append("v_cvt_pk_bf16_f32 v%d, v%d, v%d" % (O + j, P + 2 * j, P + 2 * j + 1))
            o.append(("s_add_u32 s78, s84, %d" % (b * 86 * 1024), "buffer_store_dwordx4 %s, v12, %s, s78 offen offset:%d sc1" % (vr(O, 4), sWS, a * 1024)))
            seq.append(o)
        e(merge(seq[0], seq[1]))
        e(skip + ":")
    vm.op("h")
    e(stamp("gelu"))
    e(lds_signal(C_G, 14), wd_setup())
    def wd_reads(jj, dst):
        o = []
        for dt in range(2):
            for q in range(2):
                a = wd_loc(2 * jj) + 1024 * q
                o.append("ds_read_b64_tr_b16 %s, v%d offset:%d" % (vr(dst + 4 * dt + 2 * q, 2), WB + 2 * (a >> 16) + dt, a & 0xffff))
        return o
    PRE = 96
    e(lds_wait(C_B1, 4, 14))
    e(stamp("b1ok"))
    for jj in range(10): e(wd_reads(jj, PRE + 8 * jj))
    A2 = 64; HB = 176; NH = 16; WF = (PRE, PRE + 8)
    e("s_lshl_b32 s74, %s, 1" % I2, "s_add_u32 s74, s74, %s" % WM, "s_mul_i32 s74, s74, 86", "s_add_u32 s74, s74, %s" % WN, "s_lshl_b32 s83, s74, 10",
      "s_add_u32 s83, s83, %d" % WS_H)
    e("v_and_b32 v28, 31, v1", "v_mul_u32_u24 v28, 272, v28", "v_lshrrev_b32 v29, 5, v1", "v_lshl_add_u32 v28, v29, 4, v28")
    e("s_mul_i32 s74, %s, %d" % (WN, 64 * 272), "s_mul_i32 s75, %s, %d" % (WM, 32 * 272), "s_add_u32 s74, s74, s75", "s_add_u32 s74, s74, %d" % PB, "v_add_u32 v28, s74, v28")
    e("s_lshl_b32 s81, %s, 1" % MT, "s_add_u32 s81, s81, %s" % WM, "s_lshl_b32 s81, s81, 5", "s_lshl_b32 s75, %s, 1" % FT, "s_add_u32 s81, s81, s75",
      "s_add_u32 s81, s81, %s" % WN, "s_lshl_b32 s81, s81, 7", "s_add_u32 s81, s81, %d" % WS_F4, "v_mov_b32 v30, %s" % TAG)
    e("v_min_u32 v31, 28, v1", "v_lshlrev_b32 v31, 7, v31", "s_lshl_b32 s82, %s, 12" % I2, "s_add_u32 s82, s82, %d" % WS_F4)
    e("s_waitcnt lgkmcnt(0)")
    e(lds_signal(C_A2, 14), lds_wait(C_A2, 4, 14))
    d2a = wd_dma(60, 0, 10, VM(), "x", WDV)
    N2 = 5
    e(d2a[:N2])
    for i in range(N2): vm.op("2a")
    e(vm.wait("h"))
    e("s_mov_b64 exec, 1", "buffer_store_dword v30, off, %s, s81 sc1" % sWS, "s_mov_b64 exec, -1"); vm.op("f4")
    e(stamp("hack"))
    e("s_setprio 0")
    e(d2a[N2:])
    e(final_xload(vm, XF, XFA))
    pl = ["buffer_load_dword v15, v31, %s, s82 offen sc1" % sWS]
    e(pl, vm.all())
    e(lds_signal(C_A3, 20))
    e(check_retry(pl, [15], 16))
    e(stamp("hpoll"))
    def hload(jj):
        vm.op("h%d" % jj)
        o = []
        if jj % 2 == 0 and jj > 0: o.append("s_add_u32 s83, s83, 4096")
        o.append("buffer_load_dwordx4 %s, v12, %s, s83 offen offset:%d sc1" % (vr(HB + 4 * (jj % NH), 4), sWS, 2048 * (jj & 1)))
        return o
    PD = 12
    for jj in range(PD): e(hload(jj))
    e(lds_wait(C_B2, 4, 20), lds_wait(C_A3, 4, 20))
    for jj in range(43):
        if jj == 18: e(lds_signal(C_P, 20))
        if jj == 39: e(lds_wait(C_B3, 4, 20), stamp("b3ok"))
        if jj == 31: e(lds_signal(C_A4, 20))
        wf = PRE + 8 * jj if jj < 10 else WF[jj & 1]
        e(vm.wait("h%d" % jj).replace("s_waitcnt", "s_waitcnt lgkmcnt(0)") if jj >= 10 else vm.wait("h%d" % jj))
        if jj == 1: e(stamp("h0"))
        if jj == 36: e(stamp("h36"))
        hb_ = vr(HB + 4 * (jj % NH), 4)
        e("v_mfma_f32_32x32x16_bf16 %s, %s, %s, %s" % (vr(A2, 16), vr(wf, 4), hb_, "0" if jj == 0 else vr(A2, 16)))
        if jj + 1 < 43 and jj + 1 >= 10: e(wd_reads(jj + 1, WF[(jj + 1) & 1]))
        if jj + PD < 43: e(hload(jj + PD))
        e("v_mfma_f32_32x32x16_bf16 %s, %s, %s, %s" % (vr(A2 + 16, 16), vr(wf + 4, 4), hb_, "0" if jj == 0 else vr(A2 + 16, 16)))
    e(stamp("g2end"))
    e(lds_wait(C_A4, 4, 20))
    for dt in range(2):
        for jj in range(4): e("ds_write_b128 v28, %s offset:%d" % (vr(A2 + 16 * dt + 4 * jj, 4), 128 * dt + 32 * jj))
    e("s_waitcnt lgkmcnt(0)")
    e("s_branch L_final")
    e(SLOW)

def b_path():
    vm = VM()
    vm.op("ln")
    for i in range(5): vm.op("st0")
    WDV, VK, VU = 7, 8, 9
    e(wd_voff(WDV, 210))
    e("v_lshlrev_b32 v210, 2, v1", "v_add_u32 v210, %d, v210" % CNT_BASE, "v_mov_b32 v211, 0", "ds_write_b32 v210, v211")
    e("v_and_b32 v210, 1, v1", "v_mul_u32_u24 v210, %d, v210" % R_CP, "v_bfe_u32 v212, v1, 1, 3", "v_sub_u32 v212, 7, v212", "v_lshl_add_u32 v210, v212, 6, v210",
      "v_lshrrev_b32 v212, 4, v1", "v_lshl_add_u32 v210, v212, 4, v210", "s_mul_i32 s74, %s, %d" % (WM, 2 * R_CP), "s_add_u32 s74, s74, %d" % R_BASE, "s_lshl_b32 s75, %s, 8" % WN, "s_add_u32 s74, s74, s75", "v_add_u32 v%d, s74, v210" % VK)
    e("v_bfe_u32 v210, v1, 2, 2", "v_add_u32 v210, v210, v212", "v_lshlrev_b32 v210, 4, v210", "v_and_b32 v213, 3, v1", "v_lshl_add_u32 v210, v213, 2, v210",
      "v_and_b32 v213, 1, v1", "v_mul_u32_u24 v213, %d, v213" % (U_CP - 4), "v_sub_u32 v210, v210, v213",
      "s_mul_i32 s74, %s, %d" % (WM, 2 * U_CP), "s_add_u32 s74, s74, %d" % (U_BASE + U_CP), "s_add_u32 s74, s74, s75", "v_add_u32 v%d, s74, v210" % VU)
    LNA = 10
    e("v_bfe_u32 v210, v1, 2, 2", "v_mul_u32_u24 v210, %d, v210" % LNP, "v_lshrrev_b32 v211, 4, v1", "v_lshl_add_u32 v210, v211, 5, v210",
      "v_and_b32 v211, 3, v1", "v_lshl_add_u32 v210, v211, 3, v210", "s_lshl_b32 s74, %s, 8" % W, "s_add_u32 s74, s74, %d" % LNS, "v_add_u32 v%d, s74, v210" % LNA)
    T8, T16, TM, RD, RC, RB = 84, 85, 86, 87, 88, 89
    e("s_mul_i32 s74, %s, 6144" % WM, "s_add_u32 s74, s74, %d" % T_BASE)
    e("v_lshl_add_u32 v%d, v1, 3, s74" % T8, "v_add_u32 v%d, s74, v12" % T16, "v_add_u32 v%d, -4, v%d" % (TM, T16))
    e("s_mul_i32 s74, %s, %d" % (W, R_CP), "s_add_u32 s74, s74, %d" % R_BASE, "v_sub_u32 v213, 63, v1")
    e("v_lshl_add_u32 v%d, v213, 5, s74" % RD, "v_lshl_add_u32 v%d, v213, 4, s74" % RC, "v_lshl_add_u32 v%d, v213, 3, s74" % RB)
    e("s_cmp_eq_u32 %s, 1" % WN, "s_cselect_b64 s[72:73], -1, 0")
    e(vm.wait("ln").replace("s_waitcnt", "s_waitcnt lgkmcnt(0)"), stamp("lnld"))
    e("s_lshl_b32 s74, %s, 4" % WM, "s_lshr_b32 s14, s14, s74", "v_mov_b32 v28, s14")
    d1 = stage_dma(1, VM())
    ln = flat(ln_ops(VM()))
    e(merge(ln[:-1], [tuple(d1[:6])] + d1[6:13]))
    for i in range(7): vm.op("st1")
    e(ln[-1]); vm.op("stats")
    e(stamp("lndone"))
    e(vm.wait("st0").replace("s_waitcnt", "s_waitcnt lgkmcnt(0)"))
    e(stamp("st0land"))
    def endit(st, lg=False):
        w = vm.wait("st%d" % st)
        if lg: w = w.replace("s_waitcnt", "s_waitcnt lgkmcnt(0)")
        e(stamp("iss%d" % (st + 1)), w, stamp("land%d" % st), "s_barrier")
    if "--prioB" in sys.argv: e("s_setprio 1")
    e("s_barrier")
    for rnd in range(2):
        for q in range(2): e("ds_read_b64_tr_b16 %s, v%d offset:%d" % (vr(20 + 4 * rnd + 2 * q, 2), LNA, 4 * q * LNP + 128 * rnd))
    e(d1[13:])
    for i in range(3): vm.op("st1")
    e(stage_dma(2, vm))
    e("s_lshl_b32 s74, %s, 13" % G, "s_lshl_b32 s75, %s, 11" % W, "s_add_u32 s74, s74, s75", "s_add_u32 s74, s74, %d" % WS_XT)
    e("s_waitcnt lgkmcnt(0)")
    for rnd in range(2):
        e("buffer_store_dwordx4 %s, v12, %s, s74 offen offset:%d sc1" % (vr(20 + 4 * rnd, 4), sWS, 1024 * rnd)); vm.op("xt")
    endit(1)
    rd = []
    for t in range(2):
        b = 32 + 16 * t; o = 3072 * t
        rd += ["ds_read_b64 %s, v%d offset:%d" % (vr(b, 2), T8, o + 2048), "ds_read_b32 v%d, v%d offset:%d" % (b + 2, T8, o + 2056),
               "ds_read_b32 v%d, v%d offset:%d" % (b + 3, T8, o + 1020),
               "ds_read_b64 %s, v%d offset:%d" % (vr(b + 4, 2), T8, o + 1536), "ds_read_b32 v%d, v%d offset:%d" % (b + 6, T8, o + 1544),
               "ds_read_b32 v%d, v%d offset:%d" % (b + 7, TM, o),
               "ds_read_b64 %s, v%d offset:%d" % (vr(b + 8, 2), T8, o + 1024), "ds_read_b32 v%d, v%d offset:%d" % (b + 10, T8, o + 1032),
               "ds_read_b128 %s, v%d offset:%d" % (vr(b + 12, 4), T16, o)]
    e(merge(stage_dma(3, vm), rd))
    endit(2, True)
    S = "s[72:73]"
    cv = lambda d, lo, hi: "v_cvt_pk_bf16_f32 v%d, v%d, v%d" % (d, lo, hi)
    x1 = ["v_cmp_eq_u32 vcc, 0, v1", "v_lshlrev_b32 v28, 16, v28"]
    x1 += ["v_add_f32 v%d, v%d, v%d" % (32 + k, 32 + k, 48 + k) for k in (0, 1, 2, 3, 4, 5, 6, 7, 8, 9, 10, 12, 13, 14, 15)]
    x1 += ["v_cndmask_b32 v28, 0, v28, vcc", "v_cndmask_b32 v35, v40, v35, vcc", "v_cndmask_b32 v39, v39, 0, vcc", "v_add_f32 v44, v44, v28"]
    x1 += ["v_cndmask_b32 v48, v33, v34, %s" % S, "v_cndmask_b32 v49, v32, v33, %s" % S,
           cv(64, 34, 34), cv(65, 34, 48), cv(66, 33, 33), cv(67, 33, 33), cv(68, 33, 33), cv(69, 49, 32), cv(70, 32, 32), cv(71, 32, 32)]
    e(merge(stage_dma(4, vm), x1))
    endit(3)
    x2 = ["v_cndmask_b32 v48, v37, v38, %s" % S, "v_cndmask_b32 v49, v36, v37, %s" % S, cv(72, 38, 48), cv(73, 37, 37), cv(74, 49, 36), cv(75, 36, 36),
          "v_cndmask_b32 v48, v41, v42, %s" % S, "v_cndmask_b32 v49, v40, v41, %s" % S, "v_cndmask_b32 v50, v35, v40, %s" % S, cv(76, 48, 49), cv(77, 40, 50),
          "v_cndmask_b32 v48, v46, v47, %s" % S, "v_cndmask_b32 v49, v45, v46, %s" % S, "v_cndmask_b32 v50, v44, v45, %s" % S, "v_cndmask_b32 v51, v39, v44, %s" % S,
          cv(78, 48, 49), cv(79, 50, 51), "v_mov_b32 v80, 0", "v_mov_b32 v81, 0",
          "ds_write_b128 v%d, v[64:67]" % RD, "ds_write_b128 v%d, v[68:71] offset:16" % RD, "ds_write_b128 v%d, v[72:75] offset:2048" % RC,
          "ds_write_b64 v%d, v[76:77] offset:3072" % RB, "ds_write_b64 v%d, v[78:79] offset:3584" % RB, "ds_write_b64 v%d, v[80:81] offset:4096" % RB]
    e("s_lshl_b32 s74, %s, 2" % G, "s_add_u32 s74, s74, %d" % WS_F3, "s_cmp_eq_u32 %s, 0" % W, "s_cselect_b32 s74, s74, 0x7ffffff0", "v_mov_b32 v16, %s" % TAG)
    e("s_mov_b64 exec, 1", "buffer_store_dword v16, off, %s, s74 sc1" % sWS, "s_mov_b64 exec, -1"); vm.op("f3s")
    e(merge(stage_dma(5, vm), x2[:19]))
    endit(4)
    UG, UL = 90, 91
    x3 = ["v_lshrrev_b32 v16, 1, v1", "v_and_b32 v17, 1, v1", "v_lshlrev_b32 v%d, 13, v16" % UG, "v_lshl_add_u32 v%d, v17, 4, v%d" % (UG, UG),
          "v_mul_u32_u24 v17, %d, v17" % (2 * U_CP), "v_lshl_add_u32 v17, v16, 4, v17", "s_lshl_b32 s74, %s, 10" % W, "s_add_u32 s74, s74, %d" % U_BASE, "v_add_u32 v%d, s74, v17" % UL,
          "s_mul_i32 s74, %s, %d" % (W, U_CP), "s_add_u32 s74, s74, %d" % U_BASE, "s_sub_u32 s75, 15, %s" % WN, "v_min_u32 v92, s75, v1", "v_lshl_add_u32 v92, v92, 2, s74",
          "ds_write_b32 v92, v80"]
    x3 += ["v_mov_b32 v%d, 0" % (32 + i) for i in range(32)]
    e(merge(stage_dma(6, vm), x3[:14]))
    endit(5)
    e(merge(stage_dma(7, vm), x3[15:]))
    endit(6, True)
    e("s_mov_b32 s82, %d" % WS_F3)
    pl = ["buffer_load_dwordx4 v[20:23], v12, %s, s82 offen sc1" % sWS]
    e(pl); vm.op("f3")
    e(wd_setup(), wd_dma(0, 0, 4, vm, "1a", WDV))
    endit(7)
    e(stamp("b7"))
    e(vm.wait("f3"))
    e(check_retry(pl, [20, 21, 22, 23], 24))
    e(stamp("f3ok"))
    e("s_lshl_b32 s74, %s, 19" % W, "s_lshl_b32 s75, %s, 5" % CP, "s_add_u32 s74, s74, s75", "s_add_u32 s74, s74, %d" % WS_XT, "s_add_u32 s75, s74, 0x40000")
    e("buffer_load_dwordx4 v[20:23], v%d, %s, s74 offen sc1" % (UG, sWS)); vm.op("u")
    e("buffer_load_dwordx4 v[24:27], v%d, %s, s75 offen sc1" % (UG, sWS)); vm.op("u")
    e("s_or_b32 s74, s2, %s" % W, "s_cmp_eq_u32 s74, 0", "s_cselect_b32 s74, 0, 0x7ffffff0", "v_mov_b32 v16, %s" % TAG)
    e("s_mov_b64 exec, 1", "buffer_store_dword v16, off, %s, s74 sc1" % sWS, "s_mov_b64 exec, -1"); vm.op("eps")
    e(x2[19:], x3[14])
    e(wd_dma(0, 4, 6, vm, "1a", WDV))
    e(vm.wait("u"))
    for k in range(2):
        b = 20 + 4 * k
        e("ds_write_b128 v%d, %s offset:%d" % (UL, vr(b, 4), 64 + 512 * k))
        e("ds_write_b32 v%d, v%d offset:%d" % (UL, b, U_CP + 60 + 512 * k), "ds_write_b32 v%d, v%d offset:%d" % (UL, b + 1, U_CP + 64 + 512 * k),
          "ds_write_b32 v%d, v%d offset:%d" % (UL, b + 2, U_CP + 68 + 512 * k), "ds_write_b32 v%d, v%d offset:%d" % (UL, b + 3, U_CP + 72 + 512 * k))
    e("s_waitcnt lgkmcnt(0)")
    e(lds_signal(C_U, 16))
    e(stamp("uwr"))
    e(wd_dma(0, 10, 10, vm, "1b", WDV))
    e(vm.wait("1a"), lds_signal(C_B1, 16))
    e(lds_wait(C_A1, 4, 16))
    e("s_setprio 2")
    e(wd_dma(40, 0, 10, vm, "1c", WDV))
    e(stamp("iss1c"))
    e(lds_wait(C_U, 4, 16))
    CA = 32; FB = (64, 128)
    def reads(rho, buf):
        o = []
        for i in range(8):
            o.append("ds_read_b128 %s, v%d offset:%d" % (vr(buf + 4 * i, 4), VK, 512 * (7 - i) + 64 * rho))
            o.append("ds_read_b64 %s, v%d offset:%d" % (vr(buf + 32 + 4 * i, 2), VU, 512 * i + 64 * rho))
            o.append("ds_read_b64 %s, v%d offset:%d" % (vr(buf + 34 + 4 * i, 2), VU, 512 * i + 64 * rho + 8))
        return o
    e(reads(0, FB[0]))
    e(lds_wait(C_G, 4, 16))
    e(stamp("cvgo"))
    e("s_mov_b32 s79, 0", "L_cv:")
    for rho in range(2):
        buf = FB[rho]
        pairs = sorted([(sg, t) for t in range(8) for sg in range(t + 1)])
        mf = ["v_mfma_f32_16x16x32_bf16 %s, %s, %s, %s" % (vr(CA + 4 * t, 4), vr(buf + 4 * (t - sg), 4), vr(buf + 32 + 4 * sg, 4), vr(CA + 4 * t, 4)) for sg, t in pairs]
        e("s_waitcnt lgkmcnt(0)")
        fill = reads(rho + 1, FB[1 - rho])
        if rho == 1: fill += ["v_add_u32 v%d, 128, v%d" % (VK, VK), "v_add_u32 v%d, 128, v%d" % (VU, VU)]
        e(interleave(mf, fill, per=1))
    e(vm.all(), lds_signal(C_B2, 16))
    e("s_add_u32 s79, s79, 1", "s_cmp_lt_u32 s79, 2", "s_cbranch_scc1 L_cv")
    e(stamp("conv"))
    e("s_waitcnt lgkmcnt(0)", lds_signal(C_CV, 18))
    e("s_lshl_b32 s74, %s, 12" % W, "s_add_u32 s74, s74, %d" % R_BASE, "v_add_u32 v24, s74, v12", "v_xor_b32 v25, 4096, v12", "s_xor_b32 s75, %s, 1" % W,
      "s_lshl_b32 s75, s75, 12", "s_add_u32 s75, s75, %d" % R_BASE, "v_add_u32 v25, s75, v12")
    e(lds_wait(C_CV, 4, 18))
    lo, dn = newlab("rlo"), newlab("rdn")
    e("s_cmp_eq_u32 %s, 0" % WN, "s_cbranch_scc1 " + lo)
    for k in range(4): e("ds_write_b128 v24, %s offset:%d" % (vr(CA + 4 * k, 4), 1024 * k))
    e("s_waitcnt lgkmcnt(0)")
    for k in range(16): e("v_mov_b32 v%d, v%d" % (CA + k, CA + 16 + k))
    e("s_branch " + dn, lo + ":")
    for k in range(4): e("ds_write_b128 v24, %s offset:%d" % (vr(CA + 16 + 4 * k, 4), 1024 * k))
    e(dn + ":")
    e("s_waitcnt lgkmcnt(0)", lds_signal(C_X, 18))
    e(lds_wait(C_X, 4, 18))
    for k in range(4): e("ds_read_b128 %s, v25 offset:%d" % (vr(64 + 4 * k, 4), 1024 * k))
    e("v_lshrrev_b32 v16, 4, v1", "v_lshlrev_b32 v16, 17, v16", "v_and_b32 v17, 15, v1", "v_lshl_add_u32 v16, v17, 4, v16")
    e("s_lshl_b32 s74, %s, 1" % CP, "s_add_u32 s74, s74, %s" % WM, "s_lshl_b32 s74, s74, 8", "s_lshl_b32 s75, %s, 21" % WN, "s_add_u32 s74, s74, s75", "s_add_u32 s74, s74, %d" % WS_Z)
    for k in range(4): e("v_mov_b32 v%d, %s" % (50 + 4 * k, TAG), "v_mov_b32 v%d, %s" % (51 + 4 * k, TAG))
    e("s_waitcnt lgkmcnt(0)")
    for k in range(8): e("v_pk_add_f32 %s, %s, %s" % (vr(CA + 2 * k, 2), vr(CA + 2 * k, 2), vr(64 + 2 * k, 2)))
    for k in range(4):
        e(cv(48 + 4 * k, CA + 4 * k, CA + 4 * k + 1), cv(49 + 4 * k, CA + 4 * k + 2, CA + 4 * k + 3))
        if k: e("s_add_u32 s74, s74, 0x80000")
        e("buffer_store_dwordx4 %s, v16, %s, s74 offen sc1" % (vr(48 + 4 * k, 4), sWS)); vm.op("z")
    e(stamp("zst"))
    e(wd_setup(), wd_dma(80, 0, 3, vm, "2b", WDV))
    e(final_xload(vm, XF, XFA))
    e(vm.all(), lds_signal(C_B3, 16))
    e(lds_wait(C_P, 4, 16))
    e("s_lshl_b32 s74, %s, 17" % I2, "s_lshl_b32 s75, %s, 14" % J2, "s_add_u32 s74, s74, s75", "s_lshl_b32 s75, %s, 12" % W, "s_add_u32 s74, s74, s75",
      "s_add_u32 s82, s74, %d" % WS_Z)
    pl = ["buffer_load_dwordx4 %s, v12, %s, s82 offen offset:%d sc1" % (vr(64 + 4 * q, 4), sWS, 1024 * q) for q in range(4)]
    e(pl)
    e("s_lshl_b32 s75, %s, 11" % W, "v_lshrrev_b32 v16, 4, v1", "v_lshlrev_b32 v16, 7, v16", "v_and_b32 v17, 15, v1", "v_lshl_add_u32 v16, v17, 2, v16", "v_add_u32 v16, s75, v16",
      "v_add_u32 v16, %d, v16" % Z_LDS, "v_add_u32 v17, 1024, v16")
    e(vm.all())
    e(check_retry(pl, [66, 70, 74, 78], 18))
    e(stamp("zpoll"))
    for q in range(4): e("ds_write2_b32 v%d, v%d, v%d offset0:%d offset1:%d" % (16 + (q >> 1), 64 + 4 * q, 65 + 4 * q, 128 * (q & 1), 128 * (q & 1) + 16))
    e("v_bfe_u32 v14, v1, 2, 2", "v_lshlrev_b32 v14, 7, v14", "v_lshrrev_b32 v15, 4, v1", "v_lshl_add_u32 v14, v15, 5, v14", "v_and_b32 v15, 3, v1", "v_lshl_add_u32 v14, v15, 3, v14",
      "s_add_u32 s75, s75, %d" % Z_LDS, "v_add_u32 v14, s75, v14")
    e("v_mul_u32_u24 v15, 272, v1", "s_lshl_b32 s75, %s, 6" % W, "s_add_u32 s75, s75, %d" % P2, "v_add_u32 v15, s75, v15")
    e("s_waitcnt lgkmcnt(0)")
    for q in range(4): e("ds_read_b64_tr_b16 %s, v14 offset:%d" % (vr(20 + 2 * q, 2), 512 * q))
    e(lds_wait(C_B3, 4, 40))
    for k in range(8): e("v_lshlrev_b32 v%d, 16, v%d" % (32 + 2 * k, 20 + k), "v_and_b32 v%d, 0xffff0000, v%d" % (33 + 2 * k, 20 + k))
    for q in range(4): e("ds_write_b128 v15, %s offset:%d" % (vr(32 + 4 * q, 4), 16 * q))
    e("s_waitcnt lgkmcnt(0)")

def final():
    e("L_final:")
    e("v_lshrrev_b32 v14, 3, v0", "v_mul_u32_u24 v14, 272, v14", "v_and_b32 v15, 7, v0", "v_lshl_add_u32 v14, v15, 5, v14", "v_add_u32 v15, %d, v14" % P2, "v_add_u32 v14, %d, v14" % PB)
    for j in range(4): e("v_lshlrev_b32 v%d, 16, v%d" % (32 + 2 * j, XF + j), "v_and_b32 v%d, 0xffff0000, v%d" % (33 + 2 * j, XF + j))
    e("s_barrier")
    e(stamp("fin"))
    e("ds_read_b128 v[16:19], v14", "ds_read_b128 v[20:23], v14 offset:16",
      "ds_read_b128 v[24:27], v14 offset:%d" % (64 * 272), "ds_read_b128 v[28:31], v14 offset:%d" % (64 * 272 + 16),
      "ds_read_b128 v[40:43], v15", "ds_read_b128 v[44:47], v15 offset:16")
    e("s_waitcnt lgkmcnt(2)")
    for j in range(4): e("v_pk_add_f32 %s, %s, %s" % (vr(16 + 2 * j, 2), vr(16 + 2 * j, 2), vr(24 + 2 * j, 2)))
    e("s_waitcnt lgkmcnt(0)")
    for j in range(4): e("v_pk_add_f32 %s, %s, %s" % (vr(32 + 2 * j, 2), vr(32 + 2 * j, 2), vr(40 + 2 * j, 2)))
    for j in range(4): e("v_pk_add_f32 %s, %s, %s" % (vr(16 + 2 * j, 2), vr(16 + 2 * j, 2), vr(32 + 2 * j, 2)))
    for j in range(4): e("v_cvt_pk_bf16_f32 v%d, v%d, v%d" % (24 + j, 16 + 2 * j, 17 + 2 * j))
    e("global_store_dwordx4 v%d, v[24:27], s[38:39]" % XFA)
    if DEBUG:
        e("s_waitcnt vmcnt(0)")
        e(stamp("end"))
        e("s_memrealtime s[96:97]", "s_waitcnt lgkmcnt(0)", "v_writelane_b32 v255, s96, 63", "v_writelane_b32 v255, s98, 62")
        e("s_lshl_b32 s74, s2, 11", "s_add_u32 s74, s74, %d" % WS_DBG, "v_lshlrev_b32 v14, 2, v0")
        e("buffer_store_dword v255, v14, %s, s74 offen" % sWS)
        if "--dbgout" in sys.argv:
            e("s_not_b32 s98, s98", "v_mov_b32 v20, s98", "v_mov_b32 v21, s96", "v_mov_b32 v22, 0")
            e("s_cmp_lg_u32 %s, 0" % WAVE, "s_cbranch_scc1 L_end")
            e("s_mov_b64 exec, 1")
            e("global_atomic_umax v22, v20, s[40:41]", "global_atomic_umax v22, v21, s[40:41] offset:4")
            e("s_mov_b64 exec, -1")
            e("s_cmp_lg_u32 s2, 40", "s_cbranch_scc1 L_end")
            sel = ["lnld", "kgen", "st0", "st2", "st6", "st7", "loopend", "gelu", "hack", "hpoll", "b9", "b10"]
            e("v_readlane_b32 s74, v255, 0")
            for n, nm in enumerate(sel + ["fin", "end"]):
                k = {"fin": 60, "end": 61}.get(nm) or STAMPS["A"].index(nm) + 1
                e("v_readlane_b32 s75, v255, %d" % k, "s_sub_u32 s75, s75, s74", "v_mov_b32 v20, s75", "s_mov_b64 exec, 1",
                  "global_store_dword v22, v20, s[40:41] offset:%d" % (8 + 4 * n), "s_mov_b64 exec, -1")
    if "--double" in sys.argv:
        e("s_waitcnt vmcnt(0)", "s_memrealtime s[96:97]", "s_waitcnt lgkmcnt(0)", "s_sub_u32 s74, s96, s98", "s_min_u32 s74, s74, 20000",
          "L_spin:", "s_memrealtime s[92:93]", "s_waitcnt lgkmcnt(0)", "s_sub_u32 s75, s92, s96", "s_cmp_lt_u32 s75, s74", "s_cbranch_scc1 L_spin")
    if PROBE:
        e("s_waitcnt vmcnt(0)", stamp("end"), "s_cmp_ge_u32 %s, 4" % WAVE, "s_cbranch_scc1 L_end", "s_memrealtime s[96:97]", "s_waitcnt lgkmcnt(0)", "s_sub_u32 s74, s99, s98", "s_min_u32 s74, s74, 20000",
          "L_spin:", "s_memrealtime s[92:93]", "s_waitcnt lgkmcnt(0)", "s_sub_u32 s75, s92, s96", "s_cmp_lt_u32 s75, s74", "s_cbranch_scc1 L_spin")
    e("L_end:", "s_endpgm")

entry()
prologue()
ROLE[0] = "A"
vm = a_p0()
a_main(vm)
ROLE[0] = "B"
e("L_B:")
b_path()
ROLE[0] = "AB"
final()
body, npad = pad_hazards(L)

hdr = open("cdna_kernels/%s.s.ref" % NAME).read().split("; Override launch")[0]
out = hdr + "; @launch grid=(256,1,1) block=(512,1,1) lds=163840\n"
out += '.amdgcn_target "amdgcn-amd-amdhsa--gfx950"\n.text\n.globl %s_kernel\n.p2align 8\n.type %s_kernel,@function\n%s_kernel:\n' % (NAME, NAME, NAME)
out += "\n".join(body) + "\n"
out += '''.section .rodata,"a"
.p2align 6
.amdhsa_kernel %s_kernel
  .amdhsa_next_free_vgpr 256
  .amdhsa_next_free_sgpr 102
  .amdhsa_accum_offset 256
  .amdhsa_group_segment_fixed_size 0
  .amdhsa_kernarg_size 112
  .amdhsa_user_sgpr_count 2
  .amdhsa_user_sgpr_kernarg_segment_ptr 1
  .amdhsa_system_sgpr_workgroup_id_x 1
.end_amdhsa_kernel
''' % NAME
path = [a for a in sys.argv[1:] if not a.startswith("--")]
path = path[0] if path else "cdna_kernels/%s.s" % NAME
open(path, "w").write(out)
print("wrote", path, "lines", len(body), "nops inserted", npad)
if DEBUG:
    import json
    json.dump(STAMPS, open(path[:-2] + ".json", "w"))
```

```python
import sys, struct, math
from asmlib import *

NAME = "parallel_sum__ssm_conv_s4d__geglu_ffn__prompt"
DEBUG = "--stamps" in sys.argv
NCLS = int(([a[6:] for a in sys.argv if a.startswith("--cls=")] + ["8"])[0])
NS = 8 // NCLS

def f2u(x): return struct.unpack("<I", struct.pack("<f", x))[0]
def hx(x): return "0x%08x" % (x & 0xffffffff)
LOG2E = hx(f2u(1.4426950408889634))
INV2PI = hx(f2u(0.15915494309189535))
GK1 = -2.0 * math.sqrt(2.0 / math.pi) * 1.4426950408889634
GK2 = GK1 * 0.044715

WS_EPOCH = 0
WS_F3 = 0x1000
WS_ST = 0x2000
WS_CS = 0xD00000
WS_F4 = 0x50000
WS_F5 = 0x70000
WS_DBG = 0x80000
WS_XT = 0x100000
WS_Z = 0x300000
WS_H = 0x700000
WS_SIZE = 0x1000000
SLOT = 41024
XOFF, WOFF, WMAT = 0, 16384, 12320
RB = 40768
R_CP = 4640
U_CP = 4224
U_BASE = 0
R_BASE = RB - 4 * R_CP
T_BASE = 16
LNS = T_BASE + 4 * 3072
LNP = 1088
CNT_BASE = LNS + 8 * LNP
C_X, C_B1, C_A2, C_U, C_CV, C_G, C_B2, C_A3, C_P, C_A1, C_B3, C_A4, C_OP = [CNT_BASE + 16 * i for i in range(13)]
E_W = 53 * 272
E_BASE = RB + SLOT - 4 * E_W
assert E_BASE >= R_BASE and CNT_BASE + 256 <= R_BASE and 4 * U_CP <= CNT_BASE and RB + 3 * SLOT == 163840
W14, Z_LDS, P2, PB = 4 * U_CP, 0, R_BASE, RB + 49152
OPA, OPC = 4 * U_CP, 0
ROT = '--rot' in sys.argv
def slot_of(st): return (st + 1) % 3
RING0 = RB + slot_of(0) * SLOT
SPIN = 20000

sX, sWG, sWU, sWD, sWS = "s[44:47]", "s[48:51]", "s[52:55]", "s[56:59]", "s[60:63]"
XCD, IDX, MT, FT, WAVE, TAG, W, G = "s64", "s65", "s66", "s67", "s68", "s69", "s70", "s71"
KS, I2, J2, CP, CNT = "s90", "s91", "s92", "s93", "s94"
WM, WN = "s88", "s89"
W4 = "s100"

SLOW = []
L = []
def e(*xs):
    for x in xs:
        if isinstance(x, (list, tuple)): e(*x)
        else: L.append(x)

def vr(a, n): return "v[%d:%d]" % (a, a + n - 1)

class VM:
    def __init__(self): self.q = []
    def op(self, lab): self.q.append(lab)
    def wait(self, lab):
        idx = max(i for i, x in enumerate(self.q) if x == lab)
        n = len(self.q) - 1 - idx
        self.q = self.q[idx + 1:]
        assert n <= 63
        return "s_waitcnt vmcnt(%d)" % n
    def all(self):
        self.q = []
        return "s_waitcnt vmcnt(0)"

STAMPS = {"A": [], "B": []}
ROLE = ["AB"]
def stamp(name):
    if not DEBUG: return []
    if ROLE[0] == "AB":
        k = {"start": 0, "fin": 60, "end": 61}[name]
    else:
        lst = STAMPS[ROLE[0]]
        if name not in lst: lst.append(name)
        k = lst.index(name) + 1
        assert k < 60
    o = ["s_memtime s[96:97]", "s_waitcnt lgkmcnt(0)", "v_writelane_b32 v255, s96, %d" % k]
    if "--rt" in sys.argv: o = ["s_memrealtime s[96:97]"] + o[1:]
    return o

def tag_from(v):
    return ["v_readfirstlane_b32 %s, %s" % (TAG, v), "s_mul_i32 %s, %s, 0x9E3779B1" % (TAG, TAG),
            "s_add_u32 %s, %s, 0x7F4A7C15" % (TAG, TAG)]

lab_n = [0]
def newlab(p):
    lab_n[0] += 1
    return "L_%s_%d" % (p, lab_n[0])

NAP = int(([a[6:] for a in sys.argv if a.startswith('--nap=')] + ['1'])[0])
def check_retry(loads, tagregs, tmp, nap=1):
    top, done = newlab("chk"), newlab("ok")
    o = ["s_mov_b32 %s, %d" % (CNT, SPIN), top + ":"]
    o.append("v_xor_b32 v%d, %s, v%d" % (tmp, TAG, tagregs[0]))
    for r in tagregs[1:]:
        o.append("v_xor_b32 v%d, %s, v%d" % (tmp + 1, TAG, r))
        o.append("v_or_b32 v%d, v%d, v%d" % (tmp, tmp, tmp + 1))
    o.append("v_cmp_ne_u32 vcc, 0, v%d" % tmp)
    o.append("s_nop 1")
    o.append("s_cbranch_vccz " + done)
    o.append("s_sub_u32 %s, %s, 1" % (CNT, CNT))
    o.append("s_cbranch_scc1 " + done)
    o.append("s_sleep %d" % nap)
    o += loads
    o.append("s_waitcnt vmcnt(0)")
    o.append("s_branch " + top)
    o.append(done + ":")
    return o

def lds_signal(addr, t):
    return ["v_mov_b32 v%d, %s" % (t, W4), "v_mov_b32 v%d, 1" % (t + 1), "ds_write_b32 v%d, v%d offset:%d" % (t, t + 1, addr)]

def lds_wait(addr, target, t, q=None):
    top, done = newlab("lw"), newlab("lwd")
    if q is None: q = t + 2
    return ["v_mov_b32 v%d, 0" % t, "s_mov_b32 %s, 0x400000" % CNT, top + ":", "ds_read_b128 %s, v%d offset:%d" % (vr(q, 4), t, addr), "s_waitcnt lgkmcnt(0)",
            "v_and_b32 v%d, v%d, v%d" % (q, q, q + 1), "v_and_b32 v%d, v%d, v%d" % (q + 2, q + 2, q + 3), "v_and_b32 v%d, v%d, v%d" % (q, q, q + 2),
            "v_readfirstlane_b32 s95, v%d" % q, "s_cmp_lg_u32 s95, 0", "s_cbranch_scc1 " + done,
            "s_sleep 1", "s_sub_u32 %s, %s, 1" % (CNT, CNT), "s_cbranch_scc0 " + top, done + ":"]

def flat(xs):
    o = []
    for x in xs:
        if isinstance(x, list): o += flat(x)
        else: o.append(x)
    return o

def merge(a, b):
    a, b = flat(a), flat(b)
    o = []; i = j = 0
    while i < len(a) or j < len(b):
        if j >= len(b) or (i < len(a) and i * len(b) <= j * len(a)): o.append(a[i]); i += 1
        else: o.append(b[j]); j += 1
    return o

def entry():
    e("s_load_dwordx16 s[16:31], s[0:1], 0", "s_load_dwordx8 s[32:39], s[0:1], 64", "s_load_dwordx4 s[40:43], s[0:1], 96")
    e("s_cmp_ge_u32 s2, 256", "s_cbranch_scc1 L_end")
    e("s_getpc_b64 s[76:77]", "L_pc:", "s_lshr_b32 %s, s2, 3" % IDX, "v_and_b32 v2, 0x1c0, v0", "s_lshl_b32 s74, %s, 10" % IDX, "v_lshl_add_u32 v2, v2, 1, s74",
      "v_min_u32 v2, L_end-L_pc, v2", "global_load_dword v252, v2, s[76:77]")
    e("v_readfirstlane_b32 %s, v0" % WAVE)
    if DEBUG or "--double" in sys.argv:
        e("v_mov_b32 v255, 0", "s_memrealtime s[98:99]")

def ids_early():
    e("v_and_b32 v1, 63, v0", "s_and_b32 %s, s2, 7" % XCD)
    if "--nobal" not in sys.argv:
        e("s_lshr_b32 s74, %s, 1" % XCD, "s_mul_i32 s75, s74, 30", "s_add_u32 s75, s75, %s" % IDX, "s_lshl1_add_u32 s74, s74, %s" % IDX, "s_add_u32 s74, s74, 90",
          "s_cmp_lt_u32 %s, 30" % IDX, "s_cselect_b32 s75, s75, s74", "s_lshr_b32 %s, s75, 3" % FT, "s_and_b32 s75, s75, 7", "s_and_b32 s74, s2, 1", "s_lshl3_add_u32 %s, s74, s75" % MT)
    else:
        e("s_and_b32 s74, s2, 1", "s_and_b32 s75, %s, 7" % IDX, "s_lshl3_add_u32 %s, s74, s75" % MT)
        e("s_lshr_b32 s74, %s, 1" % XCD, "s_lshr_b32 s75, s2, 6", "s_lshl2_add_u32 %s, s74, s75" % FT)
    e("s_bfe_u32 %s, %s, 0x20006" % (W, WAVE), "v_lshlrev_b32 v12, 4, v1")
    e("s_lshl_b32 s74, %s, 5" % XCD, "s_add_u32 %s, s74, %s" % (CP, IDX), "s_lshl_b32 s15, %s, 2" % CP, "v_mov_b32 v15, 0")
    if NCLS == 8: e("s_lshl1_add_u32 s74, %s, %s" % (FT, MT), "s_and_b32 %s, s74, 7" % KS)
    else: e("s_add_u32 s74, %s, %s" % (FT, MT), "s_and_b32 s74, s74, %d" % (NCLS - 1), "s_mul_i32 %s, s74, %d" % (KS, NS))
    e("s_cmp_eq_u32 %s, 15" % FT)
    e("s_cselect_b32 s87, %s, %s" % (MT, FT), "s_cselect_b32 s86, 0, %s" % KS, "s_cselect_b32 s46, 0, 0x200000")
    e("s_mov_b32 s47, 0x20000")

def ids_late():
    e("s_lshr_b32 %s, %s, 6" % (WAVE, WAVE))
    e("s_mov_b32 s59, s47", "s_mov_b32 s63, s47", "s_mov_b32 s58, 1409024", "s_mov_b32 s62, %d" % WS_SIZE)
    e("s_mov_b32 s60, s42", "s_mov_b32 s61, s43", "s_mov_b32 s56, s36", "s_mov_b32 s57, s37")
    if "--oldmap" not in sys.argv and "--smap" not in sys.argv:
        e("s_and_b32 s75, %s, 3" % IDX, "s_lshr_b32 s74, %s, 1" % XCD, "s_lshl2_add_u32 s75, s74, s75", "s_andn2_b32 s74, 1, s2", "s_lshl4_add_u32 %s, s74, s75" % I2, "s_lshr_b32 %s, %s, 2" % (J2, IDX))
    elif "--smap" in sys.argv:
        e("s_and_b32 s75, %s, 3" % IDX, "s_lshr_b32 s74, %s, 1" % XCD, "s_lshl2_add_u32 s75, s74, s75", "s_and_b32 s74, 1, s2", "s_lshl4_add_u32 %s, s74, s75" % I2, "s_lshr_b32 %s, %s, 2" % (J2, IDX))
    else:
        e("s_and_b32 s75, %s, 3" % IDX, "s_lshl2_add_u32 %s, %s, s75" % (I2, XCD), "s_lshr_b32 %s, %s, 2" % (J2, IDX))
    e("s_lshr_b32 %s, %s, 1" % (WM, W), "s_and_b32 %s, %s, 1" % (WN, W), "s_lshl_b32 %s, %s, 2" % (W4, W))

def prologue():
    ids_early()
    d0 = stage_dma(0, VM())
    slot = RB + slot_of(0) * SLOT
    e("s_lshl2_add_u32 s74, %s, %s" % (CP, W), "s_lshl_b32 s74, s74, 7", "v_lshl_add_u32 v14, v1, 1, s74")
    e("s_lshl4_add_u32 %s, %s, %s" % (G, MT, FT), "s_lshl2_add_u32 s74, %s, %s" % (G, W), "s_lshl_b32 s74, s74, 11", "v_add_u32 v13, s74, v12")
    dma_setup_x()
    dma_setup_w()
    e(d0[:6])
    e("s_mov_b32 s51, s47", "s_mov_b32 s55, s47", "s_mov_b32 s11, s47", "s_mov_b32 s50, 1409024")
    e("s_cmp_ge_u32 %s, 256" % WAVE)
    e("s_waitcnt lgkmcnt(0)")
    e(stamp("start"))
    e("s_cbranch_scc1 L_B0")
    for i in range(4): e("global_load_ushort v%d, v14, s[%d:%d]" % (24 + i, 18 + 2 * i, 19 + 2 * i))
    e("s_load_dword s14, s[26:27], s15")
    e("s_branch L_j0", "L_B0:")
    e("global_load_dwordx4 v[16:19], v13, s[16:17]", "global_load_dwordx4 v[20:23], v13, s[16:17] offset:1024")
    e("s_load_dword s14, s[28:29], s15")
    e("L_j0:")
    e("global_load_dword v29, v15, s[42:43] sc1")
    e("s_cselect_b32 s74, 2048, 0", "s_cselect_b32 s75, %d, 0" % WMAT, "s_mov_b32 s44, s16", "s_mov_b32 s45, s17")
    e("s_add_u32 s76, s80, s74", "s_lshl3_add_u32 s78, s74, s78", "s_add_u32 m0, s76, %d" % slot, "s_add_u32 s77, s81, s75")
    e("buffer_load_dwordx4 v%d, %s, s78 offen lds" % (VX0, sX), "s_add_u32 s78, s78, 7168", "buffer_load_dwordx4 v%d, %s, s78 offen offset:1024 lds" % (VX1, sX))
    e("s_add_u32 s74, s36, %d" % (256 * 2752), "s_addc_u32 s75, s37, 0", "s_cmp_eq_u32 %s, 15" % FT)
    e("s_cselect_b64 s[48:49], s[36:37], s[32:33]", "s_cselect_b64 s[52:53], s[74:75], s[34:35]", "s_cselect_b32 s54, %d, s50" % (256 * 2752))
    if "--nowarm" in sys.argv: e("s_cselect_b32 s50, 0, s50", "s_cselect_b32 s54, 0, s54")
    e("s_add_u32 m0, s77, %d" % (slot + WOFF))
    e("s_cmp_ge_u32 %s, 256" % WAVE, "s_cselect_b64 s[8:9], s[52:53], s[48:49]", "s_cselect_b32 s10, s54, s50")
    for i in range(3): e("buffer_load_dwordx4 v%d, s[8:11], s79 offen offset:%d lds" % (VW + i, 1024 * i))
    ids_late()
    e("s_cmp_ge_u32 %s, 4" % WAVE, "s_cbranch_scc1 L_B")

XA, XA2, WA, WA2 = 2, 6, 10, 11
ACC, ONEACC, FR0, FR1, ONES = 64, 160, 208, 228, 248

def cmul(dst, a, w, t):
    return ["v_pk_mul_f32 %s, %s, %s op_sel:[0,0] op_sel_hi:[0,1]" % (vr(t, 2), vr(a, 2), vr(w, 2)),
            "v_pk_fma_f32 %s, %s, %s, %s op_sel:[1,1,0] op_sel_hi:[1,0,1] neg_lo:[1,0,0]" % (vr(dst, 2), vr(a, 2), vr(w, 2), vr(t, 2))]

def wave_sums(regs, sregs):
    o = []
    for m in ("row_shr:1", "row_shr:2", "row_shr:4", "row_shr:8"):
        for r in regs: o.append("v_add_f32_dpp v%d, v%d, v%d %s row_mask:0xf bank_mask:0xf" % (r, r, r, m))
    for r in regs: o.append("v_add_f32_dpp v%d, v%d, v%d row_bcast:15 row_mask:0xa bank_mask:0xf" % (r, r, r))
    for r in regs: o.append("v_add_f32_dpp v%d, v%d, v%d row_bcast:31 row_mask:0xc bank_mask:0xf" % (r, r, r))
    o += ["v_readlane_b32 %s, v%d, 63" % (sr, r) for r, sr in zip(regs, sregs)]
    return o

def ln_ops(vm):
    o = []
    F, D, T = 160, 176, 192
    for r in range(2):
        for j in range(4):
            o += ["v_lshlrev_b32 v%d, 16, v%d" % (F + 8 * r + 2 * j, 16 + 4 * r + j), "v_and_b32 v%d, 0xffff0000, v%d" % (F + 8 * r + 2 * j + 1, 16 + 4 * r + j)]
    o += ["v_readfirstlane_b32 s4, v%d" % F, "v_readfirstlane_b32 s6, v%d" % (F + 8)]
    for j in range(4):
        for r in range(2):
            o.append("v_pk_add_f32 %s, %s, s[%d:%d] op_sel_hi:[1,0] neg_lo:[0,1] neg_hi:[0,1]" % (vr(D + 8 * r + 2 * j, 2), vr(F + 8 * r + 2 * j, 2), 4 + 2 * r, 5 + 2 * r))
    for r in range(2):
        d = D + 8 * r; t = T + 6 * r
        o += ["v_pk_add_f32 %s, %s, %s" % (vr(t, 2), vr(d, 2), vr(d + 2, 2)), "v_pk_add_f32 %s, %s, %s" % (vr(t + 2, 2), vr(d + 4, 2), vr(d + 6, 2)),
              "v_pk_mul_f32 %s, %s, %s" % (vr(t + 4, 2), vr(d, 2), vr(d, 2))]
    for j in range(1, 4):
        for r in range(2):
            d = D + 8 * r; t = T + 6 * r
            o.append("v_pk_fma_f32 %s, %s, %s, %s" % (vr(t + 4, 2), vr(d + 2 * j, 2), vr(d + 2 * j, 2), vr(t + 4, 2)))
            if j == 1: o.append("v_pk_add_f32 %s, %s, %s" % (vr(t, 2), vr(t, 2), vr(t + 2, 2)))
    for r in range(2):
        t = T + 6 * r
        o += ["v_add_f32 v%d, v%d, v%d" % (t, t, t + 1), "v_add_f32 v%d, v%d, v%d" % (t + 4, t + 4, t + 5)]
    o += wave_sums([T, T + 6, T + 4, T + 10], ["s8", "s9", "s10", "s11"])
    c = 204
    o += ["v_mov_b32 v%d, 0x3b000000" % c]
    o += ["v_mul_f32 v%d, s8, v%d" % (T, c), "v_mul_f32 v%d, s9, v%d" % (T + 1, c), "v_mul_f32 v%d, s10, v%d" % (T + 2, c), "v_mul_f32 v%d, s11, v%d" % (T + 3, c)]
    o += ["v_fma_f32 v%d, -v%d, v%d, v%d" % (T + 2, T, T, T + 2), "v_fma_f32 v%d, -v%d, v%d, v%d" % (T + 3, T + 1, T + 1, T + 3)]
    o += ["v_add_f32 v%d, s4, v%d" % (T, T), "v_add_f32 v%d, s6, v%d" % (T + 1, T + 1)]
    o += ["v_max_f32 v%d, 0, v%d" % (T + 2, T + 2), "v_max_f32 v%d, 0, v%d" % (T + 3, T + 3)]
    MB, M0, S0, S1, RI = T + 4, T + 6, T + 10, T + 11, D
    o += ["v_cvt_pk_bf16_f32 v%d, v%d, v%d" % (MB, T, T + 1), "v_cvt_pk_bf16_f32 v%d, v%d, v%d" % (T + 2, T + 2, T + 3)]
    o += ["v_lshlrev_b32 v%d, 16, v%d" % (M0, MB), "v_and_b32 v%d, 0xffff0000, v%d" % (M0 + 2, MB)]
    o += ["v_lshlrev_b32 v%d, 16, v%d" % (S0, T + 2), "v_and_b32 v%d, 0xffff0000, v%d" % (S1, T + 2)]
    o += ["v_add_f32 v%d, %s, v%d" % (S0, hx(f2u(1e-5)), S0), "v_add_f32 v%d, %s, v%d" % (S1, hx(f2u(1e-5)), S1)]
    sub = [["v_pk_add_f32 %s, %s, %s op_sel_hi:[1,0] neg_lo:[0,1] neg_hi:[0,1]" % (vr(F + 8 * r + 2 * j, 2), vr(F + 8 * r + 2 * j, 2), vr(M0 + 2 * r, 2)) for j in range(4)] for r in range(2)]
    o += ["v_cvt_pk_bf16_f32 v%d, v%d, v%d" % (T + 2, S0, S1)] + sub[0][:2]
    o += ["v_lshlrev_b32 v%d, 16, v%d" % (S0, T + 2), "v_and_b32 v%d, 0xffff0000, v%d" % (S1, T + 2)] + sub[0][2:]
    o += ["v_sqrt_f32 v%d, v%d" % (S0, S0), "v_sqrt_f32 v%d, v%d" % (S1, S1)] + sub[1][:2]
    o += ["v_cvt_pk_bf16_f32 v%d, v%d, v%d" % (T + 2, S0, S1)] + sub[1][2:]
    o += ["v_lshlrev_b32 v%d, 16, v%d" % (S0, T + 2), "v_and_b32 v%d, 0xffff0000, v%d" % (S1, T + 2)]
    o += ["v_rcp_f32 v%d, v%d" % (RI, S0), "v_rcp_f32 v%d, v%d" % (RI + 2, S1)]
    for r in range(2):
        for j in range(4): o.append("v_pk_mul_f32 %s, %s, %s op_sel_hi:[1,0]" % (vr(F + 8 * r + 2 * j, 2), vr(F + 8 * r + 2 * j, 2), vr(RI + 2 * r, 2)))
    for r in range(2):
        for j in range(4): o.append("v_cvt_pk_bf16_f32 v%d, v%d, v%d" % (16 + 4 * r + j, F + 8 * r + 2 * j, F + 8 * r + 2 * j + 1))
    o += ["s_mul_i32 s4, %s, %d" % (W, 2 * LNP), "s_add_u32 s4, s4, %d" % LNS, "v_add_u32 v%d, s4, v12" % c]
    o += ["ds_write_b128 v%d, v[16:19]" % c, "ds_write_b128 v%d, v[20:23] offset:%d" % (c, LNP)]
    o += tag_from("v29")
    o += ["v_xor_b32 v%d, 0x80008000, v%d" % (MB, MB), "v_and_b32 v%d, 0xffff, v%d" % (T, MB), "v_or_b32 v%d, v%d, v%d" % (T, T, S0),
          "v_lshrrev_b32 v%d, 16, v%d" % (T + 1, MB), "v_or_b32 v%d, v%d, v%d" % (T + 1, T + 1, S1),
          "v_cmp_eq_u32 vcc, 0, v1", "v_lshlrev_b32 v%d, 3, v1" % (T + 2), "v_cndmask_b32 v%d, v%d, v%d, vcc" % (T, T + 1, T), "v_mov_b32 v%d, %s" % (T + 1, TAG),
          "s_lshl_b32 s4, %s, 6" % G, "s_lshl_b32 s5, %s, 4" % W, "s_add_u32 s4, s4, s5", "s_add_u32 s4, s4, %d" % WS_ST]
    o.append(("s_mov_b64 exec, 3", "buffer_store_dwordx2 %s, v%d, %s, s4 offen sc1" % (vr(T, 2), T + 2, sWS), "s_mov_b64 exec, -1"))
    vm.op("st")
    return o

def kgen_ops():
    o = []
    for i in range(5): o.append("v_lshlrev_b32 v%d, 16, v%d" % (24 + i, 24 + i))
    o += ["v_mul_f32 v28, %s, v28" % LOG2E, "v_mul_f32 v24, %s, v24" % LOG2E, "v_exp_f32 v28, v28", "v_exp_f32 v24, v24",
          "v_cvt_pk_bf16_f32 v24, v24, v28", "v_and_b32 v28, 0xffff0000, v24", "v_lshlrev_b32 v24, 16, v24",
          "v_mul_f32 v24, v24, v28", "v_mul_f32 v25, v25, v28",
          "v_mul_f32 v24, %s, v24" % hx(f2u(-1.4426950408889634)), "v_mul_f32 v25, %s, v25" % INV2PI, "v_add_f32 v28, v28, v28"]
    EA = 64
    o += ["v_mul_f32 v%d, v26, v28" % EA, "v_mul_f32 v%d, v27, v28" % (EA + 1)]
    Z1, Z8, Z256, Z32 = 30, 32, 34, 36
    zs = ((Z8, 8.0), (Z1, 1.0), (Z32, 32.0), (Z256, 256.0))
    for k, (z, p) in enumerate(zs):
        t = 116 + 4 * k
        o += ["v_mul_f32 v%d, %s, v24" % (t, hx(f2u(p))), "v_mul_f32 v%d, %s, v25" % (t + 1, hx(f2u(p)))]
    for k, (z, p) in enumerate(zs):
        t = 116 + 4 * k
        o += ["v_rndne_f32 v%d, v%d" % (t + 2, t + 1), "v_exp_f32 v%d, v%d" % (t, t)]
    for k, (z, p) in enumerate(zs):
        t = 116 + 4 * k
        o += ["v_sub_f32 v%d, v%d, v%d" % (t + 1, t + 1, t + 2)]
    for k, (z, p) in enumerate(zs):
        t = 116 + 4 * k
        o += ["v_cos_f32 v%d, v%d" % (z, t + 1), "v_sin_f32 v%d, v%d" % (z + 1, t + 1)]
    for k, (z, p) in enumerate(zs):
        t = 116 + 4 * k
        o += ["v_pk_mul_f32 %s, %s, %s op_sel_hi:[1,0]" % (vr(z, 2), vr(z, 2), vr(t, 2))]
    def wr(row, src, neg):
        t = 132 + ((row - 21) % 4 if not neg else (4 if row in (0, 1, 2, 3, 4, 5, 6, 7, 13, 15) else 5))
        return ["v_cvt_pk_bf16_f32 v%d, v%d, %sv%d" % (t, src, "-" if neg else "", src + 1), "ds_write_addtid_b32 v%d offset:%d" % (t, 4096 + row * 272)]
    plan = [(i, i - 1, Z1) for i in range(1, 8)] + [(13, 10, Z256), (15, 13, Z256)]
    plan2 = [(8, 0, Z256), (12, 8, Z256), (14, 12, Z256), (9, 2, Z256), (16, 14, Z256), (10, 4, Z256), (17, 16, Z256), (11, 6, Z256), (18, 17, Z256), (19, 18, Z256), (20, 19, Z256)]
    ca = [wr(0, EA, True)] + [cmul(EA + 2 * d, EA + 2 * s_, z, 54) + wr(d, EA + 2 * d, True) for d, s_, z in plan]
    cb = [cmul(EA + 2 * d, EA + 2 * s_, z, 56) + wr(d, EA + 2 * d, True) for d, s_, z in plan2]
    C = [38, 40, 42, 44]
    ch = [[], [], [], []]
    ch[0] = [["v_mov_b32 v140, 0x00003f80", "ds_write_addtid_b32 v140 offset:%d" % (4096 + 21 * 272)] + wr(25, Z32, False)]
    ch[1] = [wr(22, Z8, False)]
    ch[2] = [cmul(C[2], Z8, Z8, 50) + wr(23, C[2], False)]
    ch[3] = [[], cmul(C[3], C[2], Z8, 52) + wr(24, C[3], False)]
    for b in range(8, 32, 4): ch[0].append(cmul(C[0], Z32 if b == 8 else C[0], Z32, 46) + wr(21 + b, C[0], False))
    for b in range(5, 32, 4): ch[1].append(cmul(C[1], Z8 if b == 5 else C[1], Z32, 48) + wr(21 + b, C[1], False))
    ch[2].append([])
    for b in range(6, 32, 4): ch[2].append(cmul(C[2], C[2], Z32, 50) + wr(21 + b, C[2], False))
    for b in range(7, 32, 4): ch[3].append(cmul(C[3], C[3], Z32, 52) + wr(21 + b, C[3], False))
    chains = [ca, cb] + ch
    pend = []
    for i in range(max(len(c) for c in chains)):
        grp = [c[i] for c in chains if i < len(c) and c[i]]
        va, ds = [], []
        for k in range(max(len(x) for x in grp)):
            for x in grp:
                if k < len(x): (ds if x[k].startswith("ds_") else va).append(x[k])
        ncv = len([x for x in va if not x.startswith("v_pk")])
        npk = len(va) - ncv
        if npk >= len(pend) and pend: o += interleave(va[:npk], pend) + va[npk:]
        else: o += pend + va
        pend = ds
    o += pend
    return o

VX0, VX1, VW = 2, 3, 4
KD_ = "s86"
def stage_dma(st, vm):
    slot = RB + slot_of(st) * SLOT
    o = ["s_lshl_b32 s78, %s, 7" % KD_, "s_add_u32 s78, s78, s84", "s_mul_i32 s79, %s, %d" % (KD_, 64 * 2752), "s_add_u32 s79, s79, s85",
         "s_add_u32 %s, %s, 1" % (KD_, KD_), "s_and_b32 %s, %s, 7" % (KD_, KD_)]
    for i in range(4):
        g = ["s_add_u32 s78, s78, 7168"] if i else ["s_add_u32 m0, s80, %d" % slot]
        g.append("buffer_load_dwordx4 v%d, %s, s78 offen offset:%d lds" % (VX0 + (i & 1), sX, 1024 * i)); vm.op("st%d" % st)
        o.append(tuple(g))
    for m, srd in enumerate((sWG, sWU)):
        for i in range(3):
            g = [] if i else ["s_add_u32 m0, s81, %d" % (slot + WOFF + m * WMAT)]
            g.append("buffer_load_dwordx4 v%d, %s, s79 offen offset:%d lds" % (VW + i, srd, 1024 * i)); vm.op("st%d" % st)
            o.append(tuple(g))
    return o

def dma_setup_x():
    e("v_lshrrev_b32 v210, 3, v1", "v_and_b32 v211, 0x30, v1", "v_and_b32 v212, 0x70, v12", "v_xor_b32 v211, v211, v212",
      "v_lshl_add_u32 v%d, v210, 10, v211" % VX0, "v_xor_b32 v%d, 64, v%d" % (VX1, VX0))
    e("s_lshl_b32 s80, %s, 12" % W, "s_lshl2_add_u32 s84, %s, %s" % (MT, W), "s_lshl_b32 s84, s84, 15")

def dma_setup_w():
    e("v_mul_u32_u24 v210, 5462, v1", "s_movk_i32 s74, 2560")
    for i in range(3):
        if i: e("v_add_u32 v210, %d, v210" % (64 * 5462))
        e("v_lshrrev_b32 v211, 16, v210", "v_mad_u32_u24 v%d, v211, s74, v12" % (VW + i))
    if "--nomask" not in sys.argv:
        e("s_cmp_eq_u32 %s, 14" % FT, "s_cbranch_scc1 L_mask", "L_maskd:")
        mk = ["L_mask:", "v_mul_u32_u24 v210, 5462, v1", "v_mov_b32 v213, 0x7ff00000"]
        for i in range(3):
            if i: mk += ["v_add_u32 v210, %d, v210" % (64 * 5462)]
            mk += ["v_lshrrev_b32 v211, 16, v210", "v_mul_u32_u24 v211, 12, v211", "v_sub_u32 v211, v1, v211", "v_add_u32 v211, %d, v211" % (64 * i),
                   "v_cmp_lt_u32 vcc, 3, v211", "v_cndmask_b32 v%d, v%d, v213, vcc" % (VW + i, VW + i)]
        SLOW.extend(mk + ["s_branch L_maskd"])
    e("s_mul_i32 s81, %s, 3072" % W, "s_mul_i32 s85, s87, 192", "s_mul_i32 s74, %s, %d" % (W, 16 * 2752), "s_add_u32 s85, s85, s74")

def a_p0():
    vm = VM()
    e("v_and_b32 v30, 31, v1", "v_lshrrev_b32 v31, 5, v1")
    e("v_bfe_u32 v32, v1, 1, 3")
    e("s_lshl_b32 s74, %s, 13" % WM, "s_add_u32 s74, s74, %d" % RB, "v_lshl_add_u32 v33, v30, 7, s74")
    for s in range(4):
        e("v_add_u32 v34, %d, v31" % (2 * s), "v_xor_b32 v34, v34, v32", "v_lshl_add_u32 v%d, v34, 4, v33" % (XA + s),
          "v_add_u32 v%d, %d, v%d" % (XA2 + s, 2 * SLOT, XA + s))
    e("v_bfe_u32 v34, v1, 4, 1", "v_mul_u32_u24 v34, %d, v34" % WMAT)
    e("v_bfe_u32 v35, v1, 2, 2", "v_lshl_add_u32 v35, v31, 3, v35", "v_mul_u32_u24 v35, 192, v35")
    e("v_and_b32 v36, 3, v1", "v_lshlrev_b32 v36, 3, v36", "v_add3_u32 v34, v34, v35, v36")
    e("s_mul_i32 s74, %s, 96" % WN, "s_add_u32 s74, s74, %d" % (RB + WOFF), "v_add_u32 v%d, s74, v34" % WA, "v_add_u32 v%d, %d, v%d" % (WA2, 2 * SLOT, WA))
    e("s_mul_i32 s74, %s, %d" % (W, E_W), "s_add_u32 s74, s74, %d" % E_BASE, "s_sub_u32 m0, s74, 4096")
    e("v_mul_u32_u24 v14, 272, v30", "v_lshl_add_u32 v14, v31, 4, v14", "v_add_u32 v14, s74, v14")
    e("s_mul_i32 s75, %s, 3072" % W, "s_add_u32 s75, s75, %d" % T_BASE)
    TA = 58
    e("v_lshlrev_b32 v%d, 5, v30" % TA, "v_lshl_add_u32 v%d, v31, 4, v%d" % (TA, TA), "v_add_u32 v%d, s75, v%d" % (TA, TA))
    e("v_cmp_eq_u32 vcc, 0, v31")
    e("v_lshlrev_b32 v34, 4, v30", "v_add_u32 v34, 1024, v34", "v_lshlrev_b32 v35, 3, v30", "v_add_u32 v35, 1536, v35")
    e("v_add_u32 v36, 8, v34", "v_add_u32 v37, 256, v35")
    e("v_cndmask_b32 v34, v35, v34, vcc", "v_cndmask_b32 v35, v37, v36, vcc")
    e("v_add_u32 v%d, s75, v34" % (TA + 1), "v_add_u32 v%d, s75, v35" % (TA + 2))
    e("v_lshlrev_b32 v34, 2, v30", "v_lshl_add_u32 v34, v31, 9, v34", "v_add_u32 v%d, s75, v34" % (TA + 3))
    e("s_lshl_b32 s84, %s, 1" % MT, "s_add_u32 s84, s84, %s" % WM, "s_mul_i32 s84, s84, 172", "s_mul_i32 s85, %s, 6" % FT, "s_mul_i32 s78, %s, 3" % WN,
      "s_add_u32 s85, s85, s78", "s_add_u32 s84, s84, s85", "s_lshl_b32 s84, s84, 10", "s_add_u32 s84, s84, %d" % WS_H)
    e("s_waitcnt vmcnt(6) lgkmcnt(0)")
    e("s_lshl_b32 s74, %s, 4" % WM, "s_lshr_b32 s14, s14, s74", "v_mov_b32 v28, s14")
    e(stamp("lnld"))
    if "--pk" in sys.argv: e("s_setprio 3")
    e(kgen_ops())
    e(stamp("kg_chain"))
    e("s_waitcnt lgkmcnt(0)")
    for s in range(8):
        e("ds_read_b128 %s, v14 offset:%d" % (vr(64 + 8 * s, 4), 32 * s), "ds_read_b128 %s, v14 offset:%d" % (vr(68 + 8 * s, 4), 21 * 272 + 32 * s))
    e("s_mul_i32 s74, %s, 1536" % WN, "v_lshl_add_u32 v48, v1, 3, s74", "s_lshl_b32 s74, %s, 10" % WM, "v_and_b32 v49, 0x1ff, v12", "v_add_u32 v49, s74, v49")
    for s in range(8):
        e("s_waitcnt lgkmcnt(%d)" % (14 - 2 * s))
        e("v_mfma_f32_32x32x16_bf16 v[32:47], %s, %s, %s" % (vr(64 + 8 * s, 4), vr(68 + 8 * s, 4), "0" if s == 0 else "v[32:47]"))
    e("ds_write_b128 v%d, v[32:35]" % TA, "ds_write_b64 v%d, v[36:37]" % (TA + 1), "ds_write_b64 v%d, v[38:39]" % (TA + 2))
    for i in range(4): e("ds_write_b32 v%d, v%d offset:%d" % (TA + 3, 40 + i, 2048 + 128 * i))
    e(stamp("kgen"))
    if "--pk" in sys.argv: e("s_setprio 0")
    e("s_waitcnt vmcnt(0)")
    e(tag_from("v29"))
    e(stamp("land0"))
    return vm

def g1_reads(stage, s, buf):
    slot = slot_of(stage)
    o = []
    for b in range(2):
        if slot < 2: o.append("ds_read_b128 %s, v%d offset:%d" % (vr(buf + 4 * b, 4), XA + s, slot * SLOT + 4096 * b))
        else: o.append("ds_read_b128 %s, v%d offset:%d" % (vr(buf + 4 * b, 4), XA2 + s, 4096 * b))
    for a in range(3):
        for q in range(2):
            off = (16 * s + 4 * q) * 192 + 32 * a
            if slot < 2: o.append("ds_read_b64_tr_b16 %s, v%d offset:%d" % (vr(buf + 8 + 4 * a + 2 * q, 2), WA, slot * SLOT + off))
            else: o.append("ds_read_b64_tr_b16 %s, v%d offset:%d" % (vr(buf + 8 + 4 * a + 2 * q, 2), WA2, off))
    return [o[0], o[2], o[3], o[1], o[4], o[5], o[6], o[7]]

def g1_mfmas(buf, first):
    o = []
    for a in range(3):
        for b in range(2):
            acc = ACC + 16 * (2 * a + b)
            o.append("v_mfma_f32_32x32x16_bf16 %s, %s, %s, %s" % (vr(acc, 16), vr(buf + 8 + 4 * a, 4), vr(buf + 4 * b, 4), "0" if first else vr(acc, 16)))
    return o

def g1_ones(buf, st, s):
    sk = newlab("no1")
    o = ["s_cmp_lg_u32 s86, %d" % st, "s_cbranch_scc1 " + sk]
    for a in range(3):
        acc = ONEACC + 16 * a
        o.append("v_mfma_f32_32x32x16_bf16 %s, %s, %s, %s" % (vr(acc, 16), vr(ONES, 4), vr(buf + 8 + 4 * a, 4), "0" if s == 0 else vr(acc, 16)))
    return o + [sk + ":"]

THR = int(([a[6:] for a in sys.argv if a.startswith('--thr=')] + ['0'])[0])
def wd_dma(t0, k0, cnt, vm, lab, vo, thr=0):
    o = []
    for k in range(k0, k0 + cnt):
        if thr: o.append("s_waitcnt vmcnt(%d)" % thr)
        g = ["s_add_u32 m0, s76, %d" % (wd_loc(t0) + k * 4096), "s_add_u32 s78, s77, %d" % (t0 * 16384 + k * 32768)]
        if ROT: g += ["s_cmp_ge_u32 s78, s87", "s_cselect_b32 s75, %d, 0" % (43 * 32768), "s_sub_u32 s78, s78, s75"]
        o.append(tuple(g + ["buffer_load_dwordx4 v%d, %s, s78 offen lds" % (vo, sWD)]))
        vm.op(lab)
    return o

def wd_setup():
    o = ["s_lshl_b32 s76, %s, 10" % W, "s_lshl_b32 s77, s76, 3", "s_lshl_b32 s78, %s, 7" % J2, "s_add_u32 s77, s77, s78"]
    if ROT: o += ["s_add_u32 s87, s77, %d" % (43 * 32768), "s_mul_i32 s78, %s, %d" % (J2, 5 * 32768), "s_add_u32 s77, s77, s78"]
    return o

def wd_voff(v, t):
    return ["v_lshrrev_b32 v%d, 3, v1" % t, "v_bfe_u32 v%d, v1, 4, 1" % (t + 1), "v_lshlrev_b32 v%d, 2, v%d" % (t + 1, t + 1),
            "v_and_b32 v%d, 7, v1" % v, "v_xor_b32 v%d, v%d, v%d" % (v, v, t + 1), "v_lshlrev_b32 v%d, 4, v%d" % (v, v),
            "v_lshl_add_u32 v%d, v%d, 10, v%d" % (v, t, v)]

def wd_loc(t):
    if t < 60: return RB + t * 2048
    if t < 84: return RB + (t - 60) * 2048
    return W14 + (t - 84) * 2048

def final_xload(vm, dst, t):
    o = ["v_lshrrev_b32 v%d, 3, v0" % t, "v_and_b32 v%d, 7, v0" % (t + 1), "v_lshlrev_b32 v%d, 4, v%d" % (t + 1, t + 1),
         "v_lshl_add_u32 v%d, v%d, 10, v%d" % (t, t, t + 1),
         "s_lshl_b32 s74, %s, 16" % I2, "s_lshl_b32 s75, %s, 7" % J2, "s_add_u32 s74, s74, s75", "v_add_u32 v%d, s74, v%d" % (t, t),
         "global_load_dwordx4 %s, v%d, s[16:17]" % (vr(dst, 4), t)]
    vm.op("xf")
    return o

XF, XFA = 128, 132

def a_main(vm):
    bufs = (FR0, FR1)
    prev = None
    n = 0
    gl = []
    CA, CB, KC = 160, 172, 36
    WDV, WB = 13, 50
    g2a = wd_voff(WDV, 14) + \
        ["v_bfe_u32 v14, v1, 2, 2", "v_lshrrev_b32 v15, 5, v1", "v_lshl_add_u32 v15, v15, 2, v14", "v_lshrrev_b32 v14, 1, v14", "v_lshlrev_b32 v14, 2, v14",
         "v_bfe_u32 v62, v1, 4, 1", "v_lshlrev_b32 v62, 1, v62", "v_bfe_u32 v63, v1, 1, 1", "v_add_u32 v62, v62, v63", "v_xor_b32 v62, v62, v14",
         "v_lshlrev_b32 v62, 4, v62", "v_lshl_add_u32 v62, v15, 7, v62", "v_and_b32 v63, 1, v1", "v_lshl_add_u32 v62, v63, 3, v62",
         "s_lshl_b32 s74, %s, 11" % WN, "v_add_u32 v%d, s74, v62" % WB, "v_xor_b32 v%d, 64, v%d" % (WB + 1, WB)]
    for k in (1, 2):
        g2a += ["v_add_u32 v%d, %d, v%d" % (WB + 2 * k, 65536 * k, WB), "v_add_u32 v%d, %d, v%d" % (WB + 2 * k + 1, 65536 * k, WB + 1)]
    PA, PO, TG = 46, 47, 45
    g2b = wd_setup() + ["s_lshl1_add_u32 s74, %s, %s" % (I2, WM), "s_mul_i32 s74, s74, 86", "s_add_u32 s74, s74, %s" % WN, "s_lshl_b32 s83, s74, 10", "s_add_u32 s79, s83, %d" % WS_H,
           "v_and_b32 v%d, 31, v1" % PA, "v_mul_u32_u24 v%d, 272, v%d" % (PA, PA), "v_lshrrev_b32 v%d, 5, v1" % PO, "v_lshl_add_u32 v%d, v%d, 4, v%d" % (PA, PO, PA),
           "s_mul_i32 s74, %s, %d" % (WN, 64 * 272), "s_mul_i32 s75, %s, %d" % (WM, 32 * 272), "s_add_u32 s74, s74, s75", "s_add_u32 s74, s74, %d" % PB, "v_add_u32 v%d, s74, v%d" % (PA, PA),
           "s_lshl1_add_u32 s81, %s, %s" % (MT, WM), "s_lshl4_add_u32 s81, s81, %s" % FT, "s_lshl1_add_u32 s81, s81, %s" % WN, "s_lshl_b32 s81, s81, 7", "s_add_u32 s81, s81, %d" % WS_F4,
           "v_mov_b32 v%d, %s" % (TG, TAG), "v_min_u32 v%d, 28, v1" % PO, "v_lshlrev_b32 v%d, 7, v%d" % (PO, PO), "s_lshl_b32 s82, %s, 12" % I2, "s_add_u32 s82, s82, %d" % WS_F4]
    PRE = [64, 72, 80, 88, 160, 168, 228, 236, 244, 16, 24, 56]
    NP = len(PRE)
    def wd_reads(jj, dst):
        o = []
        for dt in range(2):
            for q in range(2):
                a = wd_loc(2 * jj) + 1024 * q
                o.append("ds_read_b64_tr_b16 %s, v%d offset:%d" % (vr(dst + 4 * dt + 2 * q, 2), WB + 2 * (a >> 16) + dt, a & 0xffff))
        return o
    pre = flat([wd_reads(jj, PRE[jj]) for jj in range(NP)])
    corr = []
    for a in range(3):
        for b in range(2):
            acc = ACC + 16 * (2 * a + b)
            corr.append("v_mfma_f32_32x32x16_bf16 %s, %s, %s, %s" % (vr(acc, 16), vr(CA + 4 * a, 4), vr(CB + 4 * b, 4), vr(acc, 16)))
    if "--noskip" not in sys.argv:
        e("s_cmp_ge_u32 s85, 86", "s_cbranch_scc1 L_idle")
        SLOW.extend(["L_idle:"] + g2a + g2b + ["s_waitcnt lgkmcnt(0)"] + ["s_barrier"] * 8 + lds_signal(C_A1, 14) + ["s_branch L_gdone"])
    opr = ["ds_read_b128 %s, v49 offset:%d" % (vr(KC + 4 * b, 4), OPC + 512 * b) for b in range(2)]
    opr += ["ds_read_b64 %s, v48 offset:%d" % (vr(CA + 4 * a, 2), OPA + 512 * a) for a in range(3)]
    cbp = []
    for b in range(2): cbp += ["v_mov_b32 v%d, v%d" % (CB + 4 * b, KC + 4 * b + 3), "v_and_b32 v%d, 0xffff, v%d" % (CB + 4 * b + 1, KC + 4 * b + 3)]
    for st in range(8):
        e("s_barrier")
        e(stamp("st%d" % st))
        for s in range(4):
            rd = g1_reads(st, s, bufs[n & 1])
            extra = []
            if st == 3: extra = g2a[len(g2a) * s // 4: len(g2a) * (s + 1) // 4]
            if st == 4: extra = g2b[len(g2b) * s // 4: len(g2b) * (s + 1) // 4]
            if st == 5 and s == 0:
                extra = ["v_mov_b32 v%d, 0" % r for r in (CA + 2, CA + 3, CA + 6, CA + 7, CA + 10, CA + 11, CB + 2, CB + 3, CB + 6, CB + 7, 15)]
            if st == 7 and s == 2: rd = rd + ["ds_read_b128 v[16:19], v15 offset:%d" % C_OP] + opr
            if st == 7 and s == 3:
                extra = ["v_and_b32 v16, v16, v17", "v_and_b32 v18, v18, v19", "v_and_b32 v16, v16, v18", "v_readfirstlane_b32 s95, v16"] + cbp
            if prev is None: e(rd)
            else: e(interleave(prev[:3], rd, per=(len(rd) + 2) // 3), interleave(prev[3:], extra))
            e("s_waitcnt lgkmcnt(0)")
            prev = g1_mfmas(bufs[n & 1], st == 0 and s == 0)
            n += 1
    e("s_cmp_eq_u32 s95, 0", "s_cbranch_scc1 L_opslow", "L_opok:")
    SLOW.extend(["L_opslow:"] + lds_wait(C_OP, 4, 16) + opr + ["s_waitcnt lgkmcnt(0)"] + cbp + ["s_nop 1", "s_branch L_opok"])
    fin = []
    for k in range(6): fin += [prev[k], corr[k]]
    e(interleave(fin, lds_signal(C_A1, 14), per=1))
    e(stamp("loopend"))
    e("s_setprio 3")
    for a in range(3):
        seq = []
        for b in range(2):
            acc = ACC + 16 * (2 * a + b)
            k = vr(KC + 4 * b, 2); s2 = vr(KC + 4 * b + 2, 2)
            Q = 180 + 16 * b; P = 188 + 16 * b; O = 212 + 4 * ((2 * a + b) % 4)
            o = []
            for j in range(4): o.append("v_pk_mul_f32 %s, %s, %s" % (vr(Q + 2 * j, 2), vr(acc + 2 * j, 2), vr(acc + 2 * j, 2)))
            for j in range(4): o.append("v_pk_fma_f32 %s, %s, %s, %s op_sel:[0,1,0] op_sel_hi:[1,1,0]" % (vr(Q + 2 * j, 2), vr(Q + 2 * j, 2), k, k))
            for j in range(4): o.append("v_pk_mul_f32 %s, %s, %s" % (vr(Q + 2 * j, 2), vr(Q + 2 * j, 2), vr(acc + 2 * j, 2)))
            for j in range(8): o.append("v_exp_f32 v%d, v%d" % (Q + j, Q + j))
            for j in range(4): o.append("v_pk_mul_f32 %s, %s, %s" % (vr(P + 2 * j, 2), vr(acc + 2 * j, 2), vr(acc + 8 + 2 * j, 2)))
            for j in range(4): o.append("v_pk_fma_f32 %s, %s, %s, %s op_sel:[0,0,0] op_sel_hi:[1,0,0]" % (vr(Q + 2 * j, 2), vr(Q + 2 * j, 2), s2, s2))
            for j in range(8): o.append("v_rcp_f32 v%d, v%d" % (Q + j, Q + j))
            for j in range(4): o.append("v_pk_mul_f32 %s, %s, %s" % (vr(P + 2 * j, 2), vr(P + 2 * j, 2), vr(Q + 2 * j, 2)))
            for j in range(4): o.append("v_cvt_pk_bf16_f32 v%d, v%d, v%d" % (O + j, P + 2 * j, P + 2 * j + 1))
            o.append(("s_cmp_lt_u32 s85, %d" % (86 - a), "s_cselect_b32 s78, s84, 0x7ff00000", "s_add_u32 s78, s78, %d" % (b * 86 * 1024), "buffer_store_dwordx4 %s, v12, %s, s78 offen offset:%d sc1" % (vr(O, 4), sWS, a * 1024)))
            seq.append(o)
        e(merge(seq[0], seq[1]))
    e("L_gdone:")
    vm.op("h")
    e(stamp("gelu"))
    e(lds_signal(C_G, 14))
    A2 = 96; HB = 176; NH = 13; WF = (64, 72); Q4 = 32
    NPR = int(([a[6:] for a in sys.argv if a.startswith("--npr=")] + ["48"])[0])
    e(lds_wait(C_B1, 4, 14, Q4), stamp("b1ok"))
    e(pre[:NPR])
    e(vm.wait("h"))
    e("buffer_store_dword v%d, off, %s, s81 sc1" % (TG, sWS)); vm.op("f4")
    e(stamp("hack"))
    e(pre[NPR:])
    e("s_waitcnt lgkmcnt(0)", lds_signal(C_A2, 14), lds_wait(C_A2, 4, 14, Q4))
    e(wd_dma(60, 0, 12, vm, "2a", WDV))
    e(final_xload(vm, XF, XFA))
    pl = ["buffer_load_dword v36, v%d, %s, s82 offen sc1" % (PO, sWS)]
    e(pl, vm.all())
    e(lds_signal(C_A3, 14))
    e(check_retry(pl, [36], 32, NAP))
    e(stamp("hpoll"))
    def hload(jj):
        vm.op("h%d" % jj)
        return ["buffer_load_dwordx4 %s, v12, %s, s79 offen sc1" % (vr(HB + 4 * (jj % NH), 4), sWS), "s_add_u32 s79, s79, 2048"]
    PD = 12
    for jj in range(PD): e(hload(jj))
    e(lds_wait(C_B2, 4, 14, Q4), lds_wait(C_A3, 4, 14, Q4))
    e("s_setprio %d" % int(([a[5:] for a in sys.argv if a.startswith("--g2=")] + ["0"])[0]))
    for jj in range(43):
        if jj == 18: e(lds_signal(C_P, 14))
        if jj == 31: e(lds_signal(C_A4, 14))
        if jj == 38: e(lds_wait(C_A4, 4, 14, Q4))
        wf = PRE[jj] if jj < NP else WF[jj & 1]
        e(vm.wait("h%d" % jj).replace("s_waitcnt", "s_waitcnt lgkmcnt(0)") if jj >= NP else vm.wait("h%d" % jj))
        if jj == 1: e(stamp("h0"))
        if jj == 36: e(stamp("h36"))
        hb_ = vr(HB + 4 * (jj % NH), 4)
        e("v_mfma_f32_32x32x16_bf16 %s, %s, %s, %s" % (vr(A2, 16), vr(wf, 4), hb_, "0" if jj == 0 else vr(A2, 16)))
        if jj + 1 < 43 and jj + 1 >= NP: e(wd_reads(jj + 1, WF[(jj + 1) & 1]))
        if jj + PD < 43: e(hload(jj + PD))
        e("v_mfma_f32_32x32x16_bf16 %s, %s, %s, %s" % (vr(A2 + 16, 16), vr(wf + 4, 4), hb_, "0" if jj == 0 else vr(A2 + 16, 16)))
    e(stamp("g2end"))
    for dt in range(2):
        for jj in range(4): e("ds_write_b128 v%d, %s offset:%d" % (PA, vr(A2 + 16 * dt + 4 * jj, 4), 128 * dt + 32 * jj))
    e("s_waitcnt lgkmcnt(0)")
    e("s_branch L_final")
    e(SLOW)

def b_path():
    vm = VM()
    vm.op("ln")
    for i in range(5): vm.op("st0")
    WDV, VK, VU = 7, 8, 9
    e(wd_voff(WDV, 210))
    e("v_lshlrev_b32 v210, 2, v1", "v_add_u32 v210, %d, v210" % CNT_BASE, "v_mov_b32 v211, 0", "ds_write_b32 v210, v211")
    e("v_and_b32 v210, 1, v1", "v_mul_u32_u24 v210, %d, v210" % R_CP, "v_bfe_u32 v212, v1, 1, 3", "v_sub_u32 v212, 7, v212", "v_lshl_add_u32 v210, v212, 6, v210",
      "v_lshrrev_b32 v212, 4, v1", "v_lshl_add_u32 v210, v212, 4, v210", "s_mul_i32 s74, %s, %d" % (WM, 2 * R_CP), "s_add_u32 s74, s74, %d" % R_BASE, "s_lshl_b32 s75, %s, 8" % WN, "s_add_u32 s74, s74, s75", "v_add_u32 v%d, s74, v210" % VK)
    e("v_bfe_u32 v210, v1, 2, 2", "v_add_u32 v210, v210, v212", "v_lshlrev_b32 v210, 4, v210", "v_and_b32 v213, 3, v1", "v_lshl_add_u32 v210, v213, 2, v210",
      "v_and_b32 v213, 1, v1", "v_mul_u32_u24 v213, %d, v213" % (U_CP - 4), "v_sub_u32 v210, v210, v213",
      "s_mul_i32 s74, %s, %d" % (WM, 2 * U_CP), "s_add_u32 s74, s74, %d" % (U_BASE + U_CP), "s_add_u32 s74, s74, s75", "v_add_u32 v%d, s74, v210" % VU)
    LNA = 10
    e("v_bfe_u32 v210, v1, 2, 2", "v_mul_u32_u24 v210, %d, v210" % LNP, "v_lshrrev_b32 v211, 4, v1", "v_lshl_add_u32 v210, v211, 5, v210",
      "v_and_b32 v211, 3, v1", "v_lshl_add_u32 v210, v211, 3, v210", "s_lshl_b32 s74, %s, 8" % W, "s_add_u32 s74, s74, %d" % LNS, "v_add_u32 v%d, s74, v210" % LNA)
    T8, T16, TM, RD, RC, RB = 84, 85, 86, 87, 88, 89
    e("s_mul_i32 s74, %s, 6144" % WM, "s_add_u32 s74, s74, %d" % T_BASE)
    e("v_lshl_add_u32 v%d, v1, 3, s74" % T8, "v_add_u32 v%d, s74, v12" % T16, "v_add_u32 v%d, -4, v%d" % (TM, T16))
    e("s_mul_i32 s74, %s, %d" % (W, R_CP), "s_add_u32 s74, s74, %d" % R_BASE, "v_sub_u32 v213, 63, v1")
    e("v_lshl_add_u32 v%d, v213, 5, s74" % RD, "v_lshl_add_u32 v%d, v213, 4, s74" % RC, "v_lshl_add_u32 v%d, v213, 3, s74" % RB)
    e("s_cmp_eq_u32 %s, 1" % WN, "s_cselect_b64 s[72:73], -1, 0")
    CSA = 93
    e("v_bfe_u32 v210, v1, 4, 1", "v_mul_u32_u24 v210, %d, v210" % WMAT, "v_bfe_u32 v211, v1, 2, 2", "v_lshrrev_b32 v212, 5, v1", "v_lshl_add_u32 v211, v212, 3, v211",
      "v_mul_u32_u24 v211, 192, v211", "v_and_b32 v212, 3, v1", "v_lshlrev_b32 v212, 3, v212", "v_add3_u32 v210, v210, v211, v212",
      "s_bfe_u32 s74, %s, 0x10002" % MT, "s_mul_i32 s74, s74, %d" % (32 * 192 if NCLS == 4 else 0), "v_add_u32 v210, s74, v210",
      "s_lshl_b32 s74, %s, 5" % W, "s_add_u32 s74, s74, %d" % (RING0 + WOFF), "v_add_u32 v%d, s74, v210" % CSA,
      "s_lshl_b32 s74, %s, 5" % WN, "s_add_u32 s74, s74, %d" % (RING0 + WOFF + 128), "v_add_u32 v%d, s74, v210" % (CSA + 1))
    for i in range(4): e("v_mov_b32 v%d, 0x3f803f80" % (96 + i))
    e("s_lshr_b32 s74, %s, 3" % MT, "s_lshl4_add_u32 s74, s74, %s" % FT, "s_lshl2_add_u32 s74, s74, %s" % W, "s_lshl_b32 s12, s74, 12", "s_add_u32 s12, s12, %d" % WS_CS,
      "v_and_b32 v95, 0x1ff, v12")
    e(vm.wait("ln").replace("s_waitcnt", "s_waitcnt lgkmcnt(0)"), stamp("lnld"))
    e("s_lshl_b32 s74, %s, 4" % WM, "s_lshr_b32 s14, s14, s74", "v_mov_b32 v28, s14")
    d1 = stage_dma(1, VM())
    ln = flat(ln_ops(VM()))
    e(merge(ln[:-1], [tuple(d1[:6])] + d1[6:13]))
    for i in range(7): vm.op("st1")
    e(ln[-1]); vm.op("stats")
    e(stamp("lndone"))
    e(vm.wait("st0").replace("s_waitcnt", "s_waitcnt lgkmcnt(0)"))
    e(stamp("st0land"))
    PFS = int(([a[5:] for a in sys.argv if a.startswith("--pf=")] + ["0"])[0])
    def endit(st, lg=False):
        if PFS and st in (PFS, PFS + 1):
            e("s_mul_i32 s74, %s, 344" % IDX, "s_mul_i32 s75, %s, 43" % W, "s_add_u32 s74, s74, s75", "s_lshl_b32 s74, s74, 7", "s_add_u32 s74, s74, %d" % ((st - PFS) * 172 * 128),
              "v_min_u32 v253, 42, v1", "v_lshlrev_b32 v253, 7, v253", "buffer_load_dword v254, v253, %s, s74 offen" % sWD); vm.op("pf")
        w = vm.wait("st%d" % st)
        if lg: w = w.replace("s_waitcnt", "s_waitcnt lgkmcnt(0)")
        e(stamp("iss%d" % (st + 1)), w, stamp("land%d" % st), "s_barrier")
    if "--prioB" in sys.argv: e("s_setprio 1")
    e("s_barrier")
    for rnd in range(2):
        for q in range(2): e("ds_read_b64_tr_b16 %s, v%d offset:%d" % (vr(20 + 4 * rnd + 2 * q, 2), LNA, 4 * q * LNP + 128 * rnd))
    e(d1[13:])
    for i in range(3): vm.op("st1")
    HO = SLOT if NCLS == 4 else 32 * 192
    def csrd(h):
        return ["ds_read_b64_tr_b16 %s, v%d offset:%d" % (vr(100 + 16 * z + 8 * h + 4 * s_ + 2 * q, 2), CSA + z, h * HO + (16 * s_ + 4 * q) * 192) for s_ in range(2) for q in range(2) for z in range(2)]
    def csmf(h):
        return ["v_mfma_f32_32x32x16_bf16 %s, v[96:99], %s, %s" % (vr(132 + 16 * z, 16), vr(100 + 16 * z + 8 * h + 4 * s_, 4), "0" if (h == 0 and s_ == 0) else vr(132 + 16 * z, 16)) for s_ in range(2) for z in range(2)]
    e(merge(stage_dma(2, vm), csrd(0) + (csrd(1) if NCLS == 8 else [])))
    e("s_lshl_b32 s74, %s, 13" % G, "s_lshl_b32 s75, %s, 11" % W, "s_add_u32 s74, s74, s75", "s_add_u32 s74, s74, %d" % WS_XT)
    e("s_waitcnt lgkmcnt(0)")
    for rnd in range(2):
        e("buffer_store_dwordx4 %s, v12, %s, s74 offen offset:%d sc1" % (vr(20 + 4 * rnd, 4), sWS, 1024 * rnd)); vm.op("xt")
    endit(1)
    rd = []
    for t in range(2):
        b = 32 + 16 * t; o = 3072 * t
        rd += ["ds_read_b64 %s, v%d offset:%d" % (vr(b, 2), T8, o + 2048), "ds_read_b32 v%d, v%d offset:%d" % (b + 2, T8, o + 2056),
               "ds_read_b32 v%d, v%d offset:%d" % (b + 3, T8, o + 1020),
               "ds_read_b64 %s, v%d offset:%d" % (vr(b + 4, 2), T8, o + 1536), "ds_read_b32 v%d, v%d offset:%d" % (b + 6, T8, o + 1544),
               "ds_read_b32 v%d, v%d offset:%d" % (b + 7, TM, o),
               "ds_read_b64 %s, v%d offset:%d" % (vr(b + 8, 2), T8, o + 1024), "ds_read_b32 v%d, v%d offset:%d" % (b + 10, T8, o + 1032),
               "ds_read_b128 %s, v%d offset:%d" % (vr(b + 12, 4), T16, o)]
    e("s_setprio 2")
    e(merge(stage_dma(3, vm), csmf(0) + (csrd(1) if NCLS == 4 else []) + rd))
    endit(2, True)
    S = "s[72:73]"
    cv = lambda d, lo, hi: "v_cvt_pk_bf16_f32 v%d, v%d, v%d" % (d, lo, hi)
    x1 = ["v_cmp_eq_u32 vcc, 0, v1", "v_lshlrev_b32 v28, 16, v28"]
    x1 += ["v_add_f32 v%d, v%d, v%d" % (32 + k, 32 + k, 48 + k) for k in (0, 1, 2, 3, 4, 5, 6, 7, 8, 9, 10, 12, 13, 14, 15)]
    x1 += ["v_cndmask_b32 v28, 0, v28, vcc", "v_cndmask_b32 v35, v40, v35, vcc", "v_cndmask_b32 v39, v39, 0, vcc", "v_add_f32 v44, v44, v28"]
    x1 += ["v_cndmask_b32 v48, v33, v34, %s" % S, "v_cndmask_b32 v49, v32, v33, %s" % S,
           cv(64, 34, 34), cv(65, 34, 48), cv(66, 33, 33), cv(67, 33, 33), cv(68, 33, 33), cv(69, 49, 32), cv(70, 32, 32), cv(71, 32, 32)]
    e(merge(stage_dma(4, vm), csmf(1) + x1))
    e("s_setprio 0")
    e("v_mov_b32 v133, v148", "v_mov_b32 v134, %s" % TAG, "s_and_b32 s74, %s, 7" % MT, "s_lshl_b32 s74, s74, 9", "s_add_u32 s74, s74, s12")
    e("buffer_store_dwordx4 v[132:135], v95, %s, s74 offen sc1" % sWS); vm.op("cs")
    endit(3)
    x2 = ["v_cndmask_b32 v48, v37, v38, %s" % S, "v_cndmask_b32 v49, v36, v37, %s" % S, cv(72, 38, 48), cv(73, 37, 37), cv(74, 49, 36), cv(75, 36, 36),
          "v_cndmask_b32 v48, v41, v42, %s" % S, "v_cndmask_b32 v49, v40, v41, %s" % S, "v_cndmask_b32 v50, v35, v40, %s" % S, cv(76, 48, 49), cv(77, 40, 50),
          "v_cndmask_b32 v48, v46, v47, %s" % S, "v_cndmask_b32 v49, v45, v46, %s" % S, "v_cndmask_b32 v50, v44, v45, %s" % S, "v_cndmask_b32 v51, v39, v44, %s" % S,
          cv(78, 48, 49), cv(79, 50, 51), "v_mov_b32 v80, 0", "v_mov_b32 v81, 0",
          "ds_write_b128 v%d, v[64:67]" % RD, "ds_write_b128 v%d, v[68:71] offset:16" % RD, "ds_write_b128 v%d, v[72:75] offset:2048" % RC,
          "ds_write_b64 v%d, v[76:77] offset:3072" % RB, "ds_write_b64 v%d, v[78:79] offset:3584" % RB, "ds_write_b64 v%d, v[80:81] offset:4096" % RB]
    e("s_lshl_b32 s74, %s, 2" % G, "s_add_u32 s74, s74, %d" % WS_F3, "s_cmp_eq_u32 %s, 0" % W, "s_cselect_b32 s74, s74, 0x7ffffff0", "v_mov_b32 v16, %s" % TAG)
    e("buffer_store_dword v16, off, %s, s74 sc1" % sWS); vm.op("f3s")
    e(merge(stage_dma(5, vm), x2[:19]))
    endit(4)
    UG, UL = 90, 91
    x3 = ["v_lshrrev_b32 v16, 1, v1", "v_and_b32 v17, 1, v1", "v_lshlrev_b32 v%d, 13, v16" % UG, "v_lshl_add_u32 v%d, v17, 4, v%d" % (UG, UG),
          "v_mul_u32_u24 v17, %d, v17" % (2 * U_CP), "v_lshl_add_u32 v17, v16, 4, v17", "s_lshl_b32 s74, %s, 10" % W, "s_add_u32 s74, s74, %d" % U_BASE, "v_add_u32 v%d, s74, v17" % UL,
          "s_mul_i32 s74, %s, %d" % (W, U_CP), "s_add_u32 s74, s74, %d" % U_BASE, "s_sub_u32 s75, 15, %s" % WN, "v_min_u32 v92, s75, v1", "v_lshl_add_u32 v92, v92, 2, s74",
          "ds_write_b32 v92, v80"]
    x3 += ["v_mov_b32 v%d, 0" % (32 + i) for i in range(32)]
    e(merge(stage_dma(6, vm), x3[:14]))
    endit(5)
    e("v_lshrrev_b32 v17, 5, v1", "v_lshl_add_u32 v94, v17, 11, v95", "v_lshrrev_b32 v93, 1, v95",
      "s_lshl2_add_u32 s13, %s, %s" % (MT, W), "s_lshl_b32 s13, s13, 8", "s_add_u32 s13, s13, %d" % WS_ST)
    gl = ["buffer_load_dwordx2 v[100:101], v93, %s, s13 offen sc1" % sWS]
    gl += ["buffer_load_dwordx4 %s, v94, %s, s12 offen offset:%d sc1" % (vr(104 + 4 * p, 4), sWS, 512 * p) for p in range(4)]
    if "--glate" not in sys.argv:
        e(gl)
        for i in range(5): vm.op("gr")
    e(merge(stage_dma(7, vm), x3[15:]))
    if "--glate" in sys.argv:
        e(gl)
        for i in range(5): vm.op("gr")
    endit(6, True)
    e("s_mov_b32 s82, %d" % WS_F3)
    pl = ["buffer_load_dwordx4 v[20:23], v12, %s, s82 offen sc1" % sWS]
    e(pl); vm.op("f3")
    N1 = int(([a[5:] for a in sys.argv if a.startswith("--n1=")] + ["8"])[0])
    N0 = int(([a[5:] for a in sys.argv if a.startswith("--n0=")] + ["0"])[0])
    e(wd_setup(), wd_dma(0, 0, N0, vm, "1a", WDV))
    if "--p6" in sys.argv: e("s_setprio 2")
    e(vm.wait("gr"), check_retry(gl, [101, 106, 110, 114, 118], 16))
    e(stamp("grok"))
    pr = ["s_mov_b32 s15, 0x07060302"]
    for a in range(2): pr += ["v_add_f32 v%d, v%d, v%d" % (104 + a, 104 + a, 108 + a), "v_add_f32 v%d, v%d, v%d" % (112 + a, 112 + a, 116 + a)]
    pr += ["v_and_b32 v120, 0xffff0000, v100", "v_rcp_f32 v121, v120"]
    for a in range(2): pr += ["v_add_f32 v%d, v%d, v%d" % (104 + a, 104 + a, 112 + a)]
    pr += ["v_and_b32 v127, 0xffff, v100", "v_lshl_or_b32 v127, v100, 16, v127", "v_mul_f32 v126, v120, v120", "v_mul_f32 v124, %s, v121" % hx(f2u(GK1)),
           "v_mul_f32 v125, v121, v121", "v_mul_f32 v125, v125, v121", "v_mul_f32 v125, %s, v125" % hx(f2u(GK2))]
    for a in range(2):
        pr += ["v_and_b32 v108, 0xffff0000, v%d" % (104 + a), "v_sub_f32 v108, v%d, v108" % (104 + a), "v_and_b32 v109, 0xffff0000, v108", "v_sub_f32 v109, v108, v109",
               "v_perm_b32 v%d, v108, v%d, s15" % (112 + 2 * a, 104 + a), "v_lshrrev_b32 v%d, 16, v109" % (113 + 2 * a)]
    pr += ["s_lshl_b32 s74, %s, 9" % W, "v_add_u32 v16, s74, v95", "v_lshl_add_u32 v17, v1, 3, s74", "s_lshl_b32 s74, %s, 9" % WN, "v_lshl_add_u32 v18, v1, 3, s74",
           "ds_write_b128 v16, v[124:127] offset:%d" % OPC, "ds_write_b64 v17, v[112:113] offset:%d" % OPA, "ds_write_b64 v18, v[114:115] offset:%d" % (OPA + 2048)]
    e(merge(pr, wd_dma(0, N0, N1 - N0, vm, "1a", WDV)))
    e("s_waitcnt lgkmcnt(0)", lds_signal(C_OP, 16))
    if "--p6" in sys.argv: e("s_setprio 0")
    if "st7" in vm.q: endit(7)
    else: e("s_barrier")
    e(stamp("b7"))
    e(vm.wait("f3"))
    e(check_retry(pl, [20, 21, 22, 23], 24))
    e(stamp("f3ok"))
    e("s_lshl_b32 s74, %s, 19" % W, "s_lshl_b32 s75, %s, 5" % CP, "s_add_u32 s74, s74, s75", "s_add_u32 s74, s74, %d" % WS_XT, "s_add_u32 s75, s74, 0x40000")
    e("buffer_load_dwordx4 v[20:23], v%d, %s, s74 offen sc1" % (UG, sWS)); vm.op("u")
    e("buffer_load_dwordx4 v[24:27], v%d, %s, s75 offen sc1" % (UG, sWS)); vm.op("u")
    e("s_or_b32 s74, s2, %s" % W, "s_cmp_eq_u32 s74, 0", "s_cselect_b32 s74, 0, 0x7ffffff0", "v_mov_b32 v16, %s" % TAG)
    e("s_mov_b64 exec, 1", "buffer_store_dword v16, off, %s, s74 sc1" % sWS, "s_mov_b64 exec, -1"); vm.op("eps")
    e(wd_dma(0, N1, 12 - N1, vm, "1a", WDV))
    e(x2[19:])
    e(wd_dma(0, 12, 8, vm, "1b", WDV, THR))
    e(vm.wait("1a"), lds_signal(C_B1, 16))
    e(lds_wait(C_A1, 4, 104))
    e("s_setprio 2")
    e(wd_dma(40, 0, 5, vm, "1c", WDV, THR))
    e(x3[14])
    for k in range(2):
        b = 20 + 4 * k
        e("ds_write_b128 v%d, %s offset:%d" % (UL, vr(b, 4), 64 + 512 * k))
        e("v_mov_b32 v%d, v%d" % (96 + 4 * k, b + 1), "v_mov_b32 v%d, v%d" % (97 + 4 * k, b + 2), "v_mov_b32 v%d, v%d" % (98 + 4 * k, b + 3))
        e("ds_write_b32 v%d, v%d offset:%d" % (UL, b, U_CP + 60 + 512 * k), "ds_write_b96 v%d, %s offset:%d" % (UL, vr(96 + 4 * k, 3), U_CP + 64 + 512 * k))
    e(wd_dma(40, 5, 5, vm, "1c", WDV, THR), wd_dma(84, 0, 1, vm, "1c", WDV))
    e("s_waitcnt lgkmcnt(0)", lds_signal(C_U, 16))
    e(stamp("iss1c"))
    e(lds_wait(C_U, 4, 16))
    CA = 32; FB = (64, 128)
    def reads(rho, buf):
        o = []
        for i in range(8):
            o.append("ds_read_b128 %s, v%d offset:%d" % (vr(buf + 4 * i, 4), VK, 512 * (7 - i) + 64 * rho))
            o.append("ds_read_b64 %s, v%d offset:%d" % (vr(buf + 32 + 4 * i, 2), VU, 512 * i + 64 * rho))
            o.append("ds_read_b64 %s, v%d offset:%d" % (vr(buf + 34 + 4 * i, 2), VU, 512 * i + 64 * rho + 8))
        return o
    e(reads(0, FB[0]))
    e(lds_wait(C_G, 4, 16))
    e(stamp("cvgo"))
    e("s_mov_b32 s79, 0", "L_cv:")
    for rho in range(2):
        buf = FB[rho]
        pairs = sorted([(sg, t) for t in range(8) for sg in range(t + 1)])
        mf = ["v_mfma_f32_16x16x32_bf16 %s, %s, %s, %s" % (vr(CA + 4 * t, 4), vr(buf + 4 * (t - sg), 4), vr(buf + 32 + 4 * sg, 4), vr(CA + 4 * t, 4)) for sg, t in pairs]
        e("s_waitcnt lgkmcnt(0)")
        fill = reads(rho + 1, FB[1 - rho])
        if rho == 1: fill += ["v_add_u32 v%d, 128, v%d" % (VK, VK), "v_add_u32 v%d, 128, v%d" % (VU, VU)]
        e(interleave(mf, fill, per=1))
    e(vm.all(), lds_signal(C_B2, 16))
    e("s_add_u32 s79, s79, 1", "s_cmp_lt_u32 s79, 2", "s_cbranch_scc1 L_cv")
    e(stamp("conv"))
    e("s_waitcnt lgkmcnt(0)", lds_signal(C_CV, 18))
    e("s_lshl_b32 s74, %s, 12" % W, "s_add_u32 s74, s74, %d" % R_BASE, "v_add_u32 v24, s74, v12", "v_xor_b32 v25, 4096, v12", "s_xor_b32 s75, %s, 1" % W,
      "s_lshl_b32 s75, s75, 12", "s_add_u32 s75, s75, %d" % R_BASE, "v_add_u32 v25, s75, v12")
    e(lds_wait(C_CV, 4, 18))
    lo, dn = newlab("rlo"), newlab("rdn")
    e("s_cmp_eq_u32 %s, 0" % WN, "s_cbranch_scc1 " + lo)
    for k in range(4): e("ds_write_b128 v24, %s offset:%d" % (vr(CA + 4 * k, 4), 1024 * k))
    e("s_waitcnt lgkmcnt(0)")
    for k in range(16): e("v_mov_b32 v%d, v%d" % (CA + k, CA + 16 + k))
    e("s_branch " + dn, lo + ":")
    for k in range(4): e("ds_write_b128 v24, %s offset:%d" % (vr(CA + 16 + 4 * k, 4), 1024 * k))
    e(dn + ":")
    e("s_waitcnt lgkmcnt(0)", lds_signal(C_X, 18))
    e(lds_wait(C_X, 4, 18))
    for k in range(4): e("ds_read_b128 %s, v25 offset:%d" % (vr(64 + 4 * k, 4), 1024 * k))
    e("v_lshrrev_b32 v16, 4, v1", "v_lshlrev_b32 v16, 17, v16", "v_and_b32 v17, 15, v1", "v_lshl_add_u32 v16, v17, 4, v16")
    e("s_lshl_b32 s74, %s, 1" % CP, "s_add_u32 s74, s74, %s" % WM, "s_lshl_b32 s74, s74, 8", "s_lshl_b32 s75, %s, 21" % WN, "s_add_u32 s74, s74, s75", "s_add_u32 s74, s74, %d" % WS_Z)
    for k in range(4): e("v_mov_b32 v%d, %s" % (50 + 4 * k, TAG), "v_mov_b32 v%d, %s" % (51 + 4 * k, TAG))
    e("s_waitcnt lgkmcnt(0)")
    for k in range(8): e("v_pk_add_f32 %s, %s, %s" % (vr(CA + 2 * k, 2), vr(CA + 2 * k, 2), vr(64 + 2 * k, 2)))
    for k in range(4):
        e(cv(48 + 4 * k, CA + 4 * k, CA + 4 * k + 1), cv(49 + 4 * k, CA + 4 * k + 2, CA + 4 * k + 3))
        if k: e("s_add_u32 s74, s74, 0x80000")
        e("buffer_store_dwordx4 %s, v16, %s, s74 offen sc1" % (vr(48 + 4 * k, 4), sWS)); vm.op("z")
    e(stamp("zst"))
    e(final_xload(vm, XF, XFA))
    e(vm.all(), lds_signal(C_B3, 16))
    e(lds_wait(C_P, 4, 16))
    e("s_lshl_b32 s74, %s, 17" % I2, "s_lshl_b32 s75, %s, 14" % J2, "s_add_u32 s74, s74, s75", "s_lshl_b32 s75, %s, 12" % W, "s_add_u32 s74, s74, s75",
      "s_add_u32 s82, s74, %d" % WS_Z)
    pl = ["buffer_load_dwordx4 %s, v12, %s, s82 offen offset:%d sc1" % (vr(64 + 4 * q, 4), sWS, 1024 * q) for q in range(4)]
    e(pl)
    e("s_lshl_b32 s75, %s, 11" % W, "v_lshrrev_b32 v16, 4, v1", "v_lshlrev_b32 v16, 7, v16", "v_and_b32 v17, 15, v1", "v_lshl_add_u32 v16, v17, 2, v16", "v_add_u32 v16, s75, v16",
      "v_add_u32 v16, %d, v16" % Z_LDS, "v_add_u32 v17, 1024, v16")
    e(vm.all())
    e(check_retry(pl, [66, 70, 74, 78], 18))
    e(stamp("zpoll"))
    for q in range(4): e("ds_write2_b32 v%d, v%d, v%d offset0:%d offset1:%d" % (16 + (q >> 1), 64 + 4 * q, 65 + 4 * q, 128 * (q & 1), 128 * (q & 1) + 16))
    e("v_bfe_u32 v14, v1, 2, 2", "v_lshlrev_b32 v14, 7, v14", "v_lshrrev_b32 v15, 4, v1", "v_lshl_add_u32 v14, v15, 5, v14", "v_and_b32 v15, 3, v1", "v_lshl_add_u32 v14, v15, 3, v14",
      "s_add_u32 s75, s75, %d" % Z_LDS, "v_add_u32 v14, s75, v14")
    e("v_mul_u32_u24 v15, 272, v1", "s_lshl_b32 s75, %s, 6" % W, "s_add_u32 s75, s75, %d" % P2, "v_add_u32 v15, s75, v15")
    e("s_waitcnt lgkmcnt(0)")
    for q in range(4): e("ds_read_b64_tr_b16 %s, v14 offset:%d" % (vr(20 + 2 * q, 2), 512 * q))
    e(lds_wait(C_B3, 4, 40))
    for k in range(8): e("v_lshlrev_b32 v%d, 16, v%d" % (32 + 2 * k, 20 + k), "v_and_b32 v%d, 0xffff0000, v%d" % (33 + 2 * k, 20 + k))
    for q in range(4): e("ds_write_b128 v15, %s offset:%d" % (vr(32 + 4 * q, 4), 16 * q))
    e("s_waitcnt lgkmcnt(0)")

def final():
    e("L_final:")
    e("v_lshrrev_b32 v14, 3, v0", "v_mul_u32_u24 v14, 272, v14", "v_and_b32 v15, 7, v0", "v_lshl_add_u32 v14, v15, 5, v14", "v_add_u32 v15, %d, v14" % P2, "v_add_u32 v14, %d, v14" % PB)
    for j in range(4): e("v_lshlrev_b32 v%d, 16, v%d" % (32 + 2 * j, XF + j), "v_and_b32 v%d, 0xffff0000, v%d" % (33 + 2 * j, XF + j))
    e("s_barrier")
    e(stamp("fin"))
    e("ds_read_b128 v[16:19], v14", "ds_read_b128 v[20:23], v14 offset:16",
      "ds_read_b128 v[24:27], v14 offset:%d" % (64 * 272), "ds_read_b128 v[28:31], v14 offset:%d" % (64 * 272 + 16),
      "ds_read_b128 v[40:43], v15", "ds_read_b128 v[44:47], v15 offset:16")
    e("s_waitcnt lgkmcnt(2)")
    for j in range(4): e("v_pk_add_f32 %s, %s, %s" % (vr(16 + 2 * j, 2), vr(16 + 2 * j, 2), vr(24 + 2 * j, 2)))
    e("s_waitcnt lgkmcnt(0)")
    for j in range(4): e("v_pk_add_f32 %s, %s, %s" % (vr(32 + 2 * j, 2), vr(32 + 2 * j, 2), vr(40 + 2 * j, 2)))
    for j in range(4): e("v_pk_add_f32 %s, %s, %s" % (vr(16 + 2 * j, 2), vr(16 + 2 * j, 2), vr(32 + 2 * j, 2)))
    for j in range(4): e("v_cvt_pk_bf16_f32 v%d, v%d, v%d" % (24 + j, 16 + 2 * j, 17 + 2 * j))
    e("global_store_dwordx4 v%d, v[24:27], s[38:39]" % XFA)
    if DEBUG:
        e("s_waitcnt vmcnt(0)")
        e(stamp("end"))
        e("s_memrealtime s[96:97]", "s_waitcnt lgkmcnt(0)", "v_writelane_b32 v255, s96, 63", "v_writelane_b32 v255, s98, 62")
        e("s_lshl_b32 s74, s2, 11", "s_add_u32 s74, s74, %d" % WS_DBG, "v_lshlrev_b32 v14, 2, v0")
        e("buffer_store_dword v255, v14, %s, s74 offen" % sWS)
        if "--dbgout" in sys.argv:
            e("s_not_b32 s98, s98", "v_mov_b32 v20, s98", "v_mov_b32 v21, s96", "v_mov_b32 v22, 0")
            e("s_cmp_lg_u32 %s, 0" % WAVE, "s_cbranch_scc1 L_end")
            e("s_mov_b64 exec, 1")
            e("global_atomic_umax v22, v20, s[40:41]", "global_atomic_umax v22, v21, s[40:41] offset:4")
            e("s_mov_b64 exec, -1")
            e("s_cmp_lg_u32 s2, 40", "s_cbranch_scc1 L_end")
            sel = ["lnld", "kgen", "st0", "st2", "st6", "st7", "loopend", "gelu", "hack", "hpoll", "b9", "b10"]
            e("v_readlane_b32 s74, v255, 0")
            for n, nm in enumerate(sel + ["fin", "end"]):
                k = {"fin": 60, "end": 61}.get(nm) or STAMPS["A"].index(nm) + 1
                e("v_readlane_b32 s75, v255, %d" % k, "s_sub_u32 s75, s75, s74", "v_mov_b32 v20, s75", "s_mov_b64 exec, 1",
                  "global_store_dword v22, v20, s[40:41] offset:%d" % (8 + 4 * n), "s_mov_b64 exec, -1")
    if "--double" in sys.argv:
        e("s_waitcnt vmcnt(0)", "s_memrealtime s[96:97]", "s_waitcnt lgkmcnt(0)", "s_sub_u32 s74, s96, s98", "s_min_u32 s74, s74, 20000",
          "L_spin:", "s_memrealtime s[92:93]", "s_waitcnt lgkmcnt(0)", "s_sub_u32 s75, s92, s96", "s_cmp_lt_u32 s75, s74", "s_cbranch_scc1 L_spin")
    e("L_end:", "s_endpgm")

entry()
prologue()
ROLE[0] = "A"
vm = a_p0()
a_main(vm)
ROLE[0] = "B"
e("L_B:")
b_path()
ROLE[0] = "AB"
final()
body, npad = pad_hazards(L)

hdr = open("cdna_kernels/%s.s.ref" % NAME).read().split("; Override launch")[0]
out = hdr + "; @launch grid=(256,1,1) block=(512,1,1) lds=163840\n"
out += '.amdgcn_target "amdgcn-amd-amdhsa--gfx950"\n.text\n.globl %s_kernel\n.p2align 8\n.type %s_kernel,@function\n%s_kernel:\n' % (NAME, NAME, NAME)
out += "\n".join(body) + "\n"
out += '''.section .rodata,"a"
.p2align 6
.amdhsa_kernel %s_kernel
  .amdhsa_next_free_vgpr 256
  .amdhsa_next_free_sgpr 102
  .amdhsa_accum_offset 256
  .amdhsa_group_segment_fixed_size 0
  .amdhsa_kernarg_size 112
  .amdhsa_user_sgpr_count 2
  .amdhsa_user_sgpr_kernarg_segment_ptr 1
  .amdhsa_system_sgpr_workgroup_id_x 1
.end_amdhsa_kernel
''' % NAME
path = [a for a in sys.argv[1:] if not a.startswith("--")]
path = path[0] if path else "cdna_kernels/%s.s" % NAME
open(path, "w").write(out)
print("wrote", path, "lines", len(body), "nops inserted", npad)
if DEBUG:
    import json
    json.dump(STAMPS, open(path[:-2] + ".json", "w"))
```
